```python
import torch

def _softmax(x, axis=-1):
    return torch.softmax(x, dim=axis)
def _gelu(x):
    return torch.nn.functional.gelu(x, approximate="tanh")
def _silu(x):
    return torch.nn.functional.silu(x)
def _sigmoid(x):
    return torch.sigmoid(x)
def _layernorm(x, axis=-1, eps=1e-5):
    m = x.mean(dim=axis, keepdim=True)
    v = x.var(dim=axis, keepdim=True, unbiased=False)
    return (x - m) / torch.sqrt(v + eps)
def _scatter_add(tgt, idx, src, axis=0):
    return tgt.clone().index_add_(axis, idx, src)
def _segment_sum(src, seg, n):
    out = torch.zeros((n,) + src.shape[1:], dtype=src.dtype)
    return out.index_add_(0, seg, src)
def _pad(x, pw):
    flat = tuple(v for pair in reversed(pw) for v in pair)
    return torch.nn.functional.pad(x, flat)

kernel_name = 'standalone__hybrid_graph_tf_graphgps__graph'

def setup_inputs():

    _w = (lambda a: (lambda t: t.to(torch.bfloat16) if t.is_floating_point() else t)(torch.as_tensor(a)))
    N, deg, D = 10000, 16, 256
    E = N * deg
    src = (lambda lo, hi, *s: torch.randint(lo, hi, s))(0, N, E).to(torch.int64)
    dst = (lambda lo, hi, *s: torch.randint(lo, hi, s))(0, N, E).to(torch.int64)
    deg_cnt = torch.bincount(dst, minlength=N).to(float) + 1.0
    sc = 1.0 / float(D) ** 0.5
    return {
        "x": _w((lambda *s: torch.randn(*s, dtype=torch.bfloat16) * 0.05)(N, D)),
        "src": _w(src),
        "dst": _w(dst),
        "deg_inv": _w((1.0 / deg_cnt).to(float)),
        "w_msg": _w((lambda *s: torch.randn(*s, dtype=torch.bfloat16) * 0.2)(D, D) * sc),
        "wq": _w((lambda *s: torch.randn(*s, dtype=torch.bfloat16) * 1.6)(D, D) * sc),
        "wk": _w((lambda *s: torch.randn(*s, dtype=torch.bfloat16) * 1.6)(D, D) * sc),
        "wv": _w((lambda *s: torch.randn(*s, dtype=torch.bfloat16) * 0.2)(D, D) * sc),
        "w_out": _w((lambda *s: torch.randn(*s, dtype=torch.bfloat16) * 0.2)(D, D) * sc),
    }

def reference(x, src, dst, deg_inv, w_msg, wq, wk, wv, w_out):
    N, D = x.shape[0], x.shape[1]
    h = _layernorm(x, axis=-1)
    m_e = torch.einsum('nd,de->ne', h, w_msg)
    h_local = _segment_sum(m_e[src], dst, N) * deg_inv[:, None]
    q = torch.einsum('nd,de->ne', h, wq)
    k = torch.einsum('nd,de->ne', h, wk)
    v = torch.einsum('nd,de->ne', h, wv)
    logits = torch.einsum('id,jd->ij', q, k) / (float(D) ** 0.5)
    attn = _softmax(logits, axis=-1)
    h_global = torch.einsum('ij,jd->id', attn, v)
    y = torch.einsum('nd,de->ne', h_local + h_global, w_out)
    return x + y
```

```python
import sys, os
sys.path.insert(0, os.path.dirname(os.path.abspath(__file__)))
from layout import *

HEADER = open(os.path.join(os.path.dirname(os.path.abspath(__file__)), "..", "standalone__hybrid_graph_tf_graphgps__graph.s.ref")).read().split("; Override launch geometry")[0]

def kernel_text(name, body, vgpr, accum, sgpr=102):
    code = f""".globl {name}
.p2align 8
.type {name},@function
{name}:
{body}
s_endpgm
"""
    desc = f""".p2align 6
.amdhsa_kernel {name}
  .amdhsa_next_free_vgpr {vgpr}
  .amdhsa_next_free_sgpr {sgpr}
  .amdhsa_accum_offset {accum}
  .amdhsa_group_segment_fixed_size 0
  .amdhsa_kernarg_size 96
  .amdhsa_user_sgpr_count 2
  .amdhsa_user_sgpr_kernarg_segment_ptr 1
  .amdhsa_system_sgpr_workgroup_id_x 1
.end_amdhsa_kernel
"""
    return code, desc

def build_file(kernels):
    s = HEADER
    for k in kernels:
        s += f"; @launch kernel={k['name']} grid=({k['grid']},1,1) block=({k['block']},1,1) lds={k['lds']}\n"
    s += '.amdgcn_target "amdgcn-amd-amdhsa--gfx950"\n.text\n'
    descs = []
    for k in kernels:
        c, d = kernel_text(k['name'], k['body'], k['vgpr'], k['accum'])
        s += c
        descs.append(d)
    s += '.section .rodata,"a"\n' + "".join(descs)
    return s
```

```python
from layout import *

L_W0 = 4096
LIST_B = 20480
L_WS = LIST_B + 1024
PADV = 0xffff
assert ((4096 + 3 * BN) // 4 + BN // 4 + 31) // 32 * 32 + 40 <= LIST_B // 16

VL = 1; VN16 = 2; VG = 3
CNT = 4; CP = 5
VOFF = 6
VCB = 7
VONE = 16; VFOUR = 17
MINV = [18, 19, 20, 21]
CB = 24
GS = 28
VS = 32; VT = 33; VT2 = 34; VCA = 35
VLB = 36
VFL = 37
VRD = 38
VST = 39
SELA = 40; SELB = 44
ACC = 48
IDXA = [52, 56]
AD = 60
PK = 64
PV = 66
VFILL = 68
VPAD = 72
IDX = 128
E = 192

S_B, S_W, S_PASS, S_LIM, S_NIT, S_IT, S_F, S_SO, S_T, S_512, S_EO = 40, 41, 42, 43, 44, 45, 46, 47, 48, 49, 50
SRD_C, SRD_E, SRD_G, SRD_H = 8, 12, 16, 20


def wave_reduce(A, v, t, op):
    for m in ("row_shr:1", "row_shr:2", "row_shr:4", "row_shr:8", "row_bcast:15 row_mask:0xa", "row_bcast:31 row_mask:0xc"):
        A("s_nop 1")
        A(f"{op}_dpp v{v}, v{v}, v{v} {m}" + (" row_mask:0xf" if "mask" not in m else "") + " bank_mask:0xf")


def gen_edge(o, opt):
    A = o.append
    timing = opt.get('timing')
    NEW = opt.get('new', 16); ECAP = 163840 // NEW; LPS = 64 // NEW; LS = LPS.bit_length() - 1; PER = 4096 // NEW
    nst = [0]
    def stamp():
        if timing:
            A("s_memtime s[98:99]")
            A("s_waitcnt lgkmcnt(0)")
            A(f"v_writelane_b32 v126, s98, {nst[0]}")
            nst[0] += 1
    A("LE_start:")
    A("s_cmp_ge_u32 s37, 32")
    A("s_cbranch_scc1 L2_end")
    A("v_lshrrev_b32 v1, 6, v0")
    A("s_sub_u32 s37, s37, 30")
    A("s_lshl_b32 s35, s35, 1")
    A(f"v_readfirstlane_b32 s{S_W}, v1")
    A("s_add_u32 s35, s35, s37")
    A("s_mul_i32 s35, s35, %d" % (3 if opt.get('light') else 4))
    A(f"s_add_u32 s{S_B}, s35, s{S_W}")
    if opt.get('light'):
        A(f"s_cmp_ge_u32 s{S_W}, 3")
        A("s_cbranch_scc1 L2_end")
    A("LE_common:")
    A(f"v_and_b32 v{VL}, 63, v0")
    if opt.get('wexit'):
        A(f"s_cmp_ge_u32 s{S_W}, {opt['wexit']}")
        A("s_cbranch_scc1 L2_end")
    A(f"s_mov_b32 s{S_PASS}, 0")
    A(f"s_mov_b32 s{S_512}, 512")
    A(f"v_lshrrev_b32 v{VT}, {LS}, v{VL}")
    A(f"v_and_b32 v{VT2}, {LPS-1}, v{VL}")
    A(f"v_mul_u32_u24 v{VOFF}, 0x{ECAP*4:x}, v{VT}")
    A(f"v_lshl_add_u32 v{VOFF}, v{VT2}, 4, v{VOFF}")
    A(f"v_lshlrev_b32 v{VT}, 2, v{VT}")
    A(f"s_mul_i32 s{S_EO}, s{S_B}, {NEW*ECAP*4}")
    A(f"s_mul_i32 s{S_T}, s{S_B}, {NEW*4}")
    A("s_waitcnt lgkmcnt(0)")
    if timing:
        A("s_mov_b32 s100, s62")
    srd_from(o, SRD_C, 4, ECNT_OFF, NBK * NEW * 4)
    srd_from(o, SRD_E, 4, EDGE_OFF, EDGE_BYTES)
    A(f"buffer_load_dword v{CNT}, v{VT}, {sr(SRD_C)}, s{S_T} offen")
    def eloads():
        for k in range(16):
            A(f"buffer_load_dwordx4 {vr(E + k*4)}, v{VOFF}, {sr(SRD_E)}, s{S_EO} offen offset:{k*16*LPS}")
    eloads()
    srd_from(o, SRD_G, 4, ME_OFF, ME_BYTES)
    srd_from(o, SRD_H, 4, HL_OFF, HL_BYTES)
    A(f"v_lshlrev_b32 v{CP}, 2, v{VT2}")
    A(f"v_and_b32 v{VN16}, 15, v{VL}")
    A(f"v_lshrrev_b32 v{VG}, 4, v{VL}")
    A(f"v_mov_b32 v{VONE}, 1")
    A(f"v_mov_b32 v{VFOUR}, 4")
    A(f"v_and_b32 v{VT}, 1, v{VN16}")
    A(f"v_lshlrev_b32 v{VT}, 4, v{VT}")
    A(f"v_lshlrev_b32 v{VT}, v{VT}, v{VONE}")
    A(f"v_mul_u32_u24 v{VT}, 0x3f80, v{VT}")
    A(f"v_lshrrev_b32 v{VT2}, 1, v{VN16}")
    for k in range(8):
        A(f"v_cmp_eq_u32 vcc, {k}, v{VT2}")
        A("s_nop 1")
        A(f"v_cndmask_b32 v{SELA + k}, 0, v{VT}, vcc")
    A(f"v_lshlrev_b32 v{VST}, 5, v{VN16}")
    A(f"v_lshl_add_u32 v{VST}, v{VG}, 3, v{VST}")
    A(f"v_lshlrev_b32 v{VN16}, 4, v{VN16}")
    A(f"s_mul_i32 s{S_T}, s{S_W}, {L_WS}")
    A(f"s_add_u32 s{S_T}, s{S_T}, {L_W0}")
    A(f"v_mov_b32 v{VLB}, s{S_T}")
    A(f"v_lshl_add_u32 v{VRD}, v{VG}, 2, v{VLB}")
    A(f"s_lshl_b32 s36, s{S_W}, 10")
    A(f"v_mov_b32 v{VCB}, s36")
    A(f"v_lshlrev_b32 v{VCA}, 4, v{VL}")
    A(f"v_add_u32 v{VFILL}, s{S_T}, v{VCA}")
    A(f"v_add_u32 v{VCA}, s36, v{VCA}")
    A(f"v_lshlrev_b32 v{VT}, 2, v{VL}")
    for k in range(4):
        A(f"v_mov_b32 v{VPAD+k}, 0x{PADV:x}")
    for k in range(4):
        A(f"v_cmp_gt_u32 vcc, {BN - k}, v{VT}")
        A(f"v_mov_b32 v{ACC+k}, 0")
        A("s_nop 0")
        A(f"v_cndmask_b32 v{MINV[k]}, 0, v{VONE}, vcc")
    A("LE_pass:")
    A(f"ds_write_b128 v{VCA}, {vr(ACC)}")
    for k in range(LIST_B // 1024):
        A(f"ds_write_b128 v{VFILL}, {vr(VPAD)} offset:{k*1024}")
    A(f"v_lshl_add_u32 v{VS}, v{VL}, 2, v{VLB}")
    A(f"ds_write_b32 v{VS}, v{ACC} offset:{LIST_B}")
    stamp()
    A("s_waitcnt vmcnt(16)")
    stamp()
    A(f"v_sub_u32 v{VS}, v{CNT}, v{CP}")
    def slots(lab, fn, wait=False):
        for k in range(16):
            if wait: A(f"s_waitcnt vmcnt({15-k})")
            for j in range(4):
                A(f"v_cmpx_lt_i32 vcc, {4*LPS*k+j}, v{VS}")
                if j == 0: A(f"s_cbranch_execz {lab}")
                fn(4 * k + j)
        A(f"{lab}:")
        A("s_mov_b64 exec, -1")
    def f_count(s):
        A(f"v_mad_u32_u16 v{IDX+s}, v{E+s}, 1, v{VCB} op_sel:[1,0,0,0]")
        A(f"ds_add_u32 v{IDX+s}, v{VONE}")
    slots("LE_c", f_count, True)
    stamp()
    A(f"ds_read_b128 {vr(CB)}, v{VCA}")
    A("s_waitcnt lgkmcnt(0)")
    for k in range(4):
        A(f"v_add_u32 v{CB+k}, 3, v{CB+k}")
        A(f"v_lshrrev_b32 v{CB+k}, 2, v{CB+k}")
        A(f"v_max_u32 v{CB+k}, v{CB+k}, v{MINV[k]}")
    A(f"v_add_u32 v{VT}, v{CB}, v{CB+1}")
    A(f"v_add3_u32 v{VT}, v{VT}, v{CB+2}, v{CB+3}")
    A(f"v_mov_b32 v{PK}, v{VT}")
    wave_reduce(A, PK, None, "v_add_u32")
    A("s_nop 1")
    A(f"v_readlane_b32 s{S_NIT}, v{PK}, 63")
    A(f"v_sub_u32 v{GS}, v{PK}, v{VT}")
    for k in range(1, 4):
        A(f"v_add_u32 v{GS+k}, v{GS+k-1}, v{CB+k-1}")
    for k in range(4):
        A(f"v_add3_u32 v{VT}, v{GS+k}, v{CB+k}, -1")
        A(f"v_lshlrev_b32 v{VT2}, v{VT}, v{MINV[k]}")
        A(f"v_lshrrev_b32 v{VT}, 5, v{VT}")
        A(f"v_lshl_add_u32 v{VT}, v{VT}, 2, v{VLB}")
        A(f"ds_or_b32 v{VT}, v{VT2} offset:{LIST_B}")
        A(f"v_lshl_add_u32 v{GS+k}, v{GS+k}, 4, v{VLB}")
    A(f"ds_write_b128 v{VCA}, {vr(GS)}")
    A(f"s_add_u32 s{S_NIT}, s{S_NIT}, 31")
    A(f"s_lshr_b32 s{S_NIT}, s{S_NIT}, 5")
    stamp()
    slots("LE_p", lambda s: A(f"ds_add_rtn_u32 v{IDX+s}, v{IDX+s}, v{VFOUR}"))
    A(f"v_lshl_add_u32 v{VT}, v{VL}, 2, v{VLB}")
    A(f"ds_read_b32 v{VFL}, v{VT} offset:{LIST_B}")
    A("s_waitcnt lgkmcnt(0)")
    slots("LE_w", lambda s: A(f"ds_write_b32 v{IDX+s}, v{E+s}"))
    stamp()
    A(f"v_mov_b32 v{VT2}, v{VRD}")
    NBT = 8
    def idx_read(b, par):
        i = IDXA[par]
        A(f"ds_read2_b32 v[{i}:{i+1}], v{VT2} offset0:{b*16} offset1:{b*16+4}")
        A(f"ds_read2_b32 v[{i+2}:{i+3}], v{VT2} offset0:{b*16+8} offset1:{b*16+12}")
    gl = opt.get('gl', '')
    def issue(b):
        par = b % 2
        A("s_waitcnt lgkmcnt(0)")
        idx_read(b + 1, 1 - par)
        for i in range(4):
            A(f"v_mad_u32_u16 v{AD+i}, v{IDXA[par]+i}, s{S_512}, v{VN16}")
        for i in range(4):
            r = (b * 4 + i) * 8
            A(f"buffer_load_dwordx4 {ar(r)}, v{AD+i}, {sr(SRD_G)}, 0 offen{gl}")
            A(f"buffer_load_dwordx4 {ar(r+4)}, v{AD+i}, {sr(SRD_G)}, 0 offen offset:256{gl}")
    idx_read(0, 0)
    for b in range(NBT):
        issue(b)
    A(f"v_add_u32 v{VT2}, {NBT*64}, v{VT2}")
    A(f"s_mov_b32 s{S_IT}, 0")
    A(f"s_mul_i32 s{S_SO}, s{S_B}, {BN*512}")
    A("LE_loop:")
    A(f"v_readlane_b32 s{S_F}, v{VFL}, s{S_IT}")
    A(f"s_add_u32 s{S_IT}, s{S_IT}, 1")
    for b in range(NBT):
        A(f"s_waitcnt vmcnt({(NBT-1)*8})")
        for i in range(4):
            g = b * 4 + i
            r = g * 8
            A(f"v_mfma_f32_16x16x32_bf16 {vr(ACC)}, {ar(r)}, {vr(SELA)}, {vr(ACC)}")
            A(f"v_mfma_f32_16x16x32_bf16 {vr(ACC)}, {ar(r+4)}, {vr(SELB)}, {vr(ACC)}")
            A(f"s_bitcmp1_b32 s{S_F}, {g}")
            A(f"s_cbranch_scc0 LE_nf{g}")
            A(f"s_cmp_eq_u32 s{S_PASS}, 0")
            A(f"s_cbranch_scc1 LE_fl{g}")
            A(f"buffer_load_dwordx2 v[{PV}:{PV+1}], v{VST}, {sr(SRD_H)}, s{S_SO} offen sc1")
            A("s_waitcnt vmcnt(0)")
            for k in range(2):
                A(f"v_lshlrev_b32 v{PK}, 16, v{PV+k}")
                A(f"v_and_b32 v{PK+1}, 0xffff0000, v{PV+k}")
                A(f"v_add_f32 v{ACC+2*k}, v{ACC+2*k}, v{PK}")
                A(f"v_add_f32 v{ACC+2*k+1}, v{ACC+2*k+1}, v{PK+1}")
            A(f"LE_fl{g}:")
            A("s_nop 3")
            A(f"v_cvt_pk_bf16_f32 v{PK}, v{ACC}, v{ACC+1}")
            A(f"v_cvt_pk_bf16_f32 v{PK+1}, v{ACC+2}, v{ACC+3}")
            for k in range(4):
                A(f"v_mov_b32 v{ACC+k}, 0")
            A(f"buffer_store_dwordx2 v[{PK}:{PK+1}], v{VST}, {sr(SRD_H)}, s{S_SO} offen{opt.get('ste', '')}")
            A(f"s_add_u32 s{S_SO}, s{S_SO}, 512")
            A(f"LE_nf{g}:")
        issue(b)
    A(f"v_add_u32 v{VT2}, {NBT*64}, v{VT2}")
    A(f"s_cmp_lt_u32 s{S_IT}, s{S_NIT}")
    A("s_cbranch_scc1 LE_loop")
    stamp()
    A(f"s_add_u32 s{S_PASS}, s{S_PASS}, 1")
    A(f"s_mul_i32 s{S_LIM}, s{S_PASS}, {PER}")
    A(f"v_cmp_lt_u32 vcc, s{S_LIM}, v{CNT}")
    A("s_cbranch_vccz LE_done")
    A(f"s_cmp_ge_u32 s{S_PASS}, {ECAP // PER}")
    A("s_cbranch_scc1 LE_done")
    A("s_waitcnt vmcnt(0) lgkmcnt(0)")
    A(f"s_add_u32 s{S_EO}, s{S_EO}, {PER*4}")
    A(f"v_add_u32 v{CP}, 0x{PER:x}, v{CP}")
    eloads()
    A("s_branch LE_pass")
    A("LE_done:")
    if opt.get('tpf'):
        A("s_getpc_b64 s[64:65]")
        A("LE_pc:")
        A("s_sub_u32 s64, s64, LE_pc-L2_tail_0")
        A("s_subb_u32 s65, s65, 0")
        A("s_mov_b32 s66, L2_rare_site0-L2_tail_0")
        A("s_mov_b32 s67, 0x00020000")
        A("s_mov_b64 exec, -1")
        A(f"v_lshlrev_b32 v1, 7, v{VL}")
        for k in range(3):
            A(f"s_movk_i32 s68, 0x{k*8192:x}")
            A(f"buffer_load_dword v{2+k}, v1, s[64:67], s68 offen")
    if timing:
        A("s_waitcnt vmcnt(0)")
        stamp()
        A(f"v_subrev_u32 v0, s100, v126")
        A("s_memrealtime s[98:99]")
        A("s_waitcnt lgkmcnt(0)")
        A("v_writelane_b32 v0, s98, 7")
        A("s_mov_b32 s62, 0x200000\ns_mov_b32 s63, 0x00020000")
        A(f"s_lshl_b32 s35, s{S_B}, 8")
        A(f"s_add_u32 s35, s35, 0x100000")
        A(f"v_lshlrev_b32 v1, 2, v{VL}")
        A(f"buffer_store_dword v0, v1, s[60:63], s35 offen")
    A("s_branch L2_end")
```

```python
from layout import *
from sched import *
import struct, math

K1_LDS = 163840
RA, RB, RB2 = 0, 65536, 81920
AUGP = 544
AUG = K1_LDS - 2304
SCR = {4: 131072, 2: 147456}

SRD_X, SRD_W1, SRD_W2, SRD_O, SRD_T = 40, 44, 48, 52, 56
S_W, S_ROLE, S_ROT, S_SCALE, S_EPS, S_R256 = 60, 61, 62, 63, 64, 65
SKW, SKX, SK2, SO, S_M0, S_ROW0, S_HI = 66, 74, 82, 90, 98, 99, 15
A_GRAM, A_SUM, A_CS, A_ONES, A_SEL = 128, 144, 160, 176, 180

MF32 = "v_mfma_f32_16x16x32_bf16"
MF16 = "v_mfma_f32_16x16x16_bf16"


class Regs:
    def __init__(s, NB, R=None):
        s.R = R or (7 if NB == 4 else 9)
        s.RING = 192
        p = 192 + 4 * s.R
        s.REC = p; p += 4 * NB
        s.VA = p; p += 8
        s.VAUG = p; p += 1
        s.VCW = p; p += 1
        s.VOUT = p; p += 1
        s.VS = p; p += 3
        if NB == 2:
            s.VW2 = p; p += 2
            s.VDL = p; p += 1
        assert p <= 255, p
        s.VD = 255
        s.T = 160 if NB == 4 else 128
        p = 128 if NB == 4 else 160
        s.VC = p; p += 2
        s.VX = p; p += 2
        s.VXR = p; p += 2
        s.VW = p; p += 2


def role_prog(role, opt):
    NB = 4 if role == 'qk' else 2
    G = Regs(NB, opt.get('R%d' % NB))
    st = Stream()
    stx = opt.get('st', '')
    X = lambda t, b: ar((t * NB + b) * 4)
    def acc1(f, b):
        if NB == 2 or f < 8: return (f * NB + b) * 4
        return [128, 160, 0, 32][(f - 8) // 2] + ((f & 1) * 4 + b) * 4
    def acc2(f, b):
        return 128 + (f * 2 + b) * 4 if f < 8 else ((2 * (f - 8) + 1) * 2 + b) * 4
    def rd(va, off):
        return lambda h: (lambda r: f"ds_read_b64_tr_b16 v[{r+2*h}:{r+2*h+1}], v{va} offset:{off}")
    def wreads(va, t, hs):
        return [rd(va, t * 8192)(0), rd(va, t * 8192 + hs)(1)]
    nst = [0]
    def stamp(kind=0):
        if not opt.get('timing') or kind != opt.get('skind', 0): return []
        nst[0] += 1
        return [V(f"s_memtime s[{16+2*nst[0]}:{17+2*nst[0]}]", cost=0)]
    def dma(which, reg, t, H, tag, needs=()):
        srd, vw, so = (SRD_W1, G.VW, SKW + t) if which == 1 else (SRD_W2, G.VW2, SK2 + t)
        return [V(f"s_add_u32 m0, s{S_M0}, 0x{reg + t*8192 - H*256:x}", needs=needs),
                V("s_nop 0", cost=0),
                VM(f"buffer_load_dwordx4 v{vw}, {sr(srd)}, s{so} offen offset:{H*256} lds"),
                VM(f"buffer_load_dwordx4 v{vw+1}, {sr(srd)}, s{so} offen offset:{H*256+1024} lds", tag=tag)]
    xslot = lambda p, b: (p * NB + b) % 8
    def xd(p, b):
        needs = [('x', 2 * p - 3, b)] if p * NB + b >= 8 else []
        return [V(f"s_add_u32 m0, s{S_M0}, 0x{RB + xslot(p,b)*8192:x}", needs=needs),
                V("s_nop 0", cost=0),
                VM(f"buffer_load_dwordx4 v{G.VX}, {sr(SRD_X)}, s{SKX+p*NB+b} offen lds"),
                VM(f"buffer_load_dwordx4 v{G.VX+1}, {sr(SRD_X)}, s{SKX+p*NB+b} offen offset:1024 lds", tag=('xd', p, b))]
    def xr(p, b):
        return [W(('xd', p, b))] + [LD(f"ds_read_b128 {X(2*p+e,b)}, v{G.VXR+e} offset:{xslot(p,b)*8192}", tag=('x', 2 * p + e, b)) for e in range(2)]
    fr = []
    bar = lambda *tags: [W(*tags), V("s_barrier")]
    for t in range(8):
        for e in range(2):
            cs = ar(A_CS + e * 4)
            mf = [lambda r, cs=cs, t=t: f"{MF32} {cs}, {vr(r)}, {ar(A_ONES)}, {cs if t else 0}"]
            for b in range(e * NB // 2, (e + 1) * NB // 2):
                gr = ar(A_GRAM + b * 4); sm = ar(A_SUM)
                mf.append(lambda r, gr=gr, t=t, b=b: f"{MF32} {gr}, {X(t,b)}, {X(t,b)}, {gr if t else 0}")
                mf.append(lambda r, sm=sm, t=t, b=b: f"{MF32} {sm}, {ar(A_SEL+b*4)}, {X(t,b)}, {sm if (t or b) else 0}")
            d = dict(reads=wreads(G.VC + e, t, 1024), mf=mf)
            if e == 0:
                d['pre'] = bar(('wa', t)); d['needs'] = [('x', t, b) for b in range(NB)]; d['mark'] = ('A', t)
            fr.append(d)
        for f in range(8):
            mf = [(lambda r, f=f, b=b, t=t: f"{MF32} {vr(acc1(f,b))}, {vr(r)}, {X(t,b)}, {vr(acc1(f,b)) if t else 0}") for b in range(NB)]
            fr.append(dict(reads=wreads(G.VA + f, t, 1024), mf=mf, mark=('Af', t, f)))
    for t in range(8):
        for e in range(2):
            cs = ar(A_CS + 8 + e * 4)
            d = dict(reads=wreads(G.VC + e, t, 1024), mf=[lambda r, cs=cs, t=t: f"{MF32} {cs}, {vr(r)}, {ar(A_ONES)}, {cs if t else 0}"], mark=('csB', t, e))
            if t == 0:
                d['pre'] = (bar(('wb', 7)) if e == 0 else []) + [V(f"v_add_u32 v{G.VC+e}, s{S_HI}, v{G.VC+e}")]
            fr.append(d)
    def aug(f, first=False):
        mf = [(lambda r, b=b: f"{MF16} {vr(acc1(f,b))}, v[{r}:{r+1}], v[{G.REC+4*b}:{G.REC+4*b+1}], {vr(acc1(f,b))}") for b in range(NB)]
        d = dict(reads=[lambda r: f"ds_read_b64_tr_b16 v[{r}:{r+1}], v{G.VAUG} offset:{f*32}"], mf=mf, mark=('fix', f))
        if first:
            d['pre'] = bar('csw') ; d['needs'] = [('rec', NB - 1)]
        return d
    npre = 1 if NB == 4 else 2
    for f in range(8, 16):
        for t in range(8):
            mf = [(lambda r, f=f, b=b, t=t: f"{MF32} {vr(acc1(f,b))}, {vr(r)}, {X(t,b)}, {vr(acc1(f,b)) if t else 0}") for b in range(NB)]
            d = dict(reads=wreads(G.VA + f - 8, t, 1024), mf=mf, mark=('B', f, t))
            if t == 0: d['pre'] = [V(f"v_add_u32 v{G.VA+f-8}, s{S_HI}, v{G.VA+f-8}")]
            fr.append(d)
        if f == 8 + npre - 1:
            for ff in range(8 + npre): fr.append(aug(ff, ff == 0))
        elif f >= 8 + npre:
            fr.append(aug(f))
    if NB == 2:
        def m2(f, b, u):
            a = vr(acc2(f, b)); v = vr(acc1(2 * u, b))
            return lambda r: f"{MF32} {a}, {v}, {vr(r)}, {a if u else 0}"
        for u in range(8):
            for f in range(8):
                d = dict(reads=wreads(G.VA + f, u, 4096), mf=[m2(f, b, u) for b in range(2)], mark=('A2', u, f), pre=[])
                if f == 0 and u == 0: d['pre'] += bar(('w2a', 3))
                if f == 0 and u == 1: d['pre'] += [V("s_barrier"), V(None, cost=0)]
                if f == 0 and u == 4: d['pre'] += bar(('w2a', 7))
                if u == 0: d['pre'].append(V(f"v_add_u32 v{G.VA+f}, v{G.VDL}, v{G.VA+f}"))
                fr.append(d)
        for f in range(8, 16):
            for u in range(8):
                d = dict(reads=wreads(G.VA + f - 8, u, 4096), mf=[m2(f, b, u) for b in range(2)], mark=('B2', f, u), pre=[])
                if f == 8 and u == 0: d['pre'] += bar(('w2b', 5))
                if u == 0: d['pre'].append(V(f"v_add_u32 v{G.VA+f-8}, 0x{RB2:x}, v{G.VA+f-8}"))
                fr.append(d)
    order = [('wa', 0)] + [('xd', 0, b) for b in range(NB)] + [('wa', 1), ('wa', 2)]
    for p in range(1, 4):
        order += [('xd', p, b) for b in range(NB)] + [('wa', c) for c in (2 * p + 1, 2 * p + 2) if c < 8]
    order += [('wb', c) for c in range(8)]
    lastx = {}
    for it in order:
        if it[0] == 'xd': lastx[xslot(it[1], it[2])] = it[1:]
    def item(it):
        if it[0] == 'wa': return dma(1, RA, it[1], 0, it)
        if it[0] == 'wb': return dma(1, RB, it[1], 1, it, [('x', 2 * lastx[it[1]][0] + 1, lastx[it[1]][1])])
        return xd(it[1], it[2])
    NPRE = opt.get('npre', 6)
    pre = []
    for it in order[:NPRE]: pre += item(it)
    if opt.get('touch', 0):
        pre.append(VM(f"buffer_load_dword v{G.VD}, v10, {sr(SRD_X)}, s8 offen"))
        pre.append(VM(f"buffer_load_dword v{G.VD}, v10, {sr(SRD_T)}, s9 offen"))
    setup2(pre, role, G, NB)
    pre += stamp()
    for b in range(NB): pre += xr(0, b)
    st.pre = pre
    mk, span = ring_build(st, fr, G.R, G.RING)
    idx = {f['mark']: i for i, f in enumerate(fr) if 'mark' in f}
    first = lambda m: span[idx[m]][0]
    last = lambda m: span[idx[m]][1]
    pregap = lambda m: span[idx[m] - G.R + 1][0]
    for s in stamp(): st.put(0, s)
    for t in range(1, 8):
        for s in stamp(1): st.put(first(('A', t)), s)
    PACE, LATG = opt.get('pace', 8), opt.get('latg', 40)
    pos = 0; xrpos = {(0, b): -1 for b in range(NB)}
    def place_xr(p, b, g):
        g = min(g + LATG, first(('A', 2 * p)) - 12 - 2 * (NB - 1 - b))
        xrpos[(p, b)] = st.fill(xr(p, b), g)
    for it in order[:NPRE]:
        if it[0] == 'xd' and it[1]: place_xr(it[1], it[2], 0)
    for it in order[NPRE:]:
        if it[0] == 'xd' and it[1] * NB + it[2] >= 8: pos = max(pos, xrpos[(it[1] - 2, it[2])] + 8)
        if it[0] == 'wb': pos = max(pos, xrpos[lastx[it[1]]] + 8)
        if it[0] == 'wa': assert pos < pregap(('A', it[1])) - 4, (it, pos)
        if it[0] == 'wb': assert pos < pregap(('csB', 0, 0)) - 4, (it, pos)
        g = st.fill(item(it), pos)
        if it[0] == 'xd': place_xr(it[1], it[2], g)
        pos = max(pos + PACE, g)
    T = G.T
    q = []
    for b in range(NB):
        q.append(LD(f"ds_write_b128 v{G.VS}, {ar(A_GRAM+4*b)} offset:{b*1024}"))
    q.append(LD(f"ds_read_b32 v{T}, v{G.VS+1}", tag='gr'))
    q.append(V(f"v_accvgpr_read_b32 v{T+1}, a{A_SUM}"))
    def cs_post(h):
        q = []
        for e in range(2):
            c = T + 8 + e * 12
            for r in range(4): q.append(V(f"v_accvgpr_read_b32 v{c+r}, a{A_CS+h*8+e*4+r}"))
            for lv in range(3):
                q.append(V(f"v_cvt_pk_bf16_f32 v{c+4}, v{c}, v{c+1}"))
                q.append(V(f"v_cvt_pk_bf16_f32 v{c+5}, v{c+2}, v{c+3}"))
                if lv < 2:
                    q.append(V(f"v_lshlrev_b32 v{c+6}, 16, v{c+4}"))
                    q.append(V(f"v_and_b32 v{c+7}, 0xffff0000, v{c+4}"))
                    q.append(V(f"v_lshlrev_b32 v{c+8}, 16, v{c+5}"))
                    q.append(V(f"v_and_b32 v{c+9}, 0xffff0000, v{c+5}"))
                q.append(LD(f"ds_write_b64 v{G.VCW}, v[{c+4}:{c+5}] offset:{lv*AUGP + e*32 + h*256}", tag='csw'))
                if lv < 2:
                    for r in range(4): q.append(V(f"v_sub_f32 v{c+r}, v{c+r}, v{c+6+r}"))
        return q
    qa = cs_post(0)
    q += qa[:8]
    q += [V(f"v_mul_f32 v{T+1}, s{S_R256}, v{T+1}"),
          W('gr'),
          V(f"v_mul_f32 v{T}, s{S_R256}, v{T}"),
          V(f"v_fma_f32 v{T}, -v{T+1}, v{T+1}, v{T}"),
          V(f"v_max_f32 v{T}, 0, v{T}"),
          V(f"v_cvt_pk_bf16_f32 v{T}, v{T}, v{T}"),
          V(f"v_cvt_pk_bf16_f32 v{T+4}, -v{T+1}, -v{T+1}"),
          V(f"v_and_b32 v{T}, 0xffff0000, v{T}"),
          V(f"v_add_f32 v{T}, s{S_EPS}, v{T}"),
          V(f"v_cvt_pk_bf16_f32 v{T}, v{T}, v{T}"),
          V(f"v_and_b32 v{T}, 0xffff0000, v{T}"),
          V(f"v_sqrt_f32 v{T}, v{T}", cost=2),
          V(f"v_mov_b32 v{T+5}, v{T+4}"),
          V(f"v_cvt_pk_bf16_f32 v{T}, v{T}, v{T}"),
          V(f"v_and_b32 v{T}, 0xffff0000, v{T}"),
          V(f"v_rcp_f32 v{T}, v{T}", cost=2),
          qa[8],
          V(f"v_mul_f32 v{T+6}, s{S_SCALE}, v{T}"),
          LD(f"ds_write_b128 v{G.VS}, {vr(T+4)}")]
    for b in range(NB):
        q.append(LD(f"ds_read_b128 {vr(G.REC+4*b)}, v{G.VS+2} offset:{b*256}", tag=('rec', b)))
    q += qa[9:]
    gx = pregap(('fix', 0))
    g = st.fill(q, first(('Af', 7, 0)) + 5, gx - 1)
    g = st.fill(cs_post(1), max(g, last(('csB', 7, 1)) + 6), gx - 1)
    for s in stamp(): st.put(first(('csB', 0, 0)), s)
    for s in stamp(): st.put(first(('fix', 0)), s)
    if NB == 2:
        grp = [dma(2, RA, u, 0, ('w2a', u)) for u in range(8)] + [dma(2, RB2, u, 1, ('w2b', u)) for u in (6, 7)]
        st.spread(grp, gx + 1, pregap(('A2', 0, 0)) - 8)
        g1d = pregap(('A2', 1, 0))
        st.spread([dma(2, RB2, u, 1, ('w2b', u)) for u in range(6)], g1d + 1, first(('A2', 4, 0)))
    def so_qk(u, b): return f"s{SO + b + (4 if u >= 4 else 0)} offen offset:{(u%4)*1024}"
    def epi1(u, b):
        A0, A1 = acc1(2 * u, b), acc1(2 * u + 1, b); a = G.REC + 4 * b + 2
        q = [V(f"v_mul_f32 v{A0+r}, v{A0+r}, v{a}") for r in range(4)]
        q += [V(f"v_mul_f32 v{A1+r}, v{A1+r}, v{a}") for r in range(2)]
        q += [V(f"v_cvt_pk_bf16_f32 v{A0}, v{A0}, v{A0+1}"), V(f"v_cvt_pk_bf16_f32 v{A0+1}, v{A0+2}, v{A0+3}")]
        q += [V(f"v_mul_f32 v{A1+r}, v{A1+r}, v{a}") for r in range(2, 4)]
        q += [V(f"v_cvt_pk_bf16_f32 v{A0+2}, v{A1}, v{A1+1}"), V(f"v_cvt_pk_bf16_f32 v{A0+3}, v{A1+2}, v{A1+3}")]
        if NB == 4:
            q.append(VM(f"buffer_store_dwordx4 {vr(A0)}, v{G.VOUT}, {sr(SRD_O)}, {so_qk(u,b)}{stx}"))
        return q
    def pack2(A0, A1):
        return [V(f"v_cvt_pk_bf16_f32 v{A0}, v{A0}, v{A0+1}"), V(f"v_cvt_pk_bf16_f32 v{A0+1}, v{A0+2}, v{A0+3}"),
                V(f"v_cvt_pk_bf16_f32 v{A0+2}, v{A1}, v{A1+1}"), V(f"v_cvt_pk_bf16_f32 v{A0+3}, v{A1+2}, v{A1+3}")]
    LAG = opt.get('lag', 5)
    g = 0
    nm = st.n()
    tail = []
    for u in range(8):
        for b in range(NB):
            e = first(('fix', 2 * u + 1)) + b + LAG
            if e > nm - 1:
                if not tail: tail.append(V("s_nop 7"))
                tail += epi1(u, b); continue
            g = st.fill(epi1(u, b), max(g, e), None if NB == 4 else first(('A2', u, 0)) - 3)
        if NB == 4:
            if u == 0: assert g < first(('B', 12, 0)) - 2
            if u == 1: assert g < first(('B', 14, 0)) - 2
        else:
            assert g < first(('A2', u, 0)) - 1, (u, g, first(('A2', u, 0)))
    if NB == 2:
        for s in stamp(): st.put(first(('A2', 0, 0)), s)
        for s in stamp(): st.put(first(('B2', 8, 0)), s)
        def done2(f): return last(('A2', 7, f)) if f < 8 else last(('B2', f, 7))
        items = []
        if role == 'v':
            for f in range(16):
                q = pack2(acc2(f, 0), acc2(f, 1))
                q.append(VM(f"buffer_store_dwordx4 {vr(acc2(f,0))}, v{G.VOUT}, {sr(SRD_O)}, s{SO+f//4} offen offset:{(f%4)*1024}{stx}"))
                items.append((done2(f), q))
        else:
            def grp(b, H, k):
                n = 2 * H + b
                S = (G.REC, G.REC + 4) if n == 0 else (acc2(2 * n, 0), acc2(2 * n + 1, 0))
                Q = lambda f: acc2(8 * H + f, b)
                O = [S[0], S[1], Q(0), Q(1)]
                q = []
                for r in range(4):
                    q.append(V(f"v_cvt_pk_bf16_f32 v{O[r]+k}, v{Q(2*k)+r}, v{Q(2*k+1)+r}"))
                if k == 3:
                    for r in range(4):
                        q.append(VM(f"buffer_store_dwordx4 {vr(O[r])}, v{G.VOUT}, {sr(SRD_O)}, s{SO+b} offen offset:{r*512+H*256}{stx}"))
                return (done2(8 * H + 2 * k + 1) - 1 + b, q)
            items += [grp(b, 0, k) for b in range(2) for k in range(4)]
            items += [grp(b, 1, k) for k in range(4) for b in range(2)]
        for e, q in items:
            e += LAG
            if e > nm - 1:
                if not tail: tail.append(V("s_nop 7"))
                tail += q; continue
            g = st.fill(q, max(g, e))
    for x in tail: st.put(nm - 1, x)
    for s in stamp(): st.put(nm - 1, s)
    em = Emitter()
    o = em.emit(st.seq())
    if opt.get('verbose'): print(role, st.stats(), "auto waits", em.auto, "lines", len(o))
    return o


def setup1(A, role, G, NB):
    if NB == 4:
        A("s_mul_i32 s6, s3, 5"); A("s_add_u32 s6, s6, s4"); A("s_lshl_b32 s6, s6, 8"); A(f"s_lshl_b32 s7, s{S_W}, 6")
    else:
        A("s_mul_i32 s6, s3, 10"); A("s_add_u32 s6, s6, s4"); A("s_lshl_b32 s6, s6, 7"); A(f"s_lshl_b32 s7, s{S_W}, 5")
    A(f"s_add_u32 s{S_ROW0}, s6, s7")
    A(f"s_lshl_b32 s6, s{S_ROW0}, 9")
    A("v_lshrrev_b32 v5, 3, v2")
    A("v_and_b32 v6, 6, v5")
    A("v_and_b32 v7, 7, v2")
    A("v_xor_b32 v6, v6, v7")
    A("v_lshlrev_b32 v5, 9, v5")
    A("v_lshl_add_u32 v5, v6, 4, v5")
    A(f"v_add_u32 v{G.VX}, s6, v5")
    A(f"v_add_u32 v{G.VX+1}, 0xc00, v{G.VX}")
    A(f"s_lshr_b32 s7, s{S_ROT}, 1")
    for p in range(2):
        A(f"s_xor_b32 s6, s7, {p}")
        A(f"s_lshl_b32 s{SKX+p*NB}, s6, 7")
        for b in range(1, NB): A(f"s_add_u32 s{SKX+p*NB+b}, s{SKX+p*NB}, {b*8192}")
    A(f"s_and_b32 s6, s{S_W}, 1"); A("s_lshl_b32 s6, s6, 2")
    A("v_lshrrev_b32 v5, 1, v3")
    A("v_xor_b32 v6, v5, v4")
    A("v_and_b32 v7, 1, v3")
    A("v_lshlrev_b32 v7, 4, v7")
    A("v_lshl_add_u32 v7, v4, 9, v7")
    A(f"s_lshl_b32 s7, s{S_W}, 12")
    A("v_add_u32 v7, s7, v7")
    A("v_xor_b32 v8, s6, v6")
    A(f"v_lshl_add_u32 v{G.VW}, v8, 5, v7")
    A(f"v_add_u32 v{G.VW+1}, 0x400, v{G.VW}")
    A("v_lshlrev_b32 v10, 7, v2")


def setup2(pre, role, G, NB):
    A = lambda t: pre.append(V(t))
    if NB == 2:
        A(f"v_lshl_add_u32 v{G.VW2}, v6, 5, v7")
        A("v_xor_b32 v8, 4, v6")
        A(f"v_lshl_add_u32 v{G.VW2+1}, v8, 5, v7")
        A(f"v_add_u32 v{G.VW2+1}, 0x400, v{G.VW2+1}")
        A(f"v_lshlrev_b32 v5, 10, v4")
        A(f"v_sub_u32 v{G.VDL}, 0x{(-65536) & 0xffffffff:x}, v5")
        for u in range(8): A(f"s_mov_b32 s{SK2+u}, 0x{u*16384:x}")
        o = []; srd_from(o, SRD_W2, 32, 0, 131072)
        for t in o: A(t)
    A("v_lshrrev_b32 v5, 2, v3")
    A("v_and_b32 v6, 3, v3")
    A("v_and_b32 v7, 1, v4")
    A("v_lshl_or_b32 v7, v7, 2, v5")
    A("v_lshl_add_u32 v8, v4, 3, v5")
    A("v_lshlrev_b32 v8, 8, v8")
    A("v_lshl_add_u32 v8, v6, 3, v8")
    for f in range(8):
        A(f"v_xor_b32 v9, {f}, v7")
        A(f"v_lshl_add_u32 v{G.VA+f}, v9, 5, v8")
    A(f"s_lshl_b32 s6, s{S_W}, 1")
    A(f"v_xor_b32 v9, s6, v7")
    A(f"v_lshl_add_u32 v{G.VC}, v9, 5, v8")
    A(f"v_xor_b32 v9, 1, v9")
    A(f"v_lshl_add_u32 v{G.VC+1}, v9, 5, v8")
    A("v_cmp_eq_u32 vcc, 0, v4")
    A("v_mov_b32 v11, 0"); A("v_mov_b32 v12, 0"); A("v_mov_b32 v13, 0")
    A("v_cndmask_b32 v9, 3, v5, vcc")
    A(f"v_mul_u32_u24 v9, {AUGP}, v9")
    A(f"v_lshl_add_u32 v9, v6, 3, v9")
    A(f"v_add_u32 v{G.VAUG}, 0x{AUG:x}, v9")
    A(f"v_lshlrev_b32 v9, 3, v2")
    A(f"v_add_u32 v9, 0x{AUG + 3*AUGP:x}, v9")
    pre.append(LD("ds_write_b64 v9, v[12:13]"))
    A(f"s_lshl_b32 s6, s{S_W}, 6")
    A(f"s_add_u32 s6, s6, 0x{AUG:x}")
    A(f"v_lshl_add_u32 v{G.VCW}, v4, 3, s6")
    A(f"s_mul_i32 s6, s{S_W}, {NB*1024}")
    A(f"s_add_u32 s6, s6, 0x{SCR[NB]:x}")
    A(f"v_lshl_add_u32 v{G.VS}, v2, 4, s6")
    A(f"v_lshl_add_u32 v{G.VS+2}, v3, 4, s6")
    A(f"v_and_b32 v9, {NB-1}, v4")
    A(f"v_lshl_add_u32 v9, v9, 10, v{G.VS+2}")
    A(f"v_lshl_add_u32 v9, v5, 8, v9")
    A(f"v_lshl_add_u32 v{G.VS+1}, v6, 2, v9")
    A("v_mov_b32 v9, 0x3f803f80")
    A(f"v_and_b32 v8, {NB-1}, v5")
    for k in range(4): A(f"v_accvgpr_write_b32 a{A_ONES+k}, v9")
    for b in range(NB):
        A(f"v_cmp_eq_u32 vcc, {b}, v8")
        A("s_nop 1")
        A("v_cndmask_b32 v7, v11, v9, vcc")
        for k in range(4): A(f"v_accvgpr_write_b32 a{A_SEL+4*b+k}, v7")
    for t in range(3, 8):
        A(f"s_xor_b32 s6, s{S_ROT}, {t}")
        A(f"s_lshl_b32 s{SKW+t}, s6, 14")
    A(f"s_lshr_b32 s7, s{S_ROT}, 1")
    for p in range(2, 4):
        A(f"s_xor_b32 s6, s7, {p}")
        A(f"s_lshl_b32 s{SKX+p*NB}, s6, 7")
        for b in range(1, NB): A(f"s_add_u32 s{SKX+p*NB+b}, s{SKX+p*NB}, {b*8192}")
    A(f"s_and_b32 s6, s{S_ROT}, 1")
    A(f"s_lshl_b32 s6, s6, 2")
    A(f"v_and_b32 v7, 6, v3")
    A(f"v_xor_b32 v7, v7, v4")
    A(f"v_xor_b32 v7, s6, v7")
    A(f"s_add_u32 s6, s{S_M0}, 0x{RB:x}")
    A(f"v_lshl_add_u32 v8, v3, 7, s6")
    A(f"v_lshl_add_u32 v{G.VXR}, v7, 4, v8")
    A(f"v_xor_b32 v{G.VXR+1}, 64, v{G.VXR}")
    A(f"s_mov_b32 s{S_EPS}, 0x3727c5ac")
    A(f"s_mov_b32 s{S_R256}, 0x3b800000")
    A(f"s_mov_b32 s{S_HI}, 0x10000")
    o = []
    A(f"s_lshl_b32 s{SO}, s{S_ROW0}, 9")
    if role == 'qk':
        qs = struct.unpack('<I', struct.pack('<f', math.log2(math.e) / 16))[0]
        A(f"s_cmp_eq_u32 s{S_ROLE}, 0")
        A(f"s_cselect_b32 s{S_SCALE}, 0x{qs:x}, 1.0")
        A(f"s_cselect_b32 s6, 0x{QF_OFF:x}, 0x{KF_OFF:x}")
        srd_from(o, SRD_O, 38, 0, QF_BYTES, 6)
        for b in range(1, 4): A(f"s_add_u32 s{SO+b}, s{SO}, {b*8192}")
        for b in range(4): A(f"s_add_u32 s{SO+4+b}, s{SO+b}, 4096")
        A(f"v_lshlrev_b32 v{G.VOUT}, 4, v2")
    elif role == 'v':
        A(f"s_mov_b32 s{S_SCALE}, 1.0")
        srd_from(o, SRD_O, 38, VF_OFF, VF_BYTES)
        for b in range(1, 4): A(f"s_add_u32 s{SO+b}, s{SO}, {b*4096}")
        A(f"v_lshlrev_b32 v{G.VOUT}, 4, v2")
    else:
        A(f"s_mov_b32 s{S_SCALE}, 1.0")
        srd_from(o, SRD_O, 38, ME_OFF, ME_BYTES)
        A(f"s_add_u32 s{SO+1}, s{SO}, 8192")
        A(f"v_lshlrev_b32 v{G.VOUT}, 4, v3")
        A(f"v_lshl_add_u32 v{G.VOUT}, v4, 11, v{G.VOUT}")
    for t in o: A(t)


def edge_prog(opt):
    o = []; A = o.append
    L_CNT = 65536
    D0, S0, B0 = 16, 56, 96
    SRD_D, SRD_S, SRD_E, SRD_C = 40, 44, 48, 52
    A("s_lshl_b32 s5, s4, 2")
    A(f"s_add_u32 s5, s5, s{S_W}")
    A(f"s_mul_i32 s6, s5, {E // 64 * 4}")
    A("v_lshlrev_b32 v5, 4, v2")
    A("v_lshlrev_b32 v6, 2, v2")
    A(f"v_add_u32 v6, 0x{L_CNT:x}, v6")
    A("v_mov_b32 v7, 0")
    A("ds_write_b32 v6, v7")
    A("s_mov_b32 s7, 4096"); A("s_mov_b32 s8, 8192")
    A("s_waitcnt lgkmcnt(0)")
    srd_from(o, SRD_D, 20, 0, E // 64 * 4, 6)
    srd_from(o, SRD_S, 18, 0, E // 64 * 4, 6)
    so = lambda i: ("0", "s7", "s8")[i // 4] + f" offen offset:{(i%4)*1024}"
    for i in range(10):
        A(f"buffer_load_dwordx4 {vr(D0+4*i)}, v5, {sr(SRD_D)}, {so(i)}")
        A(f"buffer_load_dwordx4 {vr(S0+4*i)}, v5, {sr(SRD_S)}, {so(i)}")
    srd_from(o, SRD_E, 38, EDGE_OFF, EDGE_BYTES)
    srd_from(o, SRD_C, 38, ECNT_OFF, ECNT_BYTES)
    A(f"s_mov_b32 s9, {BMAGIC}")
    A(f"s_mov_b32 s10, {-BN & 0xffffffff}")
    A(f"s_mov_b32 s11, 0x{L_CNT:x}")
    A("v_mov_b32 v7, 1")
    A(f"v_cmp_gt_u32 vcc, {E // 64 // 4 - 576}, v2")
    A("s_mov_b64 s[12:13], vcc")
    A("s_barrier")
    def place(i):
        for k in range(4):
            d, s, b = D0 + 4 * i + k, S0 + 4 * i + k, B0 + 4 * i + k
            A(f"v_and_b32 v8, 0xff, v{d}")
            A(f"v_lshlrev_b32 v8, 2, v8")
            A(f"v_lshl_add_u32 v8, v{b}, 10, v8")
            A(f"ds_write_b32 v8, v{s}")
    for i in range(10):
        A(f"s_waitcnt vmcnt({2*(9-i)})")
        if i == 9: A("s_mov_b64 exec, s[12:13]")
        for k in range(4):
            d, s, b = D0 + 4 * i + k, S0 + 4 * i + k, B0 + 4 * i + k
            A(f"v_mul_u32_u24 v{b}, s9, v{d}")
            A(f"v_lshrrev_b32 v{b}, {BSHIFT}, v{b}")
            A(f"v_mad_i32_i24 v{d}, v{b}, s10, v{d}")
            A(f"v_lshl_or_b32 v{s}, v{d}, 18, v{s}")
            A(f"v_lshl_add_u32 v{d}, v{b}, 2, s11")
            A(f"ds_add_rtn_u32 v{d}, v{d}, v7")
        if i == 9: A("s_mov_b64 exec, -1")
        if i:
            A("s_waitcnt lgkmcnt(4)")
            place(i - 1)
    A("s_mov_b64 exec, s[12:13]")
    A("s_waitcnt lgkmcnt(4)")
    place(9)
    A("s_mov_b64 exec, -1")
    A("s_waitcnt lgkmcnt(0)")
    A("s_barrier")
    A("ds_read_b32 v8, v6")
    A(f"s_lshl_b32 s6, s{S_W}, 14")
    A("v_add_u32 v9, s6, v5")
    for k in range(16):
        A(f"ds_read_b128 {vr(136+4*k)}, v9 offset:{k*1024}")
    A(f"s_mul_i32 s6, s{S_W}, {16*NEW*ECAP*4}")
    A(f"s_mul_i32 s7, s4, {ECAP*4}")
    A("s_add_u32 s6, s6, s7")
    A("v_lshlrev_b32 v9, 6, v2")
    A("s_lshl_b32 s8, s4, 2")
    A(f"s_cmp_eq_u32 s{S_W}, 0")
    A("s_cselect_b32 s8, s8, 0x7fff0000")
    A("s_waitcnt lgkmcnt(15)")
    A(f"buffer_store_dword v8, v9, {sr(SRD_C)}, s8 offen")
    A(f"v_cmp_lt_u32 vcc, 0x100, v8")
    A("s_cbranch_vccnz L1_eslow")
    for k in range(16):
        A(f"s_waitcnt lgkmcnt({15-k})")
        A(f"buffer_store_dwordx4 {vr(136+4*k)}, v5, {sr(SRD_E)}, s6 offen")
        A(f"s_add_u32 s6, s6, {NEW*ECAP*4}")
    A("s_branch L1_fin")
    A("L1_eslow:")
    A(f"s_mov_b32 s9, {NEW*ECAP*4}")
    for i in range(10):
        if i == 9: A("s_mov_b64 exec, s[12:13]")
        for k in range(4):
            d, s, b = D0 + 4 * i + k, S0 + 4 * i + k, B0 + 4 * i + k
            A(f"v_mul_u32_u24 v{b}, s9, v{b}")
            A(f"v_lshl_add_u32 v{b}, v{d}, 2, v{b}")
            A(f"buffer_store_dword v{s}, v{b}, {sr(SRD_E)}, s7 offen")
    A("s_mov_b64 exec, -1")
    return o


def gen_k1(opt=None):
    opt = opt or {}
    o = []
    A = o.append
    A("s_getpc_b64 s[56:57]")
    A("s_load_dwordx16 s[16:31], s[0:1], 0")
    A("s_load_dwordx8 s[32:39], s[0:1], 64")
    if opt.get('timing'):
        A("s_memtime s[100:101]")
    A("s_cmp_ge_u32 s2, 256")
    A("s_cbranch_scc1 L1_end")
    A("v_lshrrev_b32 v1, 6, v0")
    A("v_and_b32 v2, 63, v0")
    A("s_and_b32 s3, s2, 7")
    A(f"v_readfirstlane_b32 s{S_W}, v1")
    A("s_lshr_b32 s4, s2, 3")
    A("s_lshl_b32 s5, s4, 2")
    A(f"s_add_u32 s5, s5, s{S_W}")
    if opt.get('cpf', 1):
        A("s_and_b32 s56, s56, 0xffffff00")
        A(f"s_mov_b32 s58, {opt.get('code_end', 'L1_end')}-k1_kernel")
        A("s_mov_b32 s59, 0x00020000")
        A("s_and_b32 s6, s5, 15")
        A("s_lshl_b32 s6, s6, 13")
        A("v_lshlrev_b32 v10, 7, v2")
        A("buffer_load_dword v255, v10, s[56:59], s6 offen")
    A("v_and_b32 v3, 15, v2")
    A("v_lshrrev_b32 v4, 4, v2")
    A(f"s_and_b32 s{S_ROT}, s4, {opt.get('rotm', 7)}")
    A(f"s_lshl_b32 s{S_M0}, s{S_W}, 11")
    for t in range(3):
        A(f"s_xor_b32 s6, s{S_ROT}, {t}")
        A(f"s_lshl_b32 s{SKW+t}, s6, 14")
    A("s_sub_u32 s6, s5, 80")
    A("s_cmp_ge_u32 s5, 80")
    A("s_cselect_b32 s6, s6, s5")
    A("s_mul_i32 s8, s3, 80")
    A("s_add_u32 s8, s8, s6")
    A("s_lshl_b32 s8, s8, 13")
    A("s_cmp_ge_u32 s4, 10")
    A("s_cbranch_scc1 L1_notqk")
    def head(role, wptr):
        NB = 4 if role == 'qk' else 2
        G = Regs(NB, opt.get('R%d' % NB))
        setup1(A, role, G, NB)
        A("s_lshl_b32 s5, s4, 2")
        A(f"s_add_u32 s5, s5, s{S_W}")
        A("s_and_b32 s9, s5, 15")
        A("s_lshl_b32 s9, s9, 13")
        A("s_waitcnt lgkmcnt(0)")
        if role == 'qk':
            A(f"s_cmp_eq_u32 s{S_ROLE}, 0")
            A("s_cselect_b32 s6, s26, s28"); A("s_cselect_b32 s7, s27, s29")
            srd_from(o, SRD_W1, 6, 0, 131072)
            srd_from(o, SRD_X, 16, 0, N * 512)
            srd_from(o, SRD_T, 6, 0, 131072)
        else:
            srd_from(o, SRD_W1, wptr, 0, 131072)
            srd_from(o, SRD_X, 16, 0, N * 512)
            A("s_bitcmp1_b32 s5, 4")
            A(f"s_cselect_b32 s6, s32, s{wptr}"); A(f"s_cselect_b32 s7, s33, s{wptr+1}")
            srd_from(o, SRD_T, 6, 0, 131072)
    A(f"s_cmp_ge_u32 s4, 5")
    A(f"s_cselect_b32 s{S_ROLE}, 1, 0")
    A(f"s_mul_i32 s6, s{S_ROLE}, 5")
    A("s_sub_u32 s4, s4, s6")
    head('qk', None)
    o += role_prog('qk', opt)
    A("s_branch L1_fin")
    A("L1_notqk:")
    A("s_cmp_ge_u32 s4, 20")
    A("s_cbranch_scc1 L1_notv")
    A(f"s_mov_b32 s{S_ROLE}, 2")
    A("s_sub_u32 s4, s4, 10")
    head('v', 30)
    o += role_prog('v', opt)
    A("s_branch L1_fin")
    A("L1_notv:")
    A("s_cmp_ge_u32 s4, 30")
    A("s_cbranch_scc1 L1_edge")
    A(f"s_mov_b32 s{S_ROLE}, 3")
    A("s_sub_u32 s4, s4, 20")
    head('m', 24)
    o += role_prog('m', opt)
    A("s_branch L1_fin")
    A("L1_edge:")
    A(f"s_mov_b32 s{S_ROLE}, 4")
    A("s_sub_u32 s4, s4, 30")
    A("s_lshl_b32 s3, s3, 1")
    A("s_add_u32 s4, s4, s3")
    o += edge_prog(opt)
    A("L1_fin:")
    if opt.get('timing'):
        A("s_memtime s[4:5]")
        A("s_waitcnt vmcnt(0)")
        A("s_memtime s[6:7]")
        A("s_waitcnt lgkmcnt(0)")
        for k in range(7):
            A(f"v_writelane_b32 v0, s{18+2*k}, {k}")
        A("v_writelane_b32 v0, s4, 7")
        A("v_writelane_b32 v0, s6, 8")
        A(f"v_subrev_u32 v0, s100, v0")
        A(f"v_writelane_b32 v0, s{S_ROLE}, 63")
        srd_from(o, 4, 34, 0, 1 << 20)
        A(f"s_lshl_b32 s8, s2, 2")
        A(f"s_add_u32 s8, s8, s{S_W}")
        A(f"s_lshl_b32 s8, s8, 8")
        A(f"v_mbcnt_lo_u32_b32 v1, -1, 0")
        A(f"v_mbcnt_hi_u32_b32 v1, -1, v1")
        A(f"v_lshlrev_b32 v1, 2, v1")
        A(f"buffer_store_dword v0, v1, s[4:7], s8 offen")
    A("L1_end:")
    return "\n".join(o)


def kernel_desc(opt=None):
    return dict(name="k1_kernel", body=gen_k1(opt), vgpr=512, accum=256, grid=256, block=256, lds=K1_LDS)

if __name__ == "__main__":
    import hazard
    t = gen_k1({'verbose': 1})
    e = hazard.check(t, "k1")
    print("\n".join(e[:30])); print(len(e), "hazards;", len(t.split("\n")), "lines")
```

```python
from layout import *
from sched import *
import hazard
import struct, math

K1_LDS = 163840
SRD_X, SRD_W1, SRD_W2, SRD_O, SRD_H = 40, 44, 48, 52, 56
S_W, S_ROLE, S_ROT, S_M0, S_XO = 60, 61, 62, 63, 64
SK1, SK2, SO, S_SC, S_EPS, S_R256, S_MASK = 66, 74, 82, 86, 88, 89, 90
VL16, VWQ, VWK, VTR, VK, VH, VQW, VQ, VHW = 16, 17, 21, 25, 29, 31, 33, 35, 36
MF32 = "v_mfma_f32_16x16x32_bf16"
DPP = " row_mask:0xf bank_mask:0x%x"


def gemm_prog(role, opt):
    NW = opt.get('nw', 8); NF = 16 // NW; CW = 16 * NF; NPC = NF; CH = NPC * 1024; RS = 32 * NF
    main = role == 'q'
    NRB = opt.get('nrb', 3) if main else 4
    RPW = 16 * NRB // NW; NL = RPW // 2
    IMG = NRB * 8192
    RC = (K1_LDS - (2 if main else 1) * IMG) // NW // CH
    RC = min(RC, opt.get('rc', 8))
    WSZ = RC * CH
    HIMG = NW * WSZ; QIMG = HIMG + IMG
    assert QIMG + (IMG if main else 0) <= K1_LDS
    stx = opt.get('st', '')
    p = VHW + NL; p = (p + 3) // 4 * 4
    HP = p; p += NL * 4
    ACC1 = p; p += NF * NRB * 4
    LN0 = p
    ACC2 = p; p += NF * NRB * 4 if main else 0
    RW, RB = opt.get('rw', 6 if NW == 8 else 10), opt.get('rb', 4 if NW == 8 else 3) * NRB
    WR = p; p += RW * 4
    BR = p; p += RB * 4
    F0 = opt.get('f0', 0)
    W0 = p; p += (32 if main else 12) * F0
    AC0 = p; p += NRB * 4 * F0 * main
    assert p <= 255, p
    nst = [0]
    def stamp(kind=0):
        if not opt.get('timing') or kind != opt.get('skind', 0) or (kind and not main): return []
        nst[0] += 1
        assert nst[0] <= 8
        return [V(f"s_memtime s[{14+2*nst[0]}:{15+2*nst[0]}]", cost=0)]
    pre = []
    A = lambda t: pre.append(V(t))
    A(f"v_lshlrev_b32 v{VL16}, 4, v2")
    A(f"s_mul_i32 s{S_M0}, s{S_W}, {WSZ}")
    if main:
        A(f"s_mul_i32 s6, s4, {NRB*8192}")
        A(f"s_mul_i32 s7, s{S_W}, {RPW*512}")
        A(f"s_add_u32 s{S_XO}, s6, s7")
        A(f"s_add_u32 s{S_XO+1}, s{S_XO}, 4096")
    else:
        A("s_and_b32 s6, s4, 3")
        A(f"s_lshl_b32 s6, s6, 6")
        A(f"s_mul_i32 s7, s{S_W}, {RPW}")
        A("s_add_u32 s6, s6, s7")
        A("v_lshrrev_b32 v5, 5, v2")
        A("v_and_b32 v6, 31, v2")
        A("v_lshlrev_b32 v6, 4, v6")
        if F0: A(f"v_mov_b32 v{W0}, v6")
        A("s_cmp_ge_u32 s4, 4")
        A("s_cselect_b64 vcc, -1, 0")
        for j in range(NL):
            A(f"v_add3_u32 v7, v5, s6, {2*j}")
            A("v_and_b32 v8, 0x80, v7")
            A("v_bfe_u32 v9, v7, 2, 1"); A("v_lshl_or_b32 v8, v9, 6, v8")
            A("v_bfe_u32 v9, v7, 4, 1"); A("v_lshl_or_b32 v8, v9, 5, v8")
            A("v_and_b32 v9, 3, v7"); A("v_lshl_or_b32 v8, v9, 3, v8")
            A("v_bfe_u32 v9, v7, 5, 2"); A("v_lshl_or_b32 v8, v9, 1, v8")
            A("v_bfe_u32 v9, v7, 3, 1"); A("v_or_b32 v8, v9, v8")
            A("v_cndmask_b32 v8, v8, v7, vcc")
            A(f"v_lshl_add_u32 v{HP+4*j}, v8, 9, v6")
    A(f"s_lshl_b32 s7, s{S_W}, {(CW*2).bit_length()-1}")
    if NW == 4:
        A("v_lshrrev_b32 v5, 3, v2")
        A("v_and_b32 v6, 7, v2")
        A("v_and_b32 v7, 2, v5")
        A("v_xor_b32 v6, v6, v7")
        A("v_lshl_add_u32 v5, v5, 9, s7")
        A(f"v_lshl_add_u32 v{VWQ}, v6, 4, v5")
        A("v_xor_b32 v6, 4, v6")
        A(f"v_lshl_add_u32 v{VWQ+1}, v6, 4, v5")
        A(f"v_add_u32 v{VWQ+1}, 0xc00, v{VWQ+1}")
        A(f"v_add_u32 v{VWQ+2}, 0x1800, v{VWQ}")
        A(f"v_add_u32 v{VWQ+3}, 0x1800, v{VWQ+1}")
    else:
        A("v_lshrrev_b32 v5, 2, v2")
        A("v_and_b32 v6, 3, v2")
        A("v_lshrrev_b32 v7, 5, v2")
        A("v_lshlrev_b32 v7, 1, v7")
        A("v_xor_b32 v6, v6, v7")
        A("v_lshl_add_u32 v5, v5, 9, s7")
        A(f"v_lshl_add_u32 v{VWQ}, v6, 4, v5")
        A(f"v_add_u32 v{VWQ+1}, 0x1c00, v{VWQ}")
    for t in range(8):
        A(f"s_xor_b32 s6, s{S_ROT}, {t}")
        A(f"s_lshl_b32 s{SK1+t}, s6, 14")
    A("s_waitcnt lgkmcnt(0)")
    o = []
    if main:
        srd_from(o, SRD_X, 16, 0, N * 512); srd_from(o, SRD_W1, 26, 0, 131072)
    else:
        o += ["s_cmp_ge_u32 s4, 4", "s_cselect_b32 s6, s30, s24", "s_cselect_b32 s7, s31, s25"]
        srd_from(o, SRD_X, 6, 0, 131072); srd_from(o, SRD_W1, 32, 0, 131072)
    for t in o: A(t)
    xso = lambda j: f"s{S_XO + j // 4} offen offset:{(j % 4) * 1024}"
    for j in range(NL):
        if main: pre.append(VM(f"buffer_load_dwordx4 {vr(HP+4*j)}, v{VL16}, {sr(SRD_X)}, {xso(j)}", tag=('x', j)))
        else: pre.append(VM(f"buffer_load_dwordx4 {vr(HP+4*j)}, v{HP+4*j}, {sr(SRD_X)}, 0 offen", tag=('x', j)))
    if F0 and not main: pre.append(VM(f"buffer_load_dwordx4 {vr(W0)}, v{W0}, {sr(SRD_X)}, 0 offen", tag='w0'))
    NCH = 16 if main else 8
    def dma(c, needs=()):
        srd, vw, so = (SRD_W1, VWQ, SK1 + c) if c < 8 else (SRD_W2, VWK, SK2 + c - 8)
        q = [V(f"s_add_u32 m0, s{S_M0}, 0x{(c % RC) * CH:x}", needs=needs), V("s_nop 0", cost=0)]
        for k in range(NPC):
            q.append(VM(f"buffer_load_dwordx4 v{vw+k}, {sr(srd)}, s{so} offen offset:{k*1024} lds", tag=('c', c) if k == NPC - 1 else None))
        return q
    NPRE = min(opt.get('npre', RC), RC)
    TCH = opt.get('touch', 0)
    if TCH and main:
        o = []; srd_from(o, SRD_W2, 28, 0, 131072)
        for t in o: A(t)
        A(f"s_sub_u32 s6, s5, {(opt.get('new', 32) + 8) // 8 * NW + 16}")
        A("s_lshl_b32 s7, s6, 13")
        A("s_cmp_lt_u32 s6, 16")
        A("s_cselect_b32 s7, s7, 0x7fff0000")
        pre.append(VM(f"buffer_load_dword v255, v10, {sr(SRD_W2)}, s7 offen"))
        if TCH > 1:
            A(f"s_sub_u32 s6, s6, 16")
            A("s_lshl_b32 s7, s6, 13")
            A("s_cmp_lt_u32 s6, 16")
            A("s_cselect_b32 s7, s7, 0x7fff0000")
            pre.append(VM(f"buffer_load_dword v255, v10, {sr(SRD_W1)}, s7 offen"))
    for c in range(NPRE): pre += dma(c)
    A("v_bfe_u32 v5, v2, 2, 3")
    A(f"v_xor_b32 v5, s{S_ROT}, v5")
    A("v_and_b32 v6, 3, v2")
    A("v_lshlrev_b32 v7, 10, v5")
    A("v_lshl_add_u32 v7, v6, 8, v7")
    A(f"v_add_u32 v7, 0x{HIMG:x}, v7")
    A("v_and_b32 v5, 1, v5")
    A("v_lshl_or_b32 v6, v5, 2, v6")
    A("v_lshrrev_b32 v5, 5, v2")
    A(f"s_mul_i32 s6, s{S_W}, {RPW}")
    for j in range(NL):
        A(f"v_add3_u32 v8, v5, s6, {2*j}")
        A("v_lshrrev_b32 v9, 4, v8")
        A("v_lshl_add_u32 v9, v9, 13, v7")
        A("v_and_b32 v8, 15, v8")
        A("v_xor_b32 v8, v8, v6")
        A(f"v_lshl_add_u32 v{VHW+j}, v8, 4, v9")
    A("v_xor_b32 v5, v3, v4")
    A("v_lshlrev_b32 v5, 4, v5")
    A("v_lshl_add_u32 v5, v4, 8, v5")
    A(f"v_add_u32 v{VH}, 0x{HIMG:x}, v5")
    A(f"v_xor_b32 v{VH+1}, 64, v{VH}")
    A("v_lshrrev_b32 v5, 2, v3")
    A("v_and_b32 v6, 3, v3")
    A("v_and_b32 v7, 1, v4")
    if NW == 4:
        A("v_lshlrev_b32 v7, 2, v7"); A("v_and_b32 v8, 2, v5"); A("v_or_b32 v7, v7, v8")
    else:
        A("v_lshlrev_b32 v7, 1, v7")
    A("v_lshl_add_u32 v8, v4, 3, v5")
    A(f"v_lshlrev_b32 v8, {RS.bit_length()-1}, v8")
    A(f"v_add_u32 v8, s{S_M0}, v8")
    if main:
        A("v_and_b32 v9, 1, v6"); A("v_lshl_add_u32 v8, v9, 3, v8")
        A("v_lshrrev_b32 v6, 1, v6")
    A("v_xor_b32 v6, v6, v7")
    for f in range(NF):
        if main:
            A(f"v_xor_b32 v9, {2*f}, v6"); A(f"v_lshl_add_u32 v{VTR+f}, v9, 4, v8")
        elif f % 2 == 0:
            A(f"v_xor_b32 v9, {2*f}, v6"); A(f"v_lshl_add_u32 v{VTR+f}, v9, 4, v8")
        else:
            A(f"v_add_u32 v{VTR+f}, 8, v{VTR+f-1}")
    o = []
    if main:
        A("v_lshrrev_b32 v5, 3, v2")
        A("v_and_b32 v6, 7, v2")
        A("v_lshrrev_b32 v7, 1, v5")
        A("v_xor_b32 v6, v6, v7")
        A("v_and_b32 v7, 4, v5")
        A("v_add_u32 v5, v5, v7")
        A(f"s_mul_i32 s6, s{S_W}, {CW*512}")
        A("v_lshl_add_u32 v5, v5, 9, s6")
        A(f"v_lshl_add_u32 v{VWK}, v6, 4, v5")
        A("v_xor_b32 v6, 4, v6")
        A(f"v_lshl_add_u32 v{VWK+1}, v6, 4, v5")
        A(f"v_add_u32 v{VWK+1}, 0x{16*512-1024:x}, v{VWK+1}")
        if NW == 4:
            A(f"v_mov_b32 v{VWK+2}, v{VWK}")
            A(f"v_mov_b32 v{VWK+3}, v{VWK+1}")
        A(f"s_lshr_b32 s7, s{S_ROT}, 1")
        for tp in range(4):
            A(f"s_xor_b32 s6, s7, {tp}")
            A(f"s_lshl_b32 s{SK2+2*tp}, s6, 7")
            A(f"s_add_u32 s{SK2+2*tp+1}, s{SK2+2*tp}, {(4 if NW == 8 else 32)*512}")
        A(f"s_and_b32 s6, s{S_ROT}, 1"); A("s_lshl_b32 s6, s6, 2")
        A("v_lshrrev_b32 v5, 1, v3")
        A("v_xor_b32 v5, v5, v4")
        A("v_xor_b32 v5, s6, v5")
        A(f"v_lshl_add_u32 v6, v3, 7, s{S_M0}")
        A(f"v_lshl_add_u32 v{VK}, v5, 4, v6")
        A(f"v_xor_b32 v{VK+1}, 64, v{VK}")
        A(f"s_mul_i32 s6, s{S_W}, {NF//2}")
        A(f"s_xor_b32 s6, s6, s{S_ROT}")
        A("s_lshl_b32 s6, s6, 10")
        A(f"s_add_u32 s6, s6, 0x{QIMG:x}")
        A("v_lshrrev_b32 v5, 1, v4"); A("v_and_b32 v6, 1, v4")
        A("v_lshl_add_u32 v5, v5, 8, s6")
        A("v_lshl_add_u32 v5, v6, 3, v5")
        A(f"v_lshl_add_u32 v{VQW}, v3, 4, v5")
        A(f"v_xor_b32 v{VQW+1}, 0x400, v{VQW}")
        A(f"v_add_u32 v{VQ}, 0x{QIMG:x}, v{VL16}")
        srd_from(o, SRD_W2, 26 if opt.get('w2same') else 28, 0, 131072)
        srd_from(o, SRD_O, 38, QF_OFF, QF_BYTES)
        srd_from(o, SRD_H, 38, H_OFF, NB16 * 8192)
        A(f"s_mul_i32 s6, s4, {NRB*8192}")
        A(f"s_mul_i32 s7, s{S_W}, {NF//2*1024}")
        A(f"s_add_u32 s{SO}, s6, s7")
        for b in range(1, NRB): A(f"s_add_u32 s{SO+b}, s{SO}, {b*8192}")
        qs = struct.unpack('<I', struct.pack('<f', math.log2(math.e) / 16))[0]
        A(f"s_mov_b32 s{S_SC}, 0x{qs:x}"); A(f"s_mov_b32 s{S_SC+1}, 0x{qs:x}")
        A(f"s_mov_b32 s{S_EPS}, 0x3727c5ac"); A(f"s_mov_b32 s{S_R256}, 0x3b800000"); A(f"s_mov_b32 s{S_MASK}, 0xffff0000")
    else:
        srd_from(o, SRD_O, 38, WF_OFF, 262144)
        A("s_lshr_b32 s6, s4, 2"); A("s_lshl_b32 s6, s6, 17")
        A("s_and_b32 s7, s4, 3"); A("s_lshl_b32 s7, s7, 12")
        A("s_add_u32 s6, s6, s7")
        A(f"s_mul_i32 s7, s{S_W}, {NF//2*16384}")
        A(f"s_add_u32 s{SO}, s6, s7")
        A(f"s_add_u32 s{SO+1}, s{SO}, 16384")
    for t in o: A(t)
    if F0 and main:
        A("v_lshlrev_b32 v5, 4, v4")
        for t in range(8):
            A(f"s_lshr_b32 s6, s{SK1+t}, 8")
            pre.append(VM(f"buffer_load_dwordx4 {vr(W0+4*t)}, v5, {sr(SRD_W2)}, s6 offen", tag=('w0', t)))
    pre += stamp()
    rest = [x for c in range(NPRE, min(RC, NCH)) for x in [dma(c)]]
    def more(force=False):
        if rest and (force or not opt.get('late')): pre.extend(rest.pop(0))
    if main:
        U = lambda j: LN0 + 8 * j
        SQ = LN0 + 8 * NL
        for j in range(NL):
            x, u, s = HP + 4 * j, U(j), SQ + 4 * j
            pre.append(W(('x', j)))
            if j == 0: pre += stamp()
            for k in range(4):
                A(f"v_lshlrev_b32 v{u+2*k}, 16, v{x+k}")
                A(f"v_and_b32 v{u+2*k+1}, s{S_MASK}, v{x+k}")
            if opt.get('nopk', 0) >= 3:
                A(f"v_add_f32 v{s}, v{u}, v{u+1}"); A(f"v_mul_f32 v{s+2}, v{u}, v{u}")
                A(f"v_add_f32 v{s+1}, v{u+2}, v{u+3}"); A(f"v_mul_f32 v{s+3}, v{u+1}, v{u+1}")
                for k in range(2, 8):
                    if k >= 4: A(f"v_add_f32 v{s+(k&1)}, v{s+(k&1)}, v{u+k}")
                    A(f"v_fmac_f32 v{s+2+(k&1)}, v{u+k}, v{u+k}")
                A(f"v_add_f32 v{s}, v{s}, v{s+1}"); A(f"v_add_f32 v{s+2}, v{s+2}, v{s+3}")
            else:
                A(f"v_pk_add_f32 {vr(s,2)}, {vr(u,2)}, {vr(u+2,2)}")
                A(f"v_pk_mul_f32 {vr(s+2,2)}, {vr(u,2)}, {vr(u,2)}")
                A(f"v_pk_add_f32 {vr(x,2)}, {vr(u+4,2)}, {vr(u+6,2)}")
                A(f"v_pk_fma_f32 {vr(s+2,2)}, {vr(u+2,2)}, {vr(u+2,2)}, {vr(s+2,2)}")
                A(f"v_pk_add_f32 {vr(s,2)}, {vr(s,2)}, {vr(x,2)}")
                A(f"v_pk_fma_f32 {vr(s+2,2)}, {vr(u+4,2)}, {vr(u+4,2)}, {vr(s+2,2)}")
                A(f"v_add_f32 v{s}, v{s}, v{s+1}")
                A(f"v_pk_fma_f32 {vr(s+2,2)}, {vr(u+6,2)}, {vr(u+6,2)}, {vr(s+2,2)}")
                A(f"v_add_f32 v{s+2}, v{s+2}, v{s+3}")
            more()
        for j in range(NL): A(f"v_permlane16_swap_b32 v{SQ+4*j}, v{SQ+4*j+2}")
        for j in range(NL): A(f"v_add_f32 v{SQ+4*j}, v{SQ+4*j}, v{SQ+4*j+2}")
        def merge(regs, mode, m0, m1, off):
            out = []
            for a in range(0, len(regs), 2):
                (ra, la) = regs[a]
                d = ra + off
                if a + 1 < len(regs):
                    rb_, lb = regs[a + 1]
                    A(f"v_add_f32_dpp v{d}, v{ra}, v{ra} {mode}" + DPP % m0)
                    A(f"v_add_f32_dpp v{d}, v{rb_}, v{rb_} {mode}" + DPP % m1)
                    sh = 8 if m1 == 0xc else 4
                    out.append((d, {**la, **{k: v + sh for k, v in lb.items()}}))
                else:
                    A(f"v_add_f32_dpp v{d}, v{ra}, v{ra} {mode}" + DPP % 0xf)
                    out.append((d, la))
            return out
        regs = [(SQ + 4 * j, {j: 0}) for j in range(NL)]
        regs = merge(regs, "row_ror:8", 0x3, 0xc, 1)
        regs = merge(regs, "row_half_mirror", 0x5, 0xa, 1)
        for qp in ("[1,0,3,2]", "[2,3,0,1]"):
            for r, _ in regs: A(f"v_add_f32_dpp v{r}, v{r}, v{r} quad_perm:{qp}" + DPP % 0xf)
        for r, _ in regs: A(f"v_mov_b32 v{r+1}, v{r}")
        for r, _ in regs: A(f"v_permlane16_swap_b32 v{r+1}, v{r}")
        ops = lambda r: [f"v_mul_f32 v{r+1}, s{S_R256}, v{r+1}", f"v_mul_f32 v{r}, s{S_R256}, v{r}",
                         f"v_fma_f32 v{r}, -v{r+1}, v{r+1}, v{r}", f"v_cvt_pk_bf16_f32 v{r+1}, v{r+1}, v{r+1}", f"v_max_f32 v{r}, 0, v{r}",
                         f"v_cvt_pk_bf16_f32 v{r}, v{r}, v{r}", f"v_and_b32 v{r}, s{S_MASK}, v{r}", f"v_add_f32 v{r}, s{S_EPS}, v{r}",
                         f"v_cvt_pk_bf16_f32 v{r}, v{r}, v{r}", f"v_and_b32 v{r}, s{S_MASK}, v{r}", f"v_sqrt_f32 v{r}, v{r}",
                         f"v_and_b32 v{r+1}, s{S_MASK}, v{r+1}",
                         f"v_cvt_pk_bf16_f32 v{r}, v{r}, v{r}", f"v_and_b32 v{r}, s{S_MASK}, v{r}", f"v_rcp_f32 v{r}, v{r}",
                         f"v_mul_f32 v{r+1}, -v{r+1}, v{r}"]
        if F0:
            ops0 = ops
            ops = lambda r: [t for t in ops0(r) if t not in (f"v_cvt_pk_bf16_f32 v{r+1}, v{r+1}, v{r+1}", f"v_and_b32 v{r+1}, s{S_MASK}, v{r+1}")]
        for tt in zip(*[ops(r) for r, _ in regs]):
            for t in tt: A(t)
        for r, lm in regs:
            for j, ln in lm.items():
                A(f"v_mov_b64_dpp {vr(SQ+4*j,2)}, {vr(r,2)} row_newbcast:{ln} row_mask:0xf bank_mask:0xf")
        for j in range(NL):
            x, u, s = HP + 4 * j, U(j), SQ + 4 * j
            for k in range(4):
                if opt.get('nopk', 0) >= 1:
                    for z in range(2): A(f"v_fma_f32 v{u+2*k+z}, v{u+2*k+z}, v{s}, v{s+1}")
                else: A(f"v_pk_fma_f32 {vr(u+2*k,2)}, {vr(u+2*k,2)}, {vr(s,2)}, {vr(s,2)} op_sel:[0,0,1] op_sel_hi:[1,0,1]")
            for k in range(4):
                A(f"v_cvt_pk_bf16_f32 v{x+k}, v{u+2*k}, v{u+2*k+1}")
            pre.append(LD(f"ds_write_b128 v{VHW+j}, {vr(x)}", tag='hw'))
            more()
    else:
        if F0:
            A(f"s_mov_b32 s{S_MASK}, 0xffff0000")
            for k in range(4):
                pre.append(V(f"v_lshlrev_b32 v{W0+4+2*k}, 16, v{W0+k}", needs=['w0']))
                A(f"v_and_b32 v{W0+5+2*k}, s{S_MASK}, v{W0+k}")
            for j in range(NL):
                for k in range(4):
                    x = HP + 4 * j + k
                    pre.append(V(f"v_lshlrev_b32 v{W0}, 16, v{x}", needs=[('x', j)]))
                    A(f"v_and_b32 v{W0+1}, s{S_MASK}, v{x}")
                    A(f"v_sub_f32 v{W0}, v{W0}, v{W0+4+2*k}")
                    A(f"v_sub_f32 v{W0+1}, v{W0+1}, v{W0+5+2*k}")
                    A(f"v_cvt_pk_bf16_f32 v{x}, v{W0}, v{W0+1}")
        for j in range(NL):
            pre.append(LD(f"ds_write_b128 v{VHW+j}, {vr(HP+4*j)}", tag='hw', needs=[('x', j)]))
    pre += stamp()
    while rest and opt.get('late', 0) < 2: more(True)
    st = Stream(); st.pre = pre
    wf, bf = [], []
    wreg = lambda k: WR + (k % RW) * 4
    breg = lambda k: BR + (k % RB) * 4
    def use(lst, k, n):
        lst[k].setdefault('first', n); lst[k]['last'] = n
    def mf(acc, wk, bk, first):
        a, b = (wreg(wk), breg(bk)) if main else (breg(bk), wreg(wk))
        n = st.mfma(f"{MF32} {vr(acc)}, {vr(a)}, {vr(b)}, {0 if first else vr(acc)}", needs=[('w', wk), ('b', bk)])
        use(wf, wk, n); use(bf, bk, n); return n
    acc1 = lambda f, rb: ACC1 + (f * NRB + rb) * 4
    acc2 = lambda f, rb: ACC2 + (rb * NF + f) * 4
    done1, done2, done0 = {}, {}, {}
    for t in range(8):
        sl = (t % RC) * CH
        b0 = len(bf)
        for rb in range(NRB):
            bf.append(dict(reads=[f"ds_read_b128 {vr(breg(b0+rb))}, v{VH + (t & 1)} offset:{rb*8192 + t*1024}"], ph=0))
        for f in range(NF):
            k = len(wf); r = wreg(k)
            wf.append(dict(reads=[f"ds_read_b64_tr_b16 v[{r+2*hh}:{r+2*hh+1}], v{VTR+f} offset:{sl + hh*4*RS}" for hh in range(2)], chunk=t))
            for rb in range(NRB): done1[(f, rb)] = mf(acc1(f, rb), k, b0 + rb, t == 0)
    n1 = st.n()
    if main:
        for tp in range(4):
            b0 = len(bf)
            for e in range(2):
                for rb in range(NRB):
                    bf.append(dict(reads=[f"ds_read_b128 {vr(breg(b0+e*NRB+rb))}, v{VQ} offset:{rb*8192 + (2*tp+e)*1024}"], ph=1))
            for bh in range(2):
                c = 8 + 2 * tp + bh; sl = (c % RC) * CH
                for bl in range(NF // 2):
                    b = bh * (NF // 2) + bl
                    for e in range(2):
                        k = len(wf)
                        wf.append(dict(reads=[f"ds_read_b128 {vr(wreg(k))}, v{VK+e} offset:{sl + bl*2048}"], chunk=c))
                        for rb in range(NRB): done2[(b, rb)] = mf(acc2(b, rb), k, b0 + e * NRB + rb, tp == 0 and e == 0)
                        if F0 and b == 0:
                            for rb in range(NRB):
                                bk = b0 + e * NRB + rb
                                n = st.mfma(f"{MF32} {vr(AC0+4*rb)}, {vr(W0+4*(2*tp+e))}, {vr(breg(bk))}, {0 if tp == 0 and e == 0 else vr(AC0+4*rb)}", needs=[('b', bk), ('w0', 2*tp+e)])
                                use(bf, bk, n); done0[rb] = n
    nm = st.n()
    LAG = opt.get('lag', 3); LA = opt.get('la', 2 * NRB)
    def place_w(lo, hi, g):
        for k in range(lo, hi):
            d = wf[k]
            g = max(g, d['first'] - LA - 1, wf[k - RW]['last'] if k >= RW else -1)
            for i, r in enumerate(d['reads']):
                st.put(g, LD(r, tag=('w', k) if i == len(d['reads']) - 1 else None, needs=[('c', d['chunk'])]))
            d['g'] = g
            if k % (2 * NF) == 0:
                for s in stamp(1): st.put(g, s)
        return g
    def place_b(lo, hi, g):
        for k in range(lo, hi):
            d = bf[k]
            g = max(g, d['first'] - LA - 1, bf[k - RB]['last'] if k >= RB else -1)
            st.put(g, LD(d['reads'][0], tag=('b', k)))
        return g
    nw1, nb1 = 8 * NF, 8 * NRB
    npw = min(opt.get('npw', NF), RW)
    place_w(0, npw, -1)
    st.put(-1, W('hw')); st.put(-1, V("s_barrier"))
    for s in stamp(): st.put(-1, s)
    place_b(0, nb1, -1)
    gg = -1
    while rest:
        for x in rest.pop(0): st.put(gg, x)
        gg += opt.get('lpace', 2)
    g = place_w(npw, nw1, -1)
    if main:
        items = sorted(done1.items(), key=lambda kv: kv[1])
        for (f, rb), n in items:
            a = acc1(f, rb)
            q = [V(f"v_cvt_pk_bf16_f32 v{a}, v{a}, v{a+1}"), V(f"v_cvt_pk_bf16_f32 v{a+1}, v{a+2}, v{a+3}"),
                 LD(f"ds_write_b64 v{VQW + (f >> 1)}, v[{a}:{a+1}] offset:{rb*8192 + (f & 1)*512}", tag='qw')]
            for x in q: st.put(min(n + LAG, n1 - 1), x)
        k = nw1
        while k < len(wf) and k < nw1 + opt.get('npw2', NF) and wf[k - RW]['last'] <= n1 - 1: k += 1
        place_w(nw1, k, max(g, n1 - 1))
        for s in stamp(): st.put(n1 - 1, s)
        st.put(n1 - 1, W('qw')); st.put(n1 - 1, V("s_barrier"))
        for s in stamp(): st.put(n1 - 1, s)
        place_b(nb1, len(bf), n1 - 1)
        place_w(k, len(wf), n1 - 1)
    lastw = {}
    for k, d in enumerate(wf): lastw[d['chunk']] = k
    gl = 0
    for c in range(RC, NCH):
        k = lastw[c - RC]
        gl = wf[k]['first']
        firstk = min(kk for kk, d in enumerate(wf) if d['chunk'] == c)
        assert gl < wf[firstk]['g'], (c, gl, wf[firstk]['g'])
        for x in dma(c, [('w', k)]): st.put(gl, x)
    if main:
        hs = [VM(f"buffer_store_dwordx4 {vr(HP+4*j)}, v{VL16}, {sr(SRD_H)}, {xso(j)}{stx}") for j in range(NL)]
        if F0:
            hp = [V("v_and_b32 v5, 31, v2"), V("v_lshrrev_b32 v6, 5, v2"), V(f"s_lshr_b32 s6, s{S_XO}, 9"), V("v_cmp_eq_u32 vcc, 0, v5"),
                  V(f"s_sub_u32 s6, {N}, s6"), V("v_mov_b32 v7, 0x7fffffff"), V("v_cndmask_b32 v6, v7, v6, vcc")]
            for j in range(NL):
                x = HP + 4 * j
                hp += [V(f"v_cmp_gt_i32 vcc, s6, v6"), V(f"v_and_b32 v5, s{S_MASK}, v{x}"), V("v_or_b32 v5, 0x3f80, v5"), V(f"s_sub_u32 s6, s6, 2"),
                       V(f"v_cndmask_b32 v{x}, v{x}, v5, vcc")]
            st.fill(hp, 2)
        st.fill(hs, gl + 1)
        if F0:
            for rb in range(NRB): st.put(min(done0[rb] + LAG, nm - 1), V(f"v_mul_f32 v{AC0+4*rb}, -v{AC0+4*rb}, s{S_SC}"))
        items = sorted(((max(done2[(2 * u, rb)], done2[(2 * u + 1, rb)]), u, rb) for u in range(NF // 2) for rb in range(NRB)))
        for n, u, rb in items:
            a = acc2(2 * u, rb)
            if F0:
                q = [V(f"v_fma_f32 v{a+r}, v{a+r}, s{S_SC}, v{AC0+4*rb}") for r in range(8)]
            elif n + LAG < nm - 1 or opt.get('nopk', 0) >= 2:
                q = [V(f"v_mul_f32 v{a+r}, s{S_SC}, v{a+r}") for r in range(8)]
            else:
                q = [V(f"v_pk_mul_f32 {vr(a+2*r,2)}, {vr(a+2*r,2)}, {sr(S_SC,2)}") for r in range(4)]
            q += [V(f"v_cvt_pk_bf16_f32 v{a+r}, v{a+2*r}, v{a+2*r+1}") for r in range(4)]
            q.append(VM(f"buffer_store_dwordx4 {vr(a)}, v{VL16}, {sr(SRD_O)}, s{SO+rb} offen offset:{u*1024}{opt.get('stq', stx)}"))
            for x in q: st.put(min(n + LAG, nm - 1), x)
    else:
        items = sorted((max(done1[(f, 2 * tl)], done1[(f, 2 * tl + 1)]), f, tl) for f in range(NF) for tl in range(2))
        for n, f, tl in items:
            a = acc1(f, 2 * tl)
            q = [V(f"v_cvt_pk_bf16_f32 v{a+r}, v{a+2*r}, v{a+2*r+1}") for r in range(4)]
            q.append(VM(f"buffer_store_dwordx4 {vr(a)}, v{VL16}, {sr(SRD_O)}, s{SO + (f >> 1)} offen offset:{tl*2048 + (f & 1)*1024}{opt.get('stw', stx)}"))
            for x in q: st.put(min(n + LAG, nm - 1), x)
    for s in stamp(): st.put(nm - 1, s)
    em = Emitter()
    o = hazard.fix(em.emit(st.seq()))
    if opt.get('verbose'): print(role, st.stats(), "regs", p, "RC", RC, "lines", len(o))
    return o


def edge_prog(opt):
    NW = opt.get('nw', 8); NEW = opt.get('new', 32); ECAP = 163840 // NEW; CAPB = 4096 // NEW
    NTH = 64 * NW
    NQ = E // NEW // 4
    NR = (NQ + NTH - 1) // NTH; LASTN = NQ - (NR - 1) * NTH
    o = []; A = o.append
    L_CNT = 65536
    D0, S0, B0, C0 = 16, 16 + 4 * NR, 16 + 8 * NR, 16 + 12 * NR
    SRD_D, SRD_S, SRD_E, SRD_C = 40, 44, 48, 52
    A(f"s_mul_i32 s6, s4, {NQ * 16}")
    A("v_lshlrev_b32 v5, 4, v0")
    A("v_lshlrev_b32 v6, 2, v2")
    A(f"v_add_u32 v6, 0x{L_CNT:x}, v6")
    A("v_mov_b32 v7, 0")
    A("ds_write_b32 v6, v7")
    for i in range(NR): A(f"s_mov_b32 s{66+i}, {i * NTH * 16}")
    A("s_waitcnt lgkmcnt(0)")
    srd_from(o, SRD_D, 20, 0, NQ * 16, 6)
    srd_from(o, SRD_S, 18, 0, NQ * 16, 6)
    for i in range(NR): A(f"buffer_load_dwordx4 {vr(D0+4*i)}, v5, {sr(SRD_D)}, s{66+i} offen")
    for i in range(NR): A(f"buffer_load_dwordx4 {vr(S0+4*i)}, v5, {sr(SRD_S)}, s{66+i} offen")
    srd_from(o, SRD_E, 38, EDGE_OFF, EDGE_BYTES)
    srd_from(o, SRD_C, 38, ECNT_OFF, NBK * NEW * 4)
    A(f"s_mov_b32 s9, {BMAGIC}")
    A(f"s_mov_b32 s10, {-BN & 0xffffffff}")
    A(f"s_mov_b32 s11, 0x{L_CNT:x}")
    A("v_mov_b32 v7, 1")
    A(f"v_cmp_gt_u32 vcc, 0x{LASTN:x}, v0")
    A("s_mov_b64 s[12:13], vcc")
    A("s_barrier")
    for i in range(NR):
        A(f"s_waitcnt vmcnt({2*NR-1-i})")
        if i == NR - 1: A("s_mov_b64 exec, s[12:13]")
        for k in range(4):
            d, b, c = D0 + 4 * i + k, B0 + 4 * i + k, C0 + 4 * i + k
            A(f"v_mul_u32_u24 v{b}, s9, v{d}")
            A(f"v_lshrrev_b32 v{b}, {BSHIFT}, v{b}")
            A(f"v_lshl_add_u32 v{c}, v{b}, 2, s11")
            A(f"ds_add_rtn_u32 v{c}, v{c}, v7")
            A(f"v_mad_i32_i24 v{d}, v{b}, s10, v{d}")
    A("s_mov_b64 exec, -1")
    for i in range(NR):
        A(f"s_waitcnt vmcnt({NR-1-i}) lgkmcnt({min(15, 4*(NR-1 if i == NR-1 else NR-2))})")
        if i == NR - 1: A("s_mov_b64 exec, s[12:13]")
        for k in range(4):
            d, s, b, c = D0 + 4 * i + k, S0 + 4 * i + k, B0 + 4 * i + k, C0 + 4 * i + k
            A(f"v_and_b32 v8, 0x{CAPB-1:x}, v{c}")
            A(f"v_lshl_or_b32 v{s}, v{d}, 18, v{s}")
            A(f"v_lshlrev_b32 v8, 2, v8")
            A(f"v_lshl_add_u32 v8, v{b}, {(CAPB*4).bit_length()-1}, v8")
            A(f"ds_write_b32 v8, v{s}")
    A("s_mov_b64 exec, -1")
    A("s_waitcnt lgkmcnt(0)")
    A("s_barrier")
    NC = 64 * CAPB * 4 // (NTH * 16)
    BPI = 1024 // (CAPB * 4)
    R0 = C0 + 4 * NR
    A("ds_read_b32 v8, v6")
    A(f"s_mul_i32 s6, s{S_W}, {NC*1024}")
    A("v_lshlrev_b32 v10, 4, v2")
    A("v_add_u32 v9, s6, v10")
    for k in range(NC): A(f"ds_read_b128 {vr(R0+4*k)}, v9 offset:{k*1024}")
    if BPI > 1:
        assert BPI == 2
        A("v_lshrrev_b32 v11, 5, v2")
        A(f"v_mul_u32_u24 v11, 0x{NEW*ECAP*4 - 512:x}, v11")
        A("v_add_u32 v10, v10, v11")
    A(f"s_mul_i32 s6, s{S_W}, {NC*BPI*NEW*ECAP*4}")
    A(f"s_mul_i32 s7, s4, {ECAP*4}")
    A("s_add_u32 s6, s6, s7")
    A(f"v_lshlrev_b32 v9, {(NEW*4).bit_length()-1}, v2")
    A("s_lshl_b32 s8, s4, 2")
    A(f"s_cmp_eq_u32 s{S_W}, 0")
    A("s_cselect_b32 s8, s8, 0x7fff0000")
    A(f"s_waitcnt lgkmcnt({NC})")
    A(f"buffer_store_dword v8, v9, {sr(SRD_C)}, s8 offen{opt.get('ste', '')}")
    A(f"v_cmp_lt_u32 vcc, 0x{CAPB:x}, v8")
    A("s_cbranch_vccnz L1_eslow")
    for k in range(NC):
        A(f"s_waitcnt lgkmcnt({NC-1-k})")
        A(f"buffer_store_dwordx4 {vr(R0+4*k)}, v10, {sr(SRD_E)}, s6 offen{opt.get('ste', '')}")
        A(f"s_add_u32 s6, s6, {BPI*NEW*ECAP*4}")
    A("s_branch L1_fin")
    A("L1_eslow:")
    A(f"s_mov_b32 s9, {NEW*ECAP*4}")
    for i in range(NR):
        for k in range(4):
            b, c = B0 + 4 * i + k, C0 + 4 * i + k
            A(f"v_mul_u32_u24 v{b}, s9, v{b}")
            A(f"v_lshl_add_u32 v{b}, v{c}, 2, v{b}")
    for i in range(NR):
        if i == NR - 1: A("s_mov_b64 exec, s[12:13]")
        for k in range(4):
            A(f"buffer_store_dword v{S0 + 4 * i + k}, v{B0 + 4 * i + k}, {sr(SRD_E)}, s7 offen")
    A("s_mov_b64 exec, -1")
    return hazard.fix(o)


def gen_k1(opt=None):
    opt = opt or {}
    NW = opt.get('nw', 8); NRB = opt.get('nrb', 3); NEW = opt.get('new', 32)
    NMAIN = (NB16 + NRB - 1) // NRB
    o = []
    A = o.append
    A("s_getpc_b64 s[56:57]")
    A("s_load_dwordx16 s[16:31], s[0:1], 0")
    A("s_load_dwordx8 s[32:39], s[0:1], 64")
    if opt.get('timing'):
        A("s_memtime s[100:101]")
    A(f"s_cmp_ge_u32 s2, {opt.get('nact', NMAIN) + NEW + 8}")
    A("s_cbranch_scc1 L1_end")
    A("v_lshrrev_b32 v1, 6, v0")
    A("v_and_b32 v2, 63, v0")
    A("s_lshr_b32 s3, s2, 3")
    A(f"v_readfirstlane_b32 s{S_W}, v1")
    A(f"s_mul_i32 s5, s3, {NW}")
    A(f"s_add_u32 s5, s5, s{S_W}")
    if opt.get('cpf', 1):
        A("s_and_b32 s56, s56, 0xffffff00")
        A(f"s_mov_b32 s58, {opt.get('code_end', 'L1_end')}-k1_kernel")
        A("s_mov_b32 s59, 0x00020000")
        A("s_and_b32 s6, s5, 15")
        A("s_lshl_b32 s6, s6, 13")
        A("v_lshlrev_b32 v10, 7, v2")
        A("buffer_load_dword v255, v10, s[56:59], s6 offen")
    A("v_and_b32 v3, 15, v2")
    A("v_lshrrev_b32 v4, 4, v2")
    A(f"s_and_b32 s{S_ROT}, s3, {opt.get('rotm', 7)}")
    A(f"s_sub_u32 s4, s2, {NEW + 8}")
    A(f"s_cmp_lt_u32 s2, {NEW + 8}")
    A("s_cbranch_scc1 L1_notq")
    A(f"s_mov_b32 s{S_ROLE}, 0")
    o += gemm_prog('q', opt)
    A("s_branch L1_fin")
    A("L1_notq:")
    A(f"s_sub_u32 s4, s2, {NEW}")
    A(f"s_cmp_lt_u32 s2, {NEW}")
    A("s_cbranch_scc1 L1_edge")
    A(f"s_mov_b32 s{S_ROLE}, 1")
    o += gemm_prog('w', opt)
    A("s_branch L1_fin")
    A("L1_edge:")
    A(f"s_mov_b32 s{S_ROLE}, 4")
    A("s_mov_b32 s4, s2")
    o += edge_prog(opt)
    A("L1_fin:")
    if opt.get('timing'):
        A("s_memtime s[4:5]")
        A("s_waitcnt vmcnt(0)")
        A("s_memtime s[6:7]")
        A("s_waitcnt lgkmcnt(0)")
        for k in range(8):
            A(f"v_writelane_b32 v0, s{16+2*k}, {k}")
        A("v_writelane_b32 v0, s4, 8")
        A("v_writelane_b32 v0, s6, 9")
        A(f"v_subrev_u32 v0, s100, v0")
        A(f"v_writelane_b32 v0, s{S_ROLE}, 63")
        srd_from(o, 4, 34, 0, 1 << 20)
        A(f"s_mul_i32 s8, s2, {NW}")
        A(f"s_add_u32 s8, s8, s{S_W}")
        A(f"s_lshl_b32 s8, s8, 8")
        A(f"v_mbcnt_lo_u32_b32 v1, -1, 0")
        A(f"v_mbcnt_hi_u32_b32 v1, -1, v1")
        A(f"v_lshlrev_b32 v1, 2, v1")
        A(f"buffer_store_dword v0, v1, s[4:7], s8 offen")
    A("L1_end:")
    return "\n".join(o)


def kernel_desc(opt=None):
    opt = opt or {}
    NW = opt.get('nw', 8); NRB = opt.get('nrb', 3); NEW = opt.get('new', 32)
    return dict(name="k1_kernel", body=gen_k1(opt), vgpr=256, accum=256, grid=(NB16 + NRB - 1) // NRB + NEW + 8, block=64 * NW, lds=K1_LDS)

if __name__ == "__main__":
    import sys, json
    t = gen_k1(dict(json.loads(sys.argv[1]) if len(sys.argv) > 1 else {}, verbose=1))
    e = hazard.check(t, "k1")
    print("\n".join(e[:30])); print(len(e), "hazards;", len(t.split("\n")), "lines")
    open('k1n.s', 'w').write(t)
```

```python
from layout import *

def Q(qb, ds): return (qb * 8 + ds) * 4
S_BASE = [128, 144]
def S(h, qb): return S_BASE[h] + qb * 4
P_BASE = [160, 176]
def P(p, qb): return P_BASE[p] + qb * 4
def NEGM(qb): return 192 + qb * 4
RING = 4
def F(i): return 208 + (i % RING) * 4
LA = [224 + i for i in range(4)]
LB = [228 + i for i in range(4)]
ET = [232 + i for i in range(8)]
VADDR = 240
VDMA = 241
VT0, VT1 = 242, 243
M = [244 + i for i in range(4)]
VLANE16 = 248
def O(fb, qb): return (fb * 4 + qb) * 4

SRD_Q, SRD_K, SRD_V, SRD_OP, SRD_ML = 8, 12, 16, 20, 24
S_OFF, S_M0, S_CNT, S_THR, S_MASK, S_WAVE, S_SITE = 28, 30, 31, 32, 33, 34, 36


def vr(b, n=4): return f"v[{b}:{b+n-1}]"
def ar(b, n=4): return f"a[{b}:{b+n-1}]"


class Seg:
    def __init__(self):
        self.mf = []
        self.gap = []
        self.pre = []

    def add_mfma(self, t):
        self.mf.append(t)
        self.gap.append([])

    def used(self, g):
        return sum(c for c, _ in self.gap[g])

    def put(self, g, text, cost=1):
        if g < 0:
            self.pre.append((cost, text))
        else:
            self.gap[g].append((cost, text))

    def fill(self, queue, g0, g1, cap=2):
        g = g0
        for cost, text in queue:
            while g < g1 and self.used(g) + cost > cap:
                g += 1
            self.gap[g].append((cost, text))
        return g

    def text(self):
        o = [t for _, t in self.pre]
        for m, gp in zip(self.mf, self.gap):
            o.append(m)
            o += [t for _, t in gp]
        return o


def qk_block(h, off, cinit):
    fr = []
    for ds in range(8):
        ms = []
        for qb in range(4):
            c = cinit(qb) if ds == 0 else vr(S(h, qb))
            ms.append(lambda f, qb=qb, ds=ds, c=c: f"v_mfma_f32_16x16x32_bf16 {vr(S(h,qb))}, {vr(f)}, {vr(Q(qb,ds))}, {c}")
        fr.append((off + ds * 1024, ms))
    return fr


def pv_block(p, off, fb0):
    fr = []
    for fb in range(fb0, fb0 + 8):
        ms = []
        for qb in range(4):
            ms.append(lambda f, qb=qb, fb=fb: f"v_mfma_f32_16x16x32_bf16 {ar(O(fb,qb))}, {vr(f)}, {vr(P(p,qb))}, {ar(O(fb,qb))}")
        fr.append((off + fb * 1024, ms))
    return fr


def build_seg(frags, next_offs, hook=None):
    sg = Seg()
    n = len(frags)
    assert n % RING == 0
    offs = [o for o, _ in frags] + list(next_offs)
    for i, (off, ms) in enumerate(frags):
        for m in ms:
            sg.add_mfma(m(F(i)))
    issued = RING
    sg.put(-1, f"s_waitcnt lgkmcnt({min(issued, len(offs)) - 1 - 0})")
    for i in range(n):
        g = 4 * i + 3
        nxt = i + RING
        if nxt < len(offs):
            if nxt == n and hook:
                for c, t in hook:
                    sg.put(g, t, c)
            sg.put(g, f"ds_read_b128 {vr(F(nxt))}, v{VADDR} offset:{offs[nxt]}")
            issued = nxt + 1
        if i + 1 < n:
            sg.put(g, f"s_waitcnt lgkmcnt({issued - 1 - (i + 1)})")
    return sg


def softmax_queue(h, pn, site):
    lin, lout = (LA, LB) if h == 0 else (LB, LA)
    q = []
    for qb in range(4):
        e = ET[(qb % 2) * 4:(qb % 2) * 4 + 4]
        s = S(h, qb)
        q.append((2, f"v_exp_f32 v{e[0]}, v{s}"))
        q.append((2, f"v_exp_f32 v{e[1]}, v{s+1}"))
        q.append((2, f"v_exp_f32 v{e[2]}, v{s+2}"))
        q.append((1, f"v_add_f32 v{lout[qb]}, v{lin[qb]}, v{e[0]}"))
        q.append((1, f"v_cvt_pk_bf16_f32 v{P(pn,qb)+2*h}, v{e[0]}, v{e[1]}"))
        q.append((2, f"v_exp_f32 v{e[3]}, v{s+3}"))
        q.append((1, f"v_add_f32 v{lout[qb]}, v{lout[qb]}, v{e[1]}"))
        q.append((1, f"v_add_f32 v{lout[qb]}, v{lout[qb]}, v{e[2]}"))
        q.append((1, f"v_add_f32 v{lout[qb]}, v{lout[qb]}, v{e[3]}"))
        q.append((1, f"v_cvt_pk_bf16_f32 v{P(pn,qb)+2*h+1}, v{e[2]}, v{e[3]}"))
    q.append((1, f"v_max3_f32 v{VT0}, v{lout[0]}, v{lout[1]}, v{lout[2]}"))
    q.append((1, f"v_max_f32 v{VT0}, v{VT0}, v{lout[3]}"))
    q.append((1, f"v_cmp_lt_f32 vcc, s{S_THR}, v{VT0}"))
    q.append((1, f"s_cbranch_vccnz L2_rare_site{site}\nL2_ret{site}:"))
    return q


def dma_group(sg, g0, which, opt):
    srd = SRD_V if which == 0 else SRD_K
    if which == 0:
        sg.put(g0, f"s_mov_b32 m0, s{S_M0}")
    else:
        sg.put(g0, f"s_add_u32 m0, s{S_M0}, 0x4000")
    gs = [g0 + 1, g0 + 2, g0 + 4, g0 + 5] if opt.get('dma_spread', 1) else [g0 + 1, g0 + 1, g0 + 2, g0 + 2]
    for k in range(4):
        sg.put(gs[k], f"buffer_load_dwordx4 v{VDMA}, s[{srd}:{srd+3}], s{S_OFF} offen offset:{k*1024}{opt.get('dl','')} lds")


def body(p, kind, sites, opt):
    B = p * 32768
    Bn = (1 - p) * 32768
    negm = lambda qb: vr(NEGM(qb))
    fr = pv_block(p, B, 0)
    if kind != 'tail1':
        fr += qk_block(1, B + 16384, negm)
    fr += pv_block(p, B, 8)
    if kind == 'loop':
        fr += qk_block(0, B + 16384 + 8192, negm)
    hook = []
    if kind == 'loop':
        hook = [(1, "s_waitcnt vmcnt(%d)" % (16 if opt.get('dma2') else 8)), (1, "s_barrier")]
        if opt.get('nobar'): hook = hook[:2 - opt['nobar']]
    elif kind == 'tail2':
        hook = [(1, "s_waitcnt vmcnt(0)"), (1, "s_barrier")]
    if p == 1:
        hook.append((1, f"v_xor_b32 v{VADDR}, 0x10000, v{VADDR}"))
    nxt = [Bn + i * 1024 for i in range(RING)] if kind != 'tail1' else []
    sg = build_seg(fr, nxt, hook)
    if kind == 'loop':
        if opt.get('dma', 1):
            dma_group(sg, 0, 0, opt)
            dma_group(sg, 64, 1, opt)
            if opt.get('dma2'):
                for g0, srd in ((32, SRD_V), (96, SRD_K)):
                    sg.put(g0, f"s_mov_b32 m0, s52")
                    for k, d in enumerate((1, 2, 4, 5)):
                        sg.put(g0 + d, f"buffer_load_dwordx4 v{VDMA}, s[{srd}:{srd+3}], s53 offen offset:{k*1024} lds")
                sg.put(110, f"s_xor_b32 s53, s{S_OFF}, 0x200000")
        sg.put(70, f"s_add_u32 s{S_OFF}, s{S_OFF}, 0x4000")
        sg.put(70, f"s_add_u32 s{S_M0}, s{S_M0}, 0x8000")
        sg.put(6, f"s_sub_u32 s{S_CNT}, s{S_CNT}, 1")
        sg.put(126, f"s_and_b32 s{S_M0}, s{S_M0}, 0x1ffff")
        sg.put(126, f"s_cmp_eq_u32 s{S_CNT}, 0")
    if kind == 'tail2':
        q = []
        for qb in range(4):
            for r in range(4):
                q.append((1, f"v_add_f32 v{NEGM(qb)+r}, s{S_MASK}, v{NEGM(qb)+r}"))
        sg.fill(q, 0, 28)
    if kind != 'tail1' and opt.get('valu', 1):
        def flt(q):
            if opt.get('nochk'): q = q[:-4] + [(0, q[-1][1].split("\n")[1])]
            if opt.get('noexp'): q = [(1, x.replace('v_exp_f32', 'v_mov_b32')) if 'v_exp' in x else (c, x) for c, x in q]
            return q
        g = sg.fill(flt(softmax_queue(0, 1 - p, sites[0])), 8, 70)
        assert g <= 70, g
        last = 125 if kind == 'loop' else len(sg.mf) - 1
        g = sg.fill(flt(softmax_queue(1, 1 - p, sites[1])), 72, last)
    return sg


def rare_code(p, h, sites):
    pn = 1 - p
    lin, lout = (LA, LB) if h == 0 else (LB, LA)
    o = []
    for st in sites:
        o.append(f"L2_rare_site{st}:")
        o.append(f"s_mov_b32 s{S_SITE}, {st}")
        o.append(f"s_branch L2_rare_{p}_{h}")
    o.append(f"L2_rare_{p}_{h}:")
    o.append("s_nop 15")
    o.append("s_nop 15")
    DL = ET[0:4]
    FF = ET[4:8]
    for qb in range(4):
        s = S(h, qb)
        d = DL[qb]
        o.append(f"v_log_f32 v{VT1}, v{lin[qb]}")
        o.append(f"v_max3_f32 v{d}, v{s}, v{s+1}, v{s+2}")
        o.append(f"v_max3_f32 v{d}, v{d}, v{s+3}, v{VT1}")
        o.append(f"v_mov_b32 v{VT1}, v{d}")
        o.append("s_nop 1")
        o.append(f"v_permlane32_swap_b32 v{d}, v{VT1}")
        o.append("s_nop 1")
        o.append(f"v_max_f32 v{d}, v{d}, v{VT1}")
        o.append(f"v_mov_b32 v{VT1}, v{d}")
        o.append("s_nop 1")
        o.append(f"v_permlane16_swap_b32 v{d}, v{VT1}")
        o.append("s_nop 1")
        o.append(f"v_max_f32 v{d}, v{d}, v{VT1}")
        o.append(f"v_ceil_f32 v{d}, v{d}")
        o.append(f"v_max_f32 v{d}, 0, v{d}")
        o.append(f"v_sub_f32 v{VT1}, 0, v{d}")
        o.append(f"v_exp_f32 v{FF[qb]}, v{VT1}")
        o.append("s_nop 1")
        o.append(f"v_mul_f32 v{lin[qb]}, v{lin[qb]}, v{FF[qb]}")
        o.append(f"v_add_f32 v{M[qb]}, v{M[qb]}, v{d}")
        for r in range(4):
            o.append(f"v_sub_f32 v{NEGM(qb)+r}, v{NEGM(qb)+r}, v{d}")
            o.append(f"v_sub_f32 v{S(0,qb)+r}, v{S(0,qb)+r}, v{d}")
            o.append(f"v_sub_f32 v{S(1,qb)+r}, v{S(1,qb)+r}, v{d}")
        regs = [P(p, qb) + r for r in range(4)] + ([] if h == 0 else [P(pn, qb) + r for r in range(2)])
        for r in regs:
            o.append(f"v_lshlrev_b32 v{VT0}, 16, v{r}")
            o.append(f"v_and_b32 v{VT1}, 0xffff0000, v{r}")
            o.append(f"v_mul_f32 v{VT0}, v{VT0}, v{FF[qb]}")
            o.append(f"v_mul_f32 v{VT1}, v{VT1}, v{FF[qb]}")
            o.append(f"v_cvt_pk_bf16_f32 v{r}, v{VT0}, v{VT1}")
    for qb in range(4):
        s = S(h, qb)
        e = ET[0:4]
        for r in range(4):
            o.append(f"v_exp_f32 v{e[r]}, v{s+r}")
        o.append("s_nop 1")
        o.append(f"v_add_f32 v{lout[qb]}, v{lin[qb]}, v{e[0]}")
        for r in range(1, 4):
            o.append(f"v_add_f32 v{lout[qb]}, v{lout[qb]}, v{e[r]}")
        o.append(f"v_cvt_pk_bf16_f32 v{P(pn,qb)+2*h}, v{e[0]}, v{e[1]}")
        o.append(f"v_cvt_pk_bf16_f32 v{P(pn,qb)+2*h+1}, v{e[2]}, v{e[3]}")
    o.append("s_branch L2_rare_common")
    return o


def rare_common(all_sites):
    FF = ET[4:8]
    o = ["L2_rare_common:"]
    for fb in range(16):
        for qb in range(4):
            for r in range(4):
                a = O(fb, qb) + r
                t = ET[r]
                o.append(f"v_accvgpr_read_b32 v{t}, a{a}")
            for r in range(4):
                o.append(f"v_mul_f32 v{ET[r]}, v{ET[r]}, v{FF[qb]}")
            for r in range(4):
                o.append(f"v_accvgpr_write_b32 a{O(fb,qb)+r}, v{ET[r]}")
    o.append("s_nop 3")
    for st in all_sites[:-1]:
        o.append(f"s_cmp_eq_u32 s{S_SITE}, {st}")
        o.append(f"s_cbranch_scc1 L2_ret{st}")
    o.append(f"s_branch L2_ret{all_sites[-1]}")
    return o


def srd(o, d, off, nbytes, extra_sgpr=None):
    o.append(f"s_add_u32 s{d}, s4, 0x{off & 0xffffffff:x}")
    o.append(f"s_addc_u32 s{d+1}, s5, 0")
    if extra_sgpr is not None:
        o.append(f"s_add_u32 s{d}, s{d}, s{extra_sgpr}")
        o.append(f"s_addc_u32 s{d+1}, s{d+1}, 0")
    o.append(f"s_mov_b32 s{d+2}, 0x{nbytes:x}")
    o.append(f"s_mov_b32 s{d+3}, 0x00020000")


def epilogue(sg_tail, opt):
    conv = []
    for t in range(8):
        q = []
        for qb in range(4):
            st = (t * 4 + qb) * 4
            tmp = [128 + (qb % 2) * 8 + r for r in range(8)]
            for k in range(8):
                q.append((1, f"v_accvgpr_read_b32 v{tmp[k]}, a{O(2*t+k//4,qb)+k%4}"))
            for r in range(4):
                q.append((1, f"v_cvt_pk_bf16_f32 v{st+r}, v{tmp[2*r]}, v{tmp[2*r+1]}"))
            so = 40 + qb if t < 4 else 44 + qb
            q.append((1, f"buffer_store_dwordx4 {vr(st)}, v{VDMA}, s[{SRD_OP}:{SRD_OP+3}], s{so} offen offset:{(t%4)*1024}{opt.get('st','')}"))
        conv.append(q)
    nm = len(sg_tail.mf)
    assert nm == 64
    sg_tail.fill([(1, f"v_and_b32 v{VDMA}, 0x30, v{VLANE16}"),
                  (1, f"v_and_b32 v{VT0}, 0xc0, v{VLANE16}"),
                  (1, f"v_lshl_or_b32 v{VDMA}, v{VT0}, 2, v{VDMA}"),
                  (1, f"v_bfe_u32 v{VT0}, v{VLANE16}, 8, 1"),
                  (1, f"v_lshl_or_b32 v{VDMA}, v{VT0}, 7, v{VDMA}"),
                  (1, f"v_bfe_u32 v{VT0}, v{VLANE16}, 9, 1"),
                  (1, f"v_lshl_or_b32 v{VDMA}, v{VT0}, 6, v{VDMA}")], 0, 10)
    for t in range(8):
        g0 = 8 * t + 12
        if g0 <= nm - 1:
            sg_tail.fill(conv[t], g0, min(g0 + 7, nm - 1), cap=7)
        else:
            sg_tail.put(nm - 1, "s_nop 7")
            for c, x in conv[t]:
                sg_tail.put(nm - 1, x, c)
    o = sg_tail.text()
    for qb in range(4):
        l = LA[qb]
        o.append(f"v_mov_b32 v{VT1}, v{l}")
        o.append("s_nop 1")
        o.append(f"v_permlane32_swap_b32 v{l}, v{VT1}")
        o.append("s_nop 1")
        o.append(f"v_add_f32 v{l}, v{l}, v{VT1}")
        o.append(f"v_mov_b32 v{VT1}, v{l}")
        o.append("s_nop 1")
        o.append(f"v_permlane16_swap_b32 v{l}, v{VT1}")
        o.append("s_nop 1")
        o.append(f"v_add_f32 v{ET[2*qb+1]}, v{l}, v{VT1}")
        o.append(f"v_mov_b32 v{ET[2*qb]}, v{M[qb]}")
    o.append(f"v_lshrrev_b32 v{VT0}, 1, v{VLANE16}")
    o.append("s_mov_b64 exec, 0xffff")
    for qb in range(4):
        o.append(f"buffer_store_dwordx2 v[{ET[2*qb]}:{ET[2*qb+1]}], v{VT0}, s[{SRD_ML}:{SRD_ML+3}], s48 offen offset:{qb*512}{opt.get('st','')}")
    return o


def prologue2(o, opt, T):
    A = o.append
    Z = ET[0]
    for r in range(4):
        A(f"v_mov_b32 v{Z+r}, 0")
    nvm = [6]
    qidx = {}
    zi = 0
    for ds in range(8):
        for qb in range(4):
            so = 40 + qb if ds < 4 else 44 + qb
            A(f"buffer_load_dwordx4 {vr(Q(qb,ds))}, v{VLANE16}, s[{SRD_Q}:{SRD_Q+3}], s{so} offen offset:{(ds%4)*1024}")
            nvm[0] += 1
            qidx[(ds, qb)] = nvm[0]
            if qb % 2 == 1:
                A(f"v_mfma_f32_32x32x16_bf16 a[{16*zi}:{16*zi+15}], {vr(Z)}, {vr(Z)}, 0")
                zi += 1
    T(1)
    A(f"s_add_u32 s{SRD_K}, s{SRD_K}, 24576")
    A(f"s_addc_u32 s{SRD_K+1}, s{SRD_K+1}, 0")
    A(f"s_mov_b32 s{SRD_K+2}, 0x{KF_BYTES-24576:x}")
    A(f"s_lshl_b32 s{S_M0}, s{S_WAVE}, 12")
    A(f"v_add_u32 v{VDMA}, s{S_M0}, v{VLANE16}")
    A(f"v_add_u32 v{VADDR}, 0x10000, v{VLANE16}")
    items = []
    for st in range(2):
        items.append((0, f"s_mov_b32 m0, s{S_M0}\ns_nop 0"))
        for k in range(4):
            items.append((1, f"buffer_load_dwordx4 v{VDMA}, s[{SRD_V}:{SRD_V+3}], s{S_OFF} offen offset:{k*1024} lds"))
        items.append((0, f"s_add_u32 m0, s{S_M0}, 0x4000\ns_nop 0"))
        for k in range(4):
            items.append((1, f"buffer_load_dwordx4 v{VDMA}, s[{SRD_K}:{SRD_K+3}], s{S_OFF} offen offset:{k*1024} lds"))
        items.append((0, f"s_add_u32 s{S_OFF}, s{S_OFF}, 0x4000\ns_add_u32 s{S_M0}, s{S_M0}, 0x8000"))
    spre = opt.get('spre', 0)
    while spre > 0:
        v, t = items.pop(0)
        A(t); nvm[0] += v; spre -= v
    T(2)
    A(f"s_waitcnt vmcnt({nvm[0]-6})")
    A("s_barrier")
    T(3)
    TB = P_BASE[1]
    dst = [S_BASE[0], S_BASE[1], TB]
    fr = []
    for ds in range(8):
        for b in range(3):
            ms = []
            for qb in range(4):
                d = vr(dst[b] + 4 * qb)
                ms.append(lambda f, qb=qb, ds=ds, d=d: f"v_mfma_f32_16x16x32_bf16 {d}, {vr(f)}, {vr(Q(qb,ds))}, {d if ds else '0'}")
            fr.append((32768 + b * 8192 + ds * 1024, ms))
    for i in range(RING):
        A(f"ds_read_b128 {vr(F(i))}, v{VADDR} offset:{fr[i][0]}")
    sg = build_seg(fr, [])
    per = opt.get('sper', 3)
    for ds in range(8):
        g = 12 * ds - 1
        sg.put(g, f"s_waitcnt vmcnt({nvm[0]-qidx[(ds,3)]})")
        k = 0
        gg = g + 2
        while items and (k < per or ds == 7):
            v, t = items.pop(0)
            sg.put(min(gg, 95), t); nvm[0] += v; k += v; gg += 2
    o += sg.text()
    T(6)
    R4 = range(4)
    s0 = lambda qb: S(0, qb)
    s1 = lambda qb: S(1, qb)
    for qb in R4: A(f"v_max3_f32 v{M[qb]}, v{s0(qb)}, v{s0(qb)+1}, v{s0(qb)+2}")
    for qb in R4: A(f"v_max3_f32 v{M[qb]}, v{M[qb]}, v{s0(qb)+3}, v{s1(qb)}")
    for qb in R4: A(f"v_max3_f32 v{M[qb]}, v{M[qb]}, v{s1(qb)+1}, v{s1(qb)+2}")
    for qb in R4: A(f"v_max_f32 v{M[qb]}, v{M[qb]}, v{s1(qb)+3}")
    for sw in ("v_permlane32_swap_b32", "v_permlane16_swap_b32"):
        for qb in R4: A(f"v_mov_b32 v{ET[qb]}, v{M[qb]}")
        for qb in R4: A(f"{sw} v{M[qb]}, v{ET[qb]}")
        for qb in R4: A(f"v_max_f32 v{M[qb]}, v{M[qb]}, v{ET[qb]}")
    for h in range(2):
        for qb in R4:
            for r in R4: A(f"v_sub_f32 v{S(h,qb)+r}, v{S(h,qb)+r}, v{M[qb]}")
            for r in R4: A(f"v_exp_f32 v{S(h,qb)+r}, v{S(h,qb)+r}")
            if h == 0:
                for r in R4: A(f"v_sub_f32 v{NEGM(qb)+r}, 0, v{M[qb]}")
        if h == 0:
            A("s_waitcnt vmcnt(8)")
            A("s_barrier")
            A(f"v_xor_b32 v{VADDR}, 0x10000, v{VADDR}")
            for i in range(RING):
                A(f"ds_read_b128 {vr(F(i))}, v{VADDR} offset:{i*1024}")
    T(7)
    for h in range(2):
        for qb in R4:
            s = S(h, qb)
            A(f"v_cvt_pk_bf16_f32 v{P(0,qb)+2*h}, v{s}, v{s+1}")
            A(f"v_cvt_pk_bf16_f32 v{P(0,qb)+2*h+1}, v{s+2}, v{s+3}")
    for qb in R4: A(f"v_add_f32 v{LA[qb]}, v{s0(qb)}, v{s0(qb)+1}")
    for qb in R4: A(f"v_add_f32 v{LB[qb]}, v{s0(qb)+2}, v{s0(qb)+3}")
    for r in R4:
        for qb in R4:
            t = LA if r % 2 == 0 else LB
            A(f"v_add_f32 v{t[qb]}, v{t[qb]}, v{s1(qb)+r}")
    for qb in R4: A(f"v_add_f32 v{LA[qb]}, v{LA[qb]}, v{LB[qb]}")
    for qb in R4:
        for r in R4: A(f"v_sub_f32 v{s0(qb)+r}, v{TB+4*qb+r}, v{M[qb]}")


def gen_k2(opt=None):
    opt = opt or {}
    o = []
    A = o.append
    def T(i):
        if opt.get('timing'): A(f"s_memtime s[{74+2*i}:{75+2*i}]")
    A("s_load_dwordx2 s[4:5], s[0:1], %d" % KA_WS)
    if opt.get('timing'):
        A("s_load_dwordx2 s[60:61], s[0:1], %d" % KA_OUT)
        A("s_memtime s[62:63]")
        A("s_memrealtime s[64:65]")
    A("s_and_b32 s35, s2, 7")
    A("s_lshr_b32 s37, s2, 3")
    A("s_cmp_ge_u32 s37, 30")
    A("s_cbranch_scc1 LE_start")
    if opt.get('map', 0) == 0:
        A("s_mul_i32 s35, s35, 30")
        A("s_add_u32 s35, s35, s37")
        A("s_mul_i32 s37, s35, 1639")
        A("s_lshr_b32 s37, s37, 16")
        A("s_mul_i32 s38, s37, 40")
        A("s_sub_u32 s38, s35, s38")
    elif opt['map'] == 2:
        A("s_mul_i32 s38, s37, 26")
        A("s_lshr_b32 s38, s38, 8")
        A("s_mul_i32 s39, s38, 10")
        A("s_sub_u32 s39, s37, s39")
        A("s_and_b32 s37, s35, 1")
        A("s_mul_i32 s37, s37, 3")
        A("s_add_u32 s37, s37, s38")
        A("s_lshr_b32 s35, s35, 1")
        A("s_mul_i32 s38, s35, 10")
        A("s_add_u32 s38, s38, s39")
    else:
        A("s_mul_i32 s38, s37, 52")
        A("s_lshr_b32 s38, s38, 8")
        A("s_mul_i32 s39, s38, 5")
        A("s_sub_u32 s39, s37, s39")
        A("s_mov_b32 s37, s38")
        A("s_mul_i32 s38, s35, 5")
        A("s_add_u32 s38, s38, s39")
    A("v_lshrrev_b32 v1, 6, v0")
    A(f"v_and_b32 v{VLANE16}, 63, v0")
    A(f"v_lshlrev_b32 v{VLANE16}, 4, v{VLANE16}")
    A(f"v_readfirstlane_b32 s{S_WAVE}, v1")
    base = NT // NSPLIT
    assert NT - base * NSPLIT == 1
    na, nb = opt.get('na', base), opt.get('nb', base)
    A(f"s_mul_i32 s39, s37, {na}")
    A(f"s_mul_i32 s35, s37, {nb}")
    A(f"s_add_u32 s35, s35, {3*(na-nb)}")
    A("s_cmp_lt_u32 s37, 3")
    A("s_cselect_b32 s39, s39, s35")
    A(f"s_cselect_b32 s{S_CNT}, {na-2}, {nb-2}")
    A(f"s_cmp_eq_u32 s37, {NSPLIT-1}")
    A(f"s_cselect_b32 s{S_CNT}, {NT-3*na-2*nb-2}, s{S_CNT}")
    A(f"s_cselect_b32 s{S_MASK}, 0xff800000, 0")
    A(f"s_mov_b32 s{S_THR}, 0x5d800000")
    A("s_waitcnt lgkmcnt(0)")
    T(0)
    srd(o, SRD_Q, QF_OFF, QF_BYTES)
    srd(o, SRD_K, KF_OFF, KF_BYTES)
    srd(o, SRD_V, VF_OFF, VF_BYTES)
    A(f"s_mul_i32 s35, s37, 0x{OP_STRIDE:x}")
    srd(o, SRD_OP, OP_OFF, QF_BYTES, 35)
    A(f"s_mul_i32 s35, s37, 0x{ML_STRIDE:x}")
    srd(o, SRD_ML, ML_OFF, NB16 * 512, 35)
    A(f"s_lshl_b32 s{S_OFF}, s39, 14")
    A(f"s_mul_i32 s35, s{S_WAVE}, 6144")
    A(f"v_add_u32 v{VDMA}, s35, v{VLANE16}")
    A(f"s_add_u32 m0, s35, 98304")
    A("s_nop 0")
    for k in range(4):
        A(f"buffer_load_dwordx4 v{VDMA}, s[{SRD_K}:{SRD_K+3}], s{S_OFF} offen offset:{k*1024} lds")
    A(f"s_add_u32 m0, s35, {98304+4096}")
    A(f"s_add_u32 s41, s{S_OFF}, 4096")
    for k in range(2):
        A(f"buffer_load_dwordx4 v{VDMA}, s[{SRD_K}:{SRD_K+3}], s41 offen offset:{k*1024} lds")
    A(f"s_lshl_b32 s35, s38, 4")
    A(f"s_lshl_b32 s41, s{S_WAVE}, 2")
    A(f"s_add_u32 s35, s35, s41")
    A(f"s_lshl_b32 s40, s35, 13")
    for qb in range(1, 4):
        A(f"s_add_u32 s{40+qb}, s40, {qb*8192}")
    for qb in range(4):
        A(f"s_add_u32 s{44+qb}, s{40+qb}, 4096")
    A(f"s_lshl_b32 s48, s35, 9")
    if opt.get('pro2', 1):
        prologue2(o, opt, T)
    else:
        for ds in range(8):
            for qb in range(4):
                so = 40 + qb if ds < 4 else 44 + qb
                A(f"buffer_load_dwordx4 {vr(Q(qb,ds))}, v{VLANE16}, s[{SRD_Q}:{SRD_Q+3}], s{so} offen offset:{(ds%4)*1024}")
        T(1)
        A(f"s_add_u32 s{SRD_K}, s{SRD_K}, 24576")
        A(f"s_addc_u32 s{SRD_K+1}, s{SRD_K+1}, 0")
        A(f"s_mov_b32 s{SRD_K+2}, 0x{KF_BYTES-24576:x}")
        A(f"s_lshl_b32 s{S_M0}, s{S_WAVE}, 12")
        A(f"v_add_u32 v{VDMA}, s{S_M0}, v{VLANE16}")
        for st in range(2):
            A(f"s_mov_b32 m0, s{S_M0}")
            A("s_nop 0")
            for k in range(4):
                A(f"buffer_load_dwordx4 v{VDMA}, s[{SRD_V}:{SRD_V+3}], s{S_OFF} offen offset:{k*1024} lds")
            A(f"s_add_u32 m0, s{S_M0}, 0x4000")
            A("s_nop 0")
            for k in range(4):
                A(f"buffer_load_dwordx4 v{VDMA}, s[{SRD_K}:{SRD_K+3}], s{S_OFF} offen offset:{k*1024} lds")
            A(f"s_add_u32 s{S_OFF}, s{S_OFF}, 0x4000")
            A(f"s_add_u32 s{S_M0}, s{S_M0}, 0x8000")
        T(2)
        for i in range(256):
            A(f"v_accvgpr_write_b32 a{i}, 0")
        T(3)
        A(f"v_add_u32 v{VADDR}, 0x10000, v{VLANE16}")
        A("s_waitcnt vmcnt(48)")
        A("s_barrier")
        for i in range(RING):
            A(f"ds_read_b128 {vr(F(i))}, v{VADDR} offset:{32768 + i*1024}")
        T(4)
        A("s_waitcnt vmcnt(16)")
        T(5)
        zero = lambda qb: "0"
        fr = qk_block(0, 32768, zero) + qk_block(1, 32768 + 8192, zero)
        sg = build_seg(fr, [32768 + 16384 + i * 1024 for i in range(RING)])
        o += sg.text()
        A("s_nop 7")
        T(6)
        for qb in range(4):
            m = M[qb]
            s0, s1 = S(0, qb), S(1, qb)
            A(f"v_max3_f32 v{m}, v{s0}, v{s0+1}, v{s0+2}")
            A(f"v_max3_f32 v{m}, v{m}, v{s0+3}, v{s1}")
            A(f"v_max3_f32 v{m}, v{m}, v{s1+1}, v{s1+2}")
            A(f"v_max_f32 v{m}, v{m}, v{s1+3}")
            A(f"v_mov_b32 v{VT1}, v{m}")
            A("s_nop 1")
            A(f"v_permlane32_swap_b32 v{m}, v{VT1}")
            A("s_nop 1")
            A(f"v_max_f32 v{m}, v{m}, v{VT1}")
            A(f"v_mov_b32 v{VT1}, v{m}")
            A("s_nop 1")
            A(f"v_permlane16_swap_b32 v{m}, v{VT1}")
            A("s_nop 1")
            A(f"v_max_f32 v{m}, v{m}, v{VT1}")
            for r in range(4):
                A(f"v_sub_f32 v{NEGM(qb)+r}, 0, v{m}")
            for r in range(4):
                A(f"v_sub_f32 v{s0+r}, v{s0+r}, v{m}")
                A(f"v_sub_f32 v{s1+r}, v{s1+r}, v{m}")
            for r in range(4):
                A(f"v_exp_f32 v{ET[r]}, v{s0+r}")
            A("s_nop 0")
            A(f"v_add_f32 v{LB[qb]}, v{ET[0]}, v{ET[1]}")
            A(f"v_add_f32 v{LB[qb]}, v{LB[qb]}, v{ET[2]}")
            A(f"v_add_f32 v{LB[qb]}, v{LB[qb]}, v{ET[3]}")
            A(f"v_cvt_pk_bf16_f32 v{P(0,qb)}, v{ET[0]}, v{ET[1]}")
            A(f"v_cvt_pk_bf16_f32 v{P(0,qb)+1}, v{ET[2]}, v{ET[3]}")
        T(7)
        negm = lambda qb: vr(NEGM(qb))
        fr = qk_block(0, 32768 + 16384, negm)
        hook = [(1, "s_waitcnt vmcnt(8)"), (1, "s_barrier"), (1, f"v_xor_b32 v{VADDR}, 0x10000, v{VADDR}")]
        sg = build_seg(fr, [i * 1024 for i in range(RING)], hook)
        q = softmax_queue(1, 0, 99)[:-4]
        sg.fill(q, 0, 31)
        o += sg.text()
    A("s_nop 1")
    if opt.get('timing'):
        A("s_memtime s[66:67]")
        A("s_waitcnt lgkmcnt(0)")
    sites = {}
    n = 0
    for kind in ('loop', 'tail2'):
        for p in (0, 1):
            sites[(kind, p)] = (n, n + 1)
            n += 2
    if opt.get('dma2'):
        A(f"s_lshl_b32 s52, s{S_WAVE}, 12")
        A("s_add_u32 s52, s52, 0x20000")
        A(f"s_xor_b32 s53, s{S_OFF}, 0x200000")
    A(".p2align 6")
    A("L2_loop:")
    o += body(0, 'loop', sites[('loop', 0)], opt).text()
    A("s_cbranch_scc1 L2_tail_1")
    o += body(1, 'loop', sites[('loop', 1)], opt).text()
    A("s_cbranch_scc0 L2_loop")
    for p in (0, 1):
        A(f"L2_tail_{p}:")
        if opt.get('timing'):
            A("s_memtime s[68:69]")
            A("s_waitcnt lgkmcnt(0)")
        o += body(p, 'tail2', sites[('tail2', p)], opt).text()
        A("s_nop 1")
        T(8)
        o += epilogue(body(1 - p, 'tail1', None, opt), opt)
        T(9)
        A("s_branch L2_fin")
    if opt.get('valu', 1):
        for p in (0, 1):
            for h in (0, 1):
                o += rare_code(p, h, [sites[('loop', p)][h], sites[('tail2', p)][h]])
        o += rare_common(list(range(n)))
    import gen_eg
    gen_eg.gen_edge(o, opt)
    A("L2_fin:")
    if opt.get('timing'):
        A("s_mov_b64 exec, -1")
        A("s_waitcnt vmcnt(0)")
        A("s_memtime s[70:71]")
        A("s_memrealtime s[72:73]")
        A("s_waitcnt lgkmcnt(0)")
        A("s_sub_u32 s66, s66, s62")
        A("s_sub_u32 s68, s68, s62")
        A("s_sub_u32 s70, s70, s62")
        for i in range(10):
            A(f"s_sub_u32 s{74+2*i}, s{74+2*i}, s62\nv_mov_b32 v{4+i}, s{74+2*i}")
        A("v_mov_b32 v14, s64\nv_mov_b32 v15, s72")
        A("s_sub_u32 s72, s72, s64")
        A("v_mov_b32 v0, s66\nv_mov_b32 v1, s68\nv_mov_b32 v2, s70\nv_mov_b32 v3, s72")
        A("s_mov_b32 s62, 0x100000\ns_mov_b32 s63, 0x00020000")
        A(f"s_lshl_b32 s35, s2, 2")
        A(f"s_add_u32 s35, s35, s{S_WAVE}")
        A(f"s_lshl_b32 s35, s35, 10")
        A(f"buffer_store_dwordx4 v[0:3], v{VLANE16}, s[60:63], s35 offen")
        A("s_add_u32 s35, s35, 0x200000\ns_mov_b32 s62, 0x800000")
        for k in range(3):
            A(f"buffer_store_dwordx4 v[{4+4*k}:{7+4*k}], v{VLANE16}, s[60:63], s35 offen")
            A("s_add_u32 s35, s35, 0x100000")
    A("L2_end:")
    return "\n".join(o)


def kernel_desc(opt=None):
    return dict(name="k2_kernel", body=gen_k2(opt), vgpr=512, accum=256, grid=256, block=256, lds=163840 if (opt or {}).get('dma2') else 131072)
```

```python
from layout import *
from sched import *
import gen_eg, hazard

MF = "v_mfma_f32_16x16x32_bf16"
def Q(qb, ds): return (qb * 8 + ds) * 4
def PS(sl, qb): return 128 + sl * 16 + qb * 4
def S(h, qb): return 192 + h * 16 + qb * 4
RA, RB, RC = 224, 232, 240
VK, VTR, VDMA, VL16, VT0, VT1, VT2 = 248, [249, 250], 251, 252, 253, 254, 255
def O(fb, qb): return (fb * 4 + qb) * 4
SRD_Q, SRD_K, SRD_OP, SRD_ML = 8, 12, 20, 24
S_OFF, S_H, S_CNT, S_T, S_MASK, S_WAVE, S_SPL, S_QT, S_FIRST, S_NT = 28, 30, 31, 32, 33, 34, 37, 38, 39, 29
S_QO, S_ML, S_END = 40, 48, 49


def foff(kb, c): return (c >> 1) * 4096 + kb * 2048 + (c & 1) * 512


def kgroup(h, d0, off, dst, vk=VK, chain=1):
    rd = [lambda r, u=u: f"ds_read_b128 {vr(r + 4 * u)}, v{vk} offset:{off + foff(h, d0 + u)}" for u in range(2)]
    od = [(qb, u) for qb in range(4) for u in range(2)] if chain else [(qb, u) for u in range(2) for qb in range(4)]
    mf = [lambda r, qb=qb, u=u: f"{MF} {vr(dst(qb))}, {vr(r + 4 * u)}, {vr(Q(qb, d0 + u))}, {vr(dst(qb)) if d0 + u else 0}" for qb, u in od]
    return dict(rd=rd, mf=mf)


def vgroup(frs, chain=1):
    rd = []
    for u, (fb, off, vt, _) in enumerate(frs):
        rd += [lambda r, u=u, kb=kb, fb=fb, off=off, vt=vt: f"ds_read_b64_tr_b16 v[{r+4*u+2*kb}:{r+4*u+2*kb+1}], v{vt[fb & 1]} offset:{off + foff(kb, fb >> 1)}" for kb in range(2)]
    same = frs[0][0] == frs[1][0] and chain
    od = [(qb, u) for qb in range(4) for u in range(2)] if same else [(qb, u) for u in range(2) for qb in range(4)]
    mf = [lambda r, qb=qb, u=u: f"{MF} {ar(O(frs[u][0], qb))}, {vr(r + 4 * u)}, {vr(frs[u][3](qb))}, {ar(O(frs[u][0], qb))}" for qb, u in od]
    return dict(rd=rd, mf=mf)


def kblock(h, off, dst, vk=VK, chain=1): return [kgroup(h, d, off, dst, vk, chain) for d in range(0, 8, 2)]


def build(groups, ring, nxt, opt, inflight=2):
    st = Stream()
    allg = list(groups) + list(nxt)
    for i, g in enumerate(groups):
        for m in g['mf']: st.mfma(m(ring[i]))
    em = Emitter()
    for i in range(min(inflight, len(allg))):
        em.cnt['lgkm'] += len(allg[i]['rd'])
        em.pos[('g', i)] = ('lgkm', em.cnt['lgkm'] - 1)
    for i in range(inflight, 2):
        for k, r in enumerate(allg[i]['rd']): st.put(-1, LD(r(ring[i]), tag=('g', i) if k == len(allg[i]['rd']) - 1 else None))
    st.put(-1, W(('g', 0)))
    rp = {2: opt.get('rpk', [0, 4]), 4: opt.get('rpv', [0, 2, 4, 6])}
    wp = opt.get('wp', 7)
    for i in range(len(groups)):
        j = i + 2
        if j < len(allg):
            rd = allg[j]['rd']
            late = groups[i].get('rlate', 0)
            for k, r in enumerate(rd):
                st.put(8 * i + max(rp[len(rd)][k], late), LD(r(ring[j]), tag=('g', j) if k == len(rd) - 1 else None))
        if i + 1 < len(groups): st.put(8 * i + wp, W(('g', i + 1)))
    return st, em


def place_sm(st, src, dst, h, g, ready=None, dead=None, cap=2, add=None, name=""):
    last = st.n() - 1
    def room(g, c):
        while g < last and st.used(g) + c > cap: g += 1
        return g
    def half(a, b):
        for x in range(a, min(b, last) + 1):
            if st.used(x) == cap - 1: return x
    end = g
    for qb in range(4):
        s = src(qb)
        if ready: g = max(g, ready(qb))
        if add:
            for r in range(4):
                g = room(g, 1); st.put(g, V(f"v_add_f32 v{s+r}, v{s+r}, v{add(qb)}"))
        ge = []
        for r in range(4):
            g = room(g, 2); st.put(g, V(f"v_exp_f32 v{s+r}, v{s+r}", cost=2)); ge.append(g)
        c = lambda u: V(f"v_cvt_pk_bf16_f32 v{dst(qb)+2*h+u}, v{s+2*u}, v{s+2*u+1}")
        g0 = half(ge[1] + 1, ge[3] + 2)
        if g0 is not None: st.put(g0, c(0))
        g1 = half(ge[3] + 1, ge[3] + 3)
        if g0 is None or g1 is None: g1 = room(min(ge[3] + 1, last), 2 if g0 is None else 1)
        if g1 == ge[3]: st.put(g1, V("s_nop 0"))
        if g0 is None: st.put(g1, c(0))
        st.put(g1, c(1))
        end = max(g1, g0 or 0)
        if dead: assert end <= dead(qb), (name, qb, end, dead(qb))
    return g, end


def dma(k, opt): return VM(f"buffer_load_dwordx4 v{VDMA}, s[{SRD_K}:{SRD_K+3}], s{S_OFF} offen offset:{k*1024}{opt.get('dl','')} lds")


def vfirst(p, n=2):
    return [vgroup([(fb, (2 * p + u) * 16384, VTR, lambda qb, u=u: PS(2 * p + u, qb)) for u in range(2)]) for fb in range(n)]


def body(p, opt):
    qc, pc = opt.get('qc', 1), opt.get('pc', 1)
    pv = lambda f0: [vgroup([(fb, (2 * p + u) * 16384, VTR, lambda qb, u=u: PS(2 * p + u, qb)) for u in range(2)], pc) for fb in range(f0, f0 + 4)]
    ko = [2, 3, 3, 0] if p == 0 else [0, 1, 1, 2]
    Sf = lambda h: (lambda qb: S(h, qb))
    gr = []
    for b in range(4):
        gr += pv(4 * b) + kblock(1 - b % 2, ko[b] * 16384, Sf(1 - b % 2), chain=qc)
    RD = PS(3 - 2 * p, 0)
    ring = [RA, RB, RC, RD] * 2 + [RA, RB, RC] * 8 + [RA, RB]
    st, em = build(gr, ring, vfirst(1 - p), opt)
    if p == 0: st.put(opt.get('gvk', 190), V(f"v_xor_b32 v{VK}, 0x10000, v{VK}"))
    else:
        for k in range(2): st.put(opt.get('gvt', 225) + 2 * k, V(f"v_xor_b32 v{VTR[k]}, 0x10000, v{VTR[k]}"))
    gb = opt.get('gbar', 71)
    gd = opt.get('gdma', [73, 81, 89, 97, 105, 113, 121, 129])
    assert gb < 80
    nb = sum(1 for x in gd if x < gb)
    assert nb <= 4 and gd[4] - gd[3] >= 3 and gd[0] >= 2 and gd[7] + 2 < 253 and gb not in gd
    if not opt.get('nobar'):
        st.put(gb, V(f"s_waitcnt vmcnt({nb})")); st.put(gb, V("s_barrier"))
    if not opt.get('nodma'):
        for t in range(2):
            mo = (1 + 2 * p + t) % 4
            if mo == 0: st.put(gd[3] + 1, V(f"s_xor_b32 s{S_H}, s{S_H}, 0x10000"))
            st.put(gd[4 * t] - 2, V(f"s_add_u32 m0, s{S_H}, 0x{mo * 0x4000:x}"))
            for k in range(4): st.put(gd[4 * t + k], dma(k, opt))
            st.put(gd[4 * t + 3] + 2, V(f"s_add_u32 s{S_OFF}, s{S_OFF}, 0x4000"))
    st.put(opt.get('gcnt', 253), V(f"s_sub_u32 s{S_CNT}, s{S_CNT}, 1"))
    if opt.get('valu', 1):
        nP = 2 - 2 * p
        g0 = opt.get('g0', [3, 67, 131, 195])
        for b, (h, sl) in enumerate([(0, nP), (1, nP), (0, nP + 1), (1, nP + 1)]):
            _, e = place_sm(st, lambda qb: S(h, qb), lambda qb: PS(sl, qb), h, g0[b], ready=lambda qb: 64 * b - 1 + 2 * qb,
                            dead=lambda qb: min(64 * b + 95 + 2 * qb, 254), name="body")
            if opt.get('verbose'): print("body", p, "sm", b, "end", e)
    if opt.get('verbose'): print(st.stats(), [(g, st.used(g)) for g in range(st.n()) if st.used(g) > 2])
    return em.emit(st.seq())


def ml_l(opt):
    o = []
    for qb in range(4): o.append(f"v_accvgpr_read_b32 v{S(0,0)+qb}, a{O(0,qb)}")
    l = S(0, 0)
    o.append(f"v_lshlrev_b32 v{VT0}, 2, v{VL16}")
    o.append(f"v_max3_u32 v{VT1}, v{l}, v{l+1}, v{l+2}")
    o.append(f"v_min3_u32 v{VT2}, v{l}, v{l+1}, v{l+2}")
    o.append(f"v_max_u32 v{VT1}, v{VT1}, v{l+3}")
    o.append(f"v_min_u32 v{VT2}, v{VT2}, v{l+3}")
    x = ["s_mov_b64 exec, 0xffff"]
    for qb in range(4):
        x.append(f"buffer_store_dword v{l+qb}, v{VT0}, s[{SRD_ML}:{SRD_ML+3}], s{S_ML} offen offset:{qb*1024+4}{opt.get('st','')}")
    x.append(f"v_cmp_lt_u32 s[50:51], s52, v{VT1}")
    x.append(f"v_cmp_gt_u32 vcc, s53, v{VT2}")
    x.append("s_mov_b64 exec, -1")
    return o, x


def tail(p, T, opt):
    qc, pc = opt.get('qc', 1), opt.get('pc', 1)
    VO = [Q(0, 3), Q(0, 3) + 1]
    assert T in (4, 5)
    def ploc(k):
        if k == 4: return lambda qb: Q(qb, 0)
        return lambda qb: PS((2 * p + k) % 4, qb)
    def vf(k, fb):
        i = 2 * p + k
        return (fb, (i % 4) * 16384, VTR if i < 4 else VO, ploc(k))
    gr = vfirst(p)
    blocks = [(2, 1)] + [(k, h) for k in range(3, T) for h in range(2)]
    tog = None
    for k, h in blocks:
        i = 2 * p + k
        if p == 0 and i == 4 and h == 0: tog = len(gr)
        gr += kblock(h, (i % 4) * 16384, lambda qb, h=h: S(h, qb), chain=qc)
    G = 8 * len(gr)
    early, late = [], []
    for t in range(8):
        e, l = [], []
        for fb in (2 * t, 2 * t + 1):
            for k in (0, 2):
                if k == 0 and fb < 2: continue
                (l if k + 1 == T - 1 else e).append([(k, fb), (k + 1, fb)])
        if T == 5: l.append([(4, 2 * t), (4, 2 * t + 1)])
        early.append(e); late.append(l)
    order = []; lead = opt.get("lead", 52); t = 0
    while 8 * len(order) < lead:
        while not early[t]: t += 1
        order.append(early[t].pop(0))
    glast = G + 8 * len(order)
    for t in range(8): order += early[t] + late[t]
    done = {}
    for i, g in enumerate(order):
        for k, fb in g: done[fb] = G + 8 * i + 7
    gr += [vgroup([vf(k, fb) for k, fb in g], pc) for g in order]
    ring = ([RA, RB, RC] * 40)[:len(gr)]
    st, em = build(gr, ring, [], opt)
    nm = st.n()
    if opt.get('timing'):
        for i, gg in enumerate([30, 47, 111, G - 1, glast, (glast + nm) // 2, nm - 20]):
            st.put(gg, V(f"s_memtime s[{74+2*i}:{75+2*i}]", cost=0))
    gb = 8 * 4 - 1
    st.put(gb, V("s_waitcnt vmcnt(0)")); st.put(gb, V("s_barrier"))
    if tog is not None: st.put(8 * (tog - 2) - 1, V(f"v_xor_b32 v{VK}, 0x10000, v{VK}"))
    GL = G - 32
    if 2 * p + T - 1 >= 4:
        for k in range(2): st.put(GL + 12 + k, V(f"v_xor_b32 v{VO[k]}, 0x10000, v{VTR[k]}"))
    sms = [(k, h) for k in range(2, T) for h in range(2)]
    g = 3
    for i, (k, h) in enumerate(sms):
        rdy = lambda qb: 16 + 32 * i - 1 + 2 * qb if not (T == 5 and i == len(sms) - 2) else 16 + 32 * i + 1 + 2 * qb
        dd = lambda qb: 16 + 32 * (i + 1) - 1 + 2 * qb if i < len(sms) - 2 else glast - 2
        g, e = place_sm(st, lambda qb: S(h, qb), ploc(k), h, g, ready=rdy if i else None, dead=dd, cap=opt.get('tcap', 2), name="tail")
        if opt.get('verbose'): print("tail", p, T, "sm", k, h, "end", e, "of", dd(3))
    g = glast
    ccap = opt.get('ccap', 3)
    a, x = ml_l(opt)
    g = st.fill([V(y) for y in a] + [V("\n".join(x), cost=3)], max(g, done[0] + 3), nm - 1, cap=opt.get('mle', 3))
    for t in range(8):
        qa, qb_ = [], []
        for qb in range(4):
            stg = Q(qb, 4 + t % 4)
            tmp = [S(0, 0) + qb * 8 + r for r in range(8)]
            for u, q in enumerate((qa, qb_)):
                for k in range(4): q.append(V(f"v_accvgpr_read_b32 v{tmp[4*u+k]}, a{O(2*t+u,qb)+k}"))
                for r in range(2): q.append(V(f"v_cvt_pk_bf16_f32 v{stg+2*u+r}, v{tmp[4*u+2*r]}, v{tmp[4*u+2*r+1]}"))
            so = S_QO + qb if t < 4 else S_QO + 4 + qb
            qb_.append(V(f"buffer_store_dwordx4 {vr(stg)}, v{VL16}, s[{SRD_OP}:{SRD_OP+3}], s{so} offen offset:{(t%4)*1024}{opt.get('st','')}"))
        cc = ccap[t] if isinstance(ccap, list) else ccap
        g = st.fill(qa, min(max(g, done[2*t] + 5), nm - 1), nm - 1, cap=cc)
        g0 = max(g, done[2*t+1] + 5)
        if g0 > nm - 1:
            st.put(nm - 1, V("s_nop 7")); g0 = nm - 1
        g = st.fill(qb_, g0, nm - 1, cap=cc)
        if opt.get('verbose'): print("  conv", t, g0, g, "of", nm)
    return hazard.fix(em.emit(st.seq()))


def lds_addrs(A):
    L = VL16
    A(f"v_bfe_u32 v{VK}, v{L}, 4, 3")
    A(f"v_lshlrev_b32 v{VK}, 6, v{VK}")
    A(f"v_bfe_u32 v{VT0}, v{L}, 7, 1")
    A(f"v_lshl_or_b32 v{VK}, v{VT0}, 10, v{VK}")
    A(f"v_bfe_u32 v{VT0}, v{L}, 8, 2")
    A(f"v_lshl_or_b32 v{VK}, v{VT0}, 4, v{VK}")
    A(f"v_bfe_u32 v{VT0}, v{L}, 6, 1")
    A(f"v_lshlrev_b32 v{VT0}, 5, v{VT0}")
    A(f"v_xor_b32 v{VK}, v{VK}, v{VT0}")
    A(f"v_and_b32 v{VTR[0]}, 0x1c0, v{L}")
    A(f"v_bfe_u32 v{VT0}, v{L}, 9, 1")
    A(f"v_lshl_or_b32 v{VTR[0]}, v{VT0}, 10, v{VTR[0]}")
    A(f"v_bfe_u32 v{VT0}, v{L}, 8, 1")
    A(f"v_lshl_or_b32 v{VTR[0]}, v{VT0}, 5, v{VTR[0]}")
    A(f"v_bfe_u32 v{VT0}, v{L}, 4, 2")
    A(f"v_lshl_or_b32 v{VTR[0]}, v{VT0}, 3, v{VTR[0]}")
    A(f"v_xor_b32 v{VTR[1]}, 32, v{VTR[0]}")


def light(o, opt, nm, LB0, NS, nq):
    A = o.append
    QL = lambda ds: ds * 4
    KFr = lambda h, ds: 32 + (h * 8 + ds) * 4
    VFr = lambda fb: 96 + fb * 4
    SL = [160, 164]; PL = 168; MM, LL, FF, T0, T1 = 172, 173, 174, 175, 176
    AK, AV0, AV1, ODD = 177, 178, 179, 188
    TM = 180; MK = 192
    S_N, S_SL, S_DS, S_X, S_NQ, S_B, S_E, S_O = 51, 52, 53, 54, 55, 56, 57, 58
    A(f"s_mov_b32 s{S_B}, {LB0}")
    A(f"s_add_u32 s{S_E}, s{S_B}, {NS * 0x4000}")
    A(f"s_mov_b32 s{S_NQ}, {nq}")
    A(f"v_bfe_i32 v{ODD}, v{VL16}, 8, 1")
    A(f"{nm}_q:")
    A(f"s_add_u32 s44, s{S_QO}, 4096")
    for ds in range(8):
        A(f"buffer_load_dwordx4 {vr(QL(ds))}, v{VL16}, s[{SRD_Q}:{SRD_Q+3}], s{S_QO if ds < 4 else 44} offen offset:{(ds%4)*1024}")
    def dm():
        for w in range(4):
            A(f"s_add_u32 m0, s{S_DS}, {w*4096}")
            A(f"s_add_u32 s{S_X}, s{S_O}, {w*128}")
            for k in range(4):
                A(f"buffer_load_dwordx4 v{VDMA}, s[{SRD_K}:{SRD_K+3}], s{S_X} offen offset:{k*1024} lds")
        A(f"s_add_u32 s{S_DS}, s{S_DS}, 0x4000")
        A(f"s_cmp_eq_u32 s{S_DS}, s{S_E}")
        A(f"s_cselect_b32 s{S_DS}, s{S_B}, s{S_DS}")
        A(f"s_add_u32 s{S_O}, s{S_O}, 0x4000")
    A(f"s_mov_b32 s{S_DS}, s{S_B}")
    A(f"s_mov_b32 s{S_O}, s{S_FIRST}")
    for i in range(NS - 1): dm()
    A(f"s_mov_b32 s{S_N}, s{S_NT}")
    A(f"s_mov_b32 s{S_SL}, s{S_B}")
    A(f"v_mov_b32 v{MM}, 0xff800000")
    for r in range(64): A(f"v_accvgpr_write_b32 a{r}, 0")
    A(f"{nm}_loop:")
    dm()
    A(f"v_add_u32 v{AK}, s{S_SL}, v{VK}")
    A(f"v_add_u32 v{AV0}, s{S_SL}, v{VTR[0]}")
    A(f"v_add_u32 v{AV1}, s{S_SL}, v{VTR[1]}")
    A(f"s_add_u32 s{S_SL}, s{S_SL}, 0x4000")
    A(f"s_cmp_eq_u32 s{S_SL}, s{S_E}")
    A(f"s_cselect_b32 s{S_SL}, s{S_B}, s{S_SL}")
    A(f"s_cmp_eq_u32 s{S_N}, 1")
    A(f"s_cselect_b32 s{S_X}, s{S_MASK}, 0")
    for r in range(4): A(f"v_and_b32 v{MK+r}, s{S_X}, v{ODD}")
    A(f"s_waitcnt vmcnt({16 * (NS - 1)})")
    for ds in range(8):
        for h in range(2):
            A(f"ds_read_b128 {vr(KFr(h, ds))}, v{AK} offset:{foff(h, ds)}")
    for ds in range(8):
        A(f"s_waitcnt lgkmcnt({14 - 2*ds})")
        for h in range(2):
            A(f"{MF} {vr(SL[h])}, {vr(KFr(h, ds))}, {vr(QL(ds))}, {vr(SL[h]) if ds else vr(MK)}")
    for fb in range(16):
        for kb in range(2):
            A(f"ds_read_b64_tr_b16 v[{VFr(fb)+2*kb}:{VFr(fb)+2*kb+1}], v{AV1 if fb & 1 else AV0} offset:{foff(kb, fb >> 1)}")
    A("s_nop 7")
    A(f"v_max3_f32 v{T0}, v{SL[0]}, v{SL[0]+1}, v{SL[0]+2}")
    A(f"v_max3_f32 v{T0}, v{T0}, v{SL[0]+3}, v{SL[1]}")
    A(f"v_max3_f32 v{T0}, v{T0}, v{SL[1]+1}, v{SL[1]+2}")
    A(f"v_max3_f32 v{T0}, v{T0}, v{SL[1]+3}, v{MM}")
    for sw in ("v_permlane32_swap_b32", "v_permlane16_swap_b32"):
        A(f"v_mov_b32 v{T1}, v{T0}")
        A("s_nop 1")
        A(f"{sw} v{T0}, v{T1}")
        A("s_nop 1")
        A(f"v_max_f32 v{T0}, v{T0}, v{T1}")
    A(f"v_sub_f32 v{FF}, v{MM}, v{T0}")
    A(f"v_exp_f32 v{FF}, v{FF}")
    A(f"v_mov_b32 v{MM}, v{T0}")
    for r in range(8): A(f"v_sub_f32 v{SL[0]+r}, v{SL[0]+r}, v{MM}")
    for r in range(8): A(f"v_exp_f32 v{SL[0]+r}, v{SL[0]+r}")
    A(f"v_cmp_neq_f32 vcc, 1.0, v{FF}")
    for r in range(4): A(f"v_cvt_pk_bf16_f32 v{PL+r}, v{SL[0]+2*r}, v{SL[0]+2*r+1}")
    A(f"s_cbranch_vccz {nm}_nors")
    for c in range(8):
        for r in range(8): A(f"v_accvgpr_read_b32 v{TM+r}, a{8*c+r}")
        for r in range(8): A(f"v_mul_f32 v{TM+r}, v{TM+r}, v{FF}")
        for r in range(8): A(f"v_accvgpr_write_b32 a{8*c+r}, v{TM+r}")
    A(f"{nm}_nors:")
    A("s_waitcnt lgkmcnt(0)")
    A("s_nop 1")
    for fb in range(16):
        A(f"{MF} {ar(fb*4)}, {vr(VFr(fb))}, {vr(PL)}, {ar(fb*4)}")
    A(f"s_sub_u32 s{S_N}, s{S_N}, 1")
    A(f"s_cmp_lg_u32 s{S_N}, 0")
    A(f"s_cbranch_scc1 {nm}_loop")
    A("s_nop 15")
    A(f"v_accvgpr_read_b32 v{LL}, a0")
    for t in range(8):
        for r in range(8): A(f"v_accvgpr_read_b32 v{TM+r}, a{8*t+r}")
        for r in range(4): A(f"v_cvt_pk_bf16_f32 v{32+4*t+r}, v{TM+2*r}, v{TM+2*r+1}")
        A(f"buffer_store_dwordx4 {vr(32+4*t)}, v{VL16}, s[{SRD_OP}:{SRD_OP+3}], s{S_QO if t < 4 else 44} offen offset:{(t%4)*1024}{opt.get('st','')}")
    A(f"v_lshlrev_b32 v{T0}, 2, v{VL16}")
    A("s_mov_b64 exec, 0xffff")
    A(f"buffer_store_dwordx2 v[{MM}:{LL}], v{T0}, s[{SRD_ML}:{SRD_ML+3}], s{S_ML} offen{opt.get('st','')}")
    A("s_mov_b64 exec, -1")
    A("s_waitcnt vmcnt(0)")
    A(f"s_add_u32 s{S_QO}, s{S_QO}, 8192")
    A(f"s_add_u32 s{S_ML}, s{S_ML}, 1024")
    A(f"s_sub_u32 s{S_NQ}, s{S_NQ}, 1")
    A(f"s_cmp_lg_u32 s{S_NQ}, 0")
    A(f"s_cbranch_scc1 {nm}_q")
    A("s_branch L2_fin")


def prologue(o, opt, T):
    A = o.append
    Z = S(1, 0)
    for r in range(4): A(f"v_mov_b32 v{Z+r}, 0")
    nvm = [6]
    qidx = {}
    zi = 0
    for ds in range(8):
        for qb in range(4):
            so = S_QO + qb if ds < 4 else S_QO + 4 + qb
            A(f"buffer_load_dwordx4 {vr(Q(qb,ds))}, v{VL16}, s[{SRD_Q}:{SRD_Q+3}], s{so} offen offset:{(ds%4)*1024}")
            nvm[0] += 1
            qidx[(ds, qb)] = nvm[0]
            if qb % 2 == 1:
                A(f"v_mfma_f32_32x32x16_bf16 a[{16*zi}:{16*zi+15}], {vr(Z)}, {vr(Z)}, 0")
                zi += 1
    T(1)
    lds_addrs(A)
    items = []
    dm = lambda k: (1, dma(k, {}).t)
    items += [dm(2), dm(3)]
    for t in range(2, 5):
        items.append((0, f"s_add_u32 s{S_OFF}, s{S_OFF}, 0x4000\ns_add_u32 m0, s{S_H}, 0x{t*0x4000:x}\ns_nop 0"))
        items += [dm(k) for k in range(4)]
        items[-1] = (1, items[-1][1], t)
    items.append((0, f"s_add_u32 s{S_OFF}, s{S_OFF}, 0x4000\ns_xor_b32 s{S_H}, s{S_H}, 0x10000"))
    tidx = {1: 8}
    T(2)
    A(f"s_waitcnt vmcnt({nvm[0]-6})")
    A("s_barrier")
    T(3)
    dst = [lambda qb: PS(2, qb), lambda qb: PS(3, qb), lambda qb: S(0, qb)]
    gr = []
    for d in range(0, 8, 2):
        for b in range(3): gr.append(kgroup(b & 1, d, (b >> 1) * 16384, dst[b], chain=0 if d == 0 and b == 0 and 0 else 1))
    ring = [RA, RB, RC] * 4
    st, em = build(gr, ring, [], opt, inflight=0)
    per = opt.get('sper', 4)
    pos = {}
    for d in range(4):
        g = 24 * d - 1
        st.put(g, V(f"s_waitcnt vmcnt({nvm[0]-qidx[(2*d+1,3)]})"))
        k = 0; gg = g + 2
        while items and k < per:
            it = items.pop(0)
            st.put(min(gg, 95), V(it[1])); nvm[0] += it[0]; k += it[0]; gg += 2
            if len(it) > 2: pos[it[2]] = nvm[0]
            if it[1] == dm(3)[1] and 1 not in pos: pos[1] = nvm[0]
    o += em.emit(st.seq())
    T(6)
    R4 = range(4)
    M = [RA + i for i in R4]; ET = [RA + 4 + i for i in R4]
    s0, s1 = dst[0], dst[1]
    A("s_nop 3")
    for qb in R4: A(f"v_max3_f32 v{M[qb]}, v{s0(qb)}, v{s0(qb)+1}, v{s0(qb)+2}")
    for qb in R4: A(f"v_max3_f32 v{M[qb]}, v{M[qb]}, v{s0(qb)+3}, v{s1(qb)}")
    for qb in R4: A(f"v_max3_f32 v{M[qb]}, v{M[qb]}, v{s1(qb)+1}, v{s1(qb)+2}")
    for qb in R4: A(f"v_max_f32 v{M[qb]}, v{M[qb]}, v{s1(qb)+3}")
    rest = [it for it in items]
    for it in rest:
        A(it[1]); nvm[0] += it[0]
        if len(it) > 2: pos[it[2]] = nvm[0]
    for sw in ("v_permlane32_swap_b32", "v_permlane16_swap_b32"):
        for qb in R4: A(f"v_mov_b32 v{ET[qb]}, v{M[qb]}")
        for qb in R4: A(f"{sw} v{M[qb]}, v{ET[qb]}")
        for qb in R4: A(f"v_max_f32 v{M[qb]}, v{M[qb]}, v{ET[qb]}")
    A(f"s_waitcnt vmcnt({nvm[0]-pos[2]})")
    A("s_barrier")
    MM = [PS(1, qb) + 3 for qb in R4]
    gr = kblock(1, 16384, lambda qb: S(1, qb)) + kblock(0, 32768, lambda qb: S(0, qb))
    ring = [RB, RC] + [RA, RB, RC] * 2 + [RA, RB]
    st, em = build(gr, ring, vfirst(0), opt, inflight=0)
    pre = []
    for qb in R4: pre.append(f"v_cvt_pk_bf16_f32 v{ET[qb]}, -v{M[qb]}, -v{M[qb]}")
    pre.append(f"v_lshlrev_b32 v{VT0}, 2, v{VL16}")
    for qb in R4: pre.append(f"v_lshlrev_b32 v{MM[qb]}, 16, v{ET[qb]}")
    pre.append("s_mov_b64 exec, 0xffff")
    for qb in R4: pre.append(f"v_bfi_b32 v{Q(qb,0)}, s{S_T}, v{ET[qb]}, v{Q(qb,0)}")
    for qb in R4: pre.append(f"v_xor_b32 v{M[qb]}, 0x80000000, v{MM[qb]}")
    for qb in R4: pre.append(f"buffer_store_dword v{M[qb]}, v{VT0}, s[{SRD_ML}:{SRD_ML+3}], s{S_ML} offen offset:{qb*1024}{opt.get('st','')}")
    pre.append("s_mov_b64 exec, -1")
    st.pre = st.pre[:-1] + [V(x) for x in pre] + st.pre[-1:]
    pc = opt.get('pcap', 4)
    mm = lambda qb: MM[qb]
    g, e0 = place_sm(st, dst[2], lambda qb: PS(1, qb), 0, 0, dead=lambda qb: 31 + 2 * qb, cap=pc, add=mm)
    g, _ = place_sm(st, dst[0], lambda qb: PS(0, qb), 0, g, cap=pc, add=mm)
    g, _ = place_sm(st, dst[1], lambda qb: PS(0, qb), 1, g, cap=pc, add=mm)
    g, _ = place_sm(st, lambda qb: S(1, qb), lambda qb: PS(1, qb), 1, g, ready=lambda qb: 28 + 2 * qb, cap=pc)
    if opt.get('verbose'): print("prologue sm ends", e0, g, st.stats(pc))
    o += em.emit(st.seq())
    T(7)


def gen_k2(opt=None):
    opt = opt or {}
    o = []
    A = o.append
    def T(i):
        if opt.get('timing'): A(f"s_memtime s[{74+2*i}:{75+2*i}]")
    A("s_load_dwordx2 s[4:5], s[0:1], %d" % KA_WS)
    if opt.get('timing'):
        A("s_load_dwordx2 s[60:61], s[0:1], %d" % KA_OUT)
        A("s_memtime s[62:63]")
        A("s_memrealtime s[64:65]")
    A("s_and_b32 s35, s2, 7")
    A("s_lshr_b32 s37, s2, 3")
    A("s_cmp_ge_u32 s37, 30")
    A("s_cbranch_scc1 LE_start")
    A("s_mul_i32 s38, s37, 52")
    A("s_lshr_b32 s38, s38, 8")
    A("s_mul_i32 s39, s38, 5")
    A("s_sub_u32 s39, s37, s39")
    A("s_mov_b32 s37, s38")
    A("s_mul_i32 s38, s35, 5")
    A("s_add_u32 s38, s38, s39")
    A("v_lshrrev_b32 v1, 6, v0")
    A(f"v_and_b32 v{VL16}, 63, v0")
    A(f"v_lshlrev_b32 v{VL16}, 4, v{VL16}")
    A(f"v_readfirstlane_b32 s{S_WAVE}, v1")
    cnts = opt.get('cnts', [52, 52, 52, 52, 52, 53])
    Ts = opt.get('Ts', [4 + (c & 1) for c in cnts])
    assert sum(cnts) == NT and len(cnts) == NSPLIT and all((c - t) % 2 == 0 for c, t in zip(cnts, Ts))
    stt = [sum(cnts[:i]) for i in range(NSPLIT + 1)]
    pk = sum(x << (9 * i) for i, x in enumerate(stt))
    A(f"s_mov_b32 s50, 0x{pk & 0xffffffff:x}")
    A(f"s_mov_b32 s51, 0x{pk >> 32:x}")
    A(f"s_mul_i32 s39, s{S_SPL}, 9")
    A(f"s_lshr_b64 s[50:51], s[50:51], s39")
    A(f"s_and_b32 s{S_FIRST}, s50, 0x1ff")
    A(f"s_bfe_u32 s{S_END}, s50, 0x90009")
    A(f"s_sub_u32 s{S_NT}, s{S_END}, s{S_FIRST}")
    A(f"s_lshl_b32 s50, s{S_SPL}, 2")
    A(f"s_lshr_b32 s59, 0x{sum(t << (4 * i) for i, t in enumerate(Ts)):x}, s50")
    A(f"s_and_b32 s59, s59, 15")
    A(f"s_sub_u32 s{S_CNT}, s{S_NT}, s59")
    A(f"s_lshr_b32 s{S_CNT}, s{S_CNT}, 1")
    A(f"s_sub_u32 s{S_CNT}, s{S_CNT}, 1")
    A(f"s_lshl_b32 s{S_FIRST}, s{S_FIRST}, 14")
    A(f"s_lshl_b32 s{S_END}, s{S_END}, 14")
    A(f"s_add_u32 s{S_OFF}, s{S_FIRST}, 0x4000")
    A(f"s_cmp_eq_u32 s{S_SPL}, {NSPLIT-1}")
    A(f"s_cselect_b32 s{S_MASK}, 0xff800000, 0")
    A(f"s_mov_b32 s{S_T}, 0xffff")
    A("v_and_b32 v2, 63, v0")
    A("v_bfe_u32 v3, v2, 3, 2")
    A("v_bfe_u32 v4, v2, 2, 1")
    A(f"v_lshlrev_b32 v{VDMA}, 12, v3")
    A(f"v_lshl_or_b32 v{VDMA}, v4, 9, v{VDMA}")
    A(f"v_lshl_or_b32 v{VDMA}, v1, 7, v{VDMA}")
    A("v_lshrrev_b32 v4, 5, v2")
    A(f"v_lshl_or_b32 v{VDMA}, v4, 6, v{VDMA}")
    A("v_and_b32 v3, 2, v3")
    A("v_and_b32 v4, 3, v2")
    A("v_xor_b32 v3, v3, v4")
    A(f"v_lshl_or_b32 v{VDMA}, v3, 4, v{VDMA}")
    A(f"s_cmp_eq_u32 s{S_QT}, 39")
    A("s_cbranch_scc1 LT_disp")
    A(f"s_lshl_b32 s{S_H}, s{S_WAVE}, 12")
    A(f"s_mov_b32 m0, s{S_H}")
    def srds():
        srd_from(o, SRD_Q, 4, QF_OFF, QF_BYTES)
        A(f"s_mul_i32 s35, s{S_SPL}, 0x{OP_STRIDE:x}")
        srd_from(o, SRD_OP, 4, OP_OFF, QF_BYTES, 35)
        srd_from(o, SRD_ML, 4, ML_OFF, NB16 * 1024)
        A(f"s_lshl_b32 s35, s{S_QT}, 4")
        A(f"s_lshl_b32 s41, s{S_WAVE}, 2")
        A(f"s_add_u32 s35, s35, s41")
        A(f"s_lshl_b32 s{S_QO}, s35, 13")
        A(f"s_lshl_b32 s{S_ML}, s35, 10")
        A(f"s_lshl_b32 s35, s{S_SPL}, 3")
        A(f"s_add_u32 s{S_ML}, s{S_ML}, s35")
    A("s_waitcnt lgkmcnt(0)")
    T(0)
    srd_from(o, SRD_K, 4, H_OFF, f"s{S_END}")
    for k in range(4):
        A(f"buffer_load_dwordx4 v{VDMA}, s[{SRD_K}:{SRD_K+3}], s{S_FIRST} offen offset:{k*1024} lds")
    A(f"s_add_u32 m0, s{S_H}, 0x4000")
    A("s_nop 0")
    for k in range(2): A(dma(k, {}).t)
    srds()
    for qb in range(1, 4): A(f"s_add_u32 s{S_QO+qb}, s{S_QO}, {qb*8192}")
    for qb in range(4): A(f"s_add_u32 s{S_QO+4+qb}, s{S_QO+qb}, 4096")
    A("s_mov_b32 s52, 0x71800000")
    A("s_mov_b32 s53, 0x0d800000")
    prologue(o, opt, T)
    if opt.get('timing'):
        A("s_memtime s[66:67]")
    need = sorted({((c - t) // 2 % 2, t) for c, t in zip(cnts, Ts)})
    A(".p2align 6")
    A("L2_loop:")
    o += body(0, opt)
    if any(p == 1 for p, _ in need): A("s_cbranch_scc1 L2_tail_1")
    o += body(1, opt)
    A("s_cbranch_scc0 L2_loop")
    for p in (0, 1):
        ts = [t for pp, t in need if pp == p]
        if not ts: continue
        A(f"L2_tail_{p}:")
        if opt.get('timing'): A("s_memtime s[68:69]")
        for t in ts[1:]:
            A(f"s_cmp_eq_u32 s59, {t}")
            A(f"s_cbranch_scc1 L2_tail_{p}_{t}")
        for t in ts:
            A(f"L2_tail_{p}_{t}:")
            o += tail(p, t, opt)
            T(9)
            A("s_branch L2_chk")
    A("L2_chk:")
    A("s_or_b64 vcc, vcc, s[50:51]")
    A("s_barrier")
    if opt.get('fslow'): A("s_mov_b64 vcc, -1")
    A("s_cbranch_vccz L2_fin")
    A("s_waitcnt vmcnt(0)")
    lds_addrs(A)
    A(f"v_and_b32 v{VDMA}, 0xfffffe7f, v{VDMA}")
    A(f"s_mul_i32 s36, s{S_WAVE}, 0xa000")
    light(o, opt, "LS", "s36", 2, 4)
    A("LT_disp:")
    A(f"s_cmp_eq_u32 s{S_WAVE}, 0")
    A("s_cbranch_scc1 LT_start")
    A(f"s_mov_b32 s{gen_eg.S_W}, s{S_WAVE}")
    A(f"s_mul_i32 s{gen_eg.S_B}, s{S_WAVE}, 6")
    A(f"s_add_u32 s{gen_eg.S_B}, s{gen_eg.S_B}, s{S_SPL}")
    A(f"s_add_u32 s{gen_eg.S_B}, s{gen_eg.S_B}, 42")
    A(f"s_cmp_lt_u32 s{gen_eg.S_B}, {NBK}")
    A("s_cbranch_scc1 LE_common")
    A("s_branch L2_end")
    A("LT_start:")
    if opt.get('lprio'): A(f"s_setprio {opt['lprio']}")
    A("s_waitcnt lgkmcnt(0)")
    srd_from(o, SRD_K, 4, H_OFF, f"s{S_END}")
    srds()
    lds_addrs(A)
    light(o, opt, "LT", 0x16000, 4, 1)
    gen_eg.gen_edge(o, dict(opt, light=1))
    A("L2_fin:")
    if opt.get('timing'):
        A("s_mov_b64 exec, -1")
        A("s_waitcnt vmcnt(0)")
        A("s_memtime s[70:71]")
        A("s_memrealtime s[72:73]")
        A("s_waitcnt lgkmcnt(0)")
        A("s_sub_u32 s66, s66, s62")
        A("s_sub_u32 s68, s68, s62")
        A("s_sub_u32 s70, s70, s62")
        for i in range(10):
            A(f"s_sub_u32 s{74+2*i}, s{74+2*i}, s62\nv_mov_b32 v{4+i}, s{74+2*i}")
        A("v_mov_b32 v14, s64\nv_mov_b32 v15, s72")
        A("s_sub_u32 s72, s72, s64")
        A("v_mov_b32 v0, s66\nv_mov_b32 v1, s68\nv_mov_b32 v2, s70\nv_mov_b32 v3, s72")
        A("s_mov_b32 s62, 0x100000\ns_mov_b32 s63, 0x00020000")
        A(f"s_lshl_b32 s35, s2, 2")
        A(f"s_add_u32 s35, s35, s{S_WAVE}")
        A(f"s_lshl_b32 s35, s35, 10")
        A(f"buffer_store_dwordx4 v[0:3], v{VL16}, s[60:63], s35 offen")
        A("s_add_u32 s35, s35, 0x200000\ns_mov_b32 s62, 0x800000")
        for k in range(3):
            A(f"buffer_store_dwordx4 v[{4+4*k}:{7+4*k}], v{VL16}, s[60:63], s35 offen")
            A("s_add_u32 s35, s35, 0x100000")
    A("L2_end:")
    return "\n".join(o)


def kernel_desc(opt=None):
    return dict(name="k2_kernel", body=gen_k2(opt), vgpr=512, accum=256, grid=256, block=256, lds=163840)

if __name__ == "__main__":
    import sys, json, hazard
    t = gen_k2(dict(json.loads(sys.argv[1]) if len(sys.argv) > 1 else {}, verbose=1, new=32, st=" sc1"))
    e = hazard.check(t, "k2")
    print("\n".join(e[:30])); print(len(e), "hazards;", len(t.split("\n")), "lines")
    open('k2f.s', 'w').write(t)
```

```python
from layout import *

def Q(qb, ds): return (qb * 8 + ds) * 4
S_BASE = [128, 144]
def S(h, qb): return S_BASE[h] + qb * 4
P_BASE = [160, 176]
def P(p, qb): return P_BASE[p] + qb * 4
def NEGM(qb): return 192 + qb * 4
RING = 4
def F(i): return 208 + (i % RING) * 4
LA = [224 + i for i in range(4)]
LB = [228 + i for i in range(4)]
ET = [232 + i for i in range(8)]
VK = 240
VTR = [249, 250]
VDMA = 241
VT0, VT1 = 242, 243
M = [244 + i for i in range(4)]
VLANE16 = 248
KB = [VK, 251, 252]
VSP = 253
RD = 254
def O(fb, qb): return (fb * 4 + qb) * 4

SRD_Q, SRD_K, SRD_OP, SRD_ML = 8, 12, 20, 24
S_OFF, S_M0, S_CNT, S_THR, S_MASK, S_WAVE, S_SITE = 28, 30, 31, 32, 33, 34, 36


def vr(b, n=4): return f"v[{b}:{b+n-1}]"
def ar(b, n=4): return f"a[{b}:{b+n-1}]"


class Seg:
    def __init__(self):
        self.mf = []
        self.gap = []
        self.pre = []

    def add_mfma(self, t):
        self.mf.append(t)
        self.gap.append([])

    def used(self, g):
        return sum(c for c, _ in self.gap[g])

    def put(self, g, text, cost=1):
        if g < 0:
            self.pre.append((cost, text))
        else:
            self.gap[g].append((cost, text))

    def fill(self, queue, g0, g1, cap=2):
        g = g0
        for cost, text in queue:
            while g < g1 and self.used(g) + cost > cap:
                g += 1
            self.gap[g].append((cost, text))
        return g

    def text(self):
        o = [t for _, t in self.pre]
        for m, gp in zip(self.mf, self.gap):
            o.append(m)
            o += [t for _, t in gp]
        return o


def foff(kb, c): return (c >> 1) * 4096 + kb * 2048 + (c & 1) * 512

def kread(off):
    return [lambda f: f"ds_read_b128 {vr(f)}, v{VK} offset:{off}"]

def vread(off, fb):
    return [lambda f, kb=kb: f"ds_read_b64_tr_b16 v[{f+2*kb}:{f+2*kb+1}], v{VTR[fb & 1]} offset:{off + foff(kb, fb >> 1)}" for kb in range(2)]


def qk_block(h, off, cinit):
    fr = []
    for ds in range(8):
        ms = []
        for qb in range(4):
            c = cinit(qb) if ds == 0 else vr(S(h, qb))
            ms.append(lambda f, qb=qb, ds=ds, c=c: f"v_mfma_f32_16x16x32_bf16 {vr(S(h,qb))}, {vr(f)}, {vr(Q(qb,ds))}, {c}")
        fr.append((kread(off + foff(h, ds)), ms))
    return fr


def pv_block(p, off, fb0):
    fr = []
    for fb in range(fb0, fb0 + 8):
        ms = []
        for qb in range(4):
            ms.append(lambda f, qb=qb, fb=fb: f"v_mfma_f32_16x16x32_bf16 {ar(O(fb,qb))}, {vr(f)}, {vr(P(p,qb))}, {ar(O(fb,qb))}")
        fr.append((vread(off, fb), ms))
    return fr


def build_seg(frags, next_reads):
    sg = Seg()
    n = len(frags)
    assert n % RING == 0
    rds = [r for r, _ in frags] + list(next_reads)
    for i, (_, ms) in enumerate(frags):
        for m in ms:
            sg.add_mfma(m(F(i)))
    issued = []
    for i in range(RING): issued += [i] * len(rds[i])
    def wait(g, i):
        last = max(k for k, x in enumerate(issued) if x == i)
        assert issued.count(i) == len(rds[i])
        sg.put(g, f"s_waitcnt lgkmcnt({len(issued) - 1 - last})")
    wait(-1, 0)
    for i in range(n):
        g = 4 * i + 3
        nxt = i + RING
        late = []
        if nxt < len(rds):
            r = rds[nxt]
            now = r[:1] if i + 1 < n else r
            late = r[len(now):]
            for x in now:
                sg.put(g, x(F(nxt))); issued.append(nxt)
        if i + 1 < n: wait(g, i + 1)
        for x in late:
            sg.put(g + 1, x(F(nxt))); issued.append(nxt)
    return sg


def softmax_queue(h, pn, site):
    lin, lout = (LA, LB) if h == 0 else (LB, LA)
    if callable(pn):
        pf = pn; P = lambda _, qb: pf(qb)
    else:
        P = globals()['P']
    q = []
    for qb in range(4):
        e = ET[(qb % 2) * 4:(qb % 2) * 4 + 4]
        s = S(h, qb)
        q.append((2, f"v_exp_f32 v{e[0]}, v{s}"))
        q.append((2, f"v_exp_f32 v{e[1]}, v{s+1}"))
        q.append((2, f"v_exp_f32 v{e[2]}, v{s+2}"))
        q.append((1, f"v_add_f32 v{lout[qb]}, v{lin[qb]}, v{e[0]}"))
        q.append((1, f"v_cvt_pk_bf16_f32 v{P(pn,qb)+2*h}, v{e[0]}, v{e[1]}"))
        q.append((2, f"v_exp_f32 v{e[3]}, v{s+3}"))
        q.append((1, f"v_add_f32 v{lout[qb]}, v{lout[qb]}, v{e[1]}"))
        q.append((1, f"v_add_f32 v{lout[qb]}, v{lout[qb]}, v{e[2]}"))
        q.append((1, f"v_add_f32 v{lout[qb]}, v{lout[qb]}, v{e[3]}"))
        q.append((1, f"v_cvt_pk_bf16_f32 v{P(pn,qb)+2*h+1}, v{e[2]}, v{e[3]}"))
    q.append((1, f"v_max3_f32 v{VT0}, v{lout[0]}, v{lout[1]}, v{lout[2]}"))
    q.append((1, f"v_max_f32 v{VT0}, v{VT0}, v{lout[3]}"))
    q.append((1, f"v_cmp_lt_f32 vcc, s{S_THR}, v{VT0}"))
    q.append((1, f"s_cbranch_vccnz L2_rare_site{site}\nL2_ret{site}:"))
    return q


def body(p, kind, sites, opt):
    B = p * 16384
    Bn = (1 - p) * 16384
    negm = lambda qb: vr(NEGM(qb))
    fr = pv_block(p, B, 0)
    if kind != 'tail1':
        fr += qk_block(1, Bn, negm)
    fr += pv_block(p, B, 8)
    if kind == 'loop':
        fr += qk_block(0, B, negm)
    nxt = [vread(Bn, i) for i in range(RING)] if kind != 'tail1' else []
    sg = build_seg(fr, nxt)
    if kind == 'loop':
        gb = opt.get('gbar', 81)
        gd = opt.get('gdma', [0, 1, 2, 5, 6])
        if not opt.get('nobar'):
            sg.put(gb, "s_waitcnt vmcnt(%d)" % sum(1 for x in gd[1:] if x < gb))
            sg.put(gb, "s_barrier")
        assert all(x != gb for x in gd) and gb < 83
        sg.put(gd[0], f"s_mov_b32 m0, s{S_M0}")
        for k in range(4):
            sg.put(gd[k + 1], f"buffer_load_dwordx4 v{VDMA}, s[{SRD_K}:{SRD_K+3}], s{S_OFF} offen offset:{k*1024}{opt.get('dl','')} lds")
        sg.put(125, f"s_add_u32 s{S_OFF}, s{S_OFF}, 0x4000")
        sg.put(125, f"s_add_u32 s{S_M0}, s{S_M0}, 0x4000")
        sg.put(122, f"s_sub_u32 s{S_CNT}, s{S_CNT}, 1")
        sg.put(126, f"s_and_b32 s{S_M0}, s{S_M0}, 0x1ffff")
        sg.put(126, f"s_cmp_eq_u32 s{S_CNT}, 0")
        if p == 0:
            sg.put(70, f"v_add_u32 v{VK}, 0x8000, v{VK}")
            sg.put(70, f"v_and_b32 v{VK}, 0x1ffff, v{VK}")
    if kind == 'tail2':
        sg.put(2, "s_waitcnt vmcnt(0)")
    if p == 1 and kind != 'tail1':
        g = 84 if kind == 'loop' else 81
        sg.put(g, f"v_add_u32 v{VTR[0]}, 0x8000, v{VTR[0]}")
        sg.put(g, f"v_and_b32 v{VTR[0]}, 0x1ffff, v{VTR[0]}")
        sg.put(g + 1, f"v_xor_b32 v{VTR[1]}, 32, v{VTR[0]}")
    if kind != 'tail1' and opt.get('valu', 1):
        def flt(q):
            if opt.get('nochk'): q = q[:-4] + [(0, q[-1][1].split("\n")[1])]
            if opt.get('noexp'): q = [(1, x.replace('v_exp_f32', 'v_mov_b32')) if 'v_exp' in x else (c, x) for c, x in q]
            return q
        g = sg.fill(flt(softmax_queue(0, 1 - p, sites[0])), opt.get('g0', 8), 71)
        if opt.get('verbose'): print(kind, p, "sm0 end", g)
        last = 124 if kind == 'loop' else len(sg.mf) - 1
        g = sg.fill(flt(softmax_queue(1, 1 - p, sites[1])), 72, last)
        if opt.get('verbose'): print(kind, p, "sm1 end", g, "over", [(i, sg.used(i)) for i in range(len(sg.mf)) if sg.used(i) > 2])
    return sg


def rare_code(p, h, sites, pt=None, live=None, spills=()):
    if pt is None:
        pt = lambda qb: P(1 - p, qb)
        live = [lambda qb: P(p, qb)]
    lin, lout = (LA, LB) if h == 0 else (LB, LA)
    o = []
    for st in sites:
        o.append(f"L2_rare_site{st}:")
        o.append(f"s_mov_b32 s{S_SITE}, {st}")
        o.append(f"s_branch L2_rare_{p}_{h}")
    o.append(f"L2_rare_{p}_{h}:")
    o.append("s_nop 15")
    o.append("s_nop 15")
    o.append("s_waitcnt lgkmcnt(0)")
    DL = ET[0:4]
    FF = ET[4:8]
    for qb in range(4):
        s = S(h, qb)
        d = DL[qb]
        o.append(f"v_log_f32 v{VT1}, v{lin[qb]}")
        o.append(f"v_max3_f32 v{d}, v{s}, v{s+1}, v{s+2}")
        o.append(f"v_max3_f32 v{d}, v{d}, v{s+3}, v{VT1}")
        o.append(f"v_mov_b32 v{VT1}, v{d}")
        o.append("s_nop 1")
        o.append(f"v_permlane32_swap_b32 v{d}, v{VT1}")
        o.append("s_nop 1")
        o.append(f"v_max_f32 v{d}, v{d}, v{VT1}")
        o.append(f"v_mov_b32 v{VT1}, v{d}")
        o.append("s_nop 1")
        o.append(f"v_permlane16_swap_b32 v{d}, v{VT1}")
        o.append("s_nop 1")
        o.append(f"v_max_f32 v{d}, v{d}, v{VT1}")
        o.append(f"v_ceil_f32 v{d}, v{d}")
        o.append(f"v_max_f32 v{d}, 0, v{d}")
        o.append(f"v_sub_f32 v{VT1}, 0, v{d}")
        o.append(f"v_exp_f32 v{FF[qb]}, v{VT1}")
        o.append("s_nop 1")
        o.append(f"v_mul_f32 v{lin[qb]}, v{lin[qb]}, v{FF[qb]}")
        o.append(f"v_add_f32 v{M[qb]}, v{M[qb]}, v{d}")
        for r in range(4):
            o.append(f"v_sub_f32 v{NEGM(qb)+r}, v{NEGM(qb)+r}, v{d}")
            o.append(f"v_sub_f32 v{S(0,qb)+r}, v{S(0,qb)+r}, v{d}")
            o.append(f"v_sub_f32 v{S(1,qb)+r}, v{S(1,qb)+r}, v{d}")
        regs = [f(qb) + r for f in live for r in range(4)] + ([] if h == 0 else [pt(qb) + r for r in range(2)])
        def scale(r):
            o.append(f"v_lshlrev_b32 v{VT0}, 16, v{r}")
            o.append(f"v_and_b32 v{VT1}, 0xffff0000, v{r}")
            o.append(f"v_mul_f32 v{VT0}, v{VT0}, v{FF[qb]}")
            o.append(f"v_mul_f32 v{VT1}, v{VT1}, v{FF[qb]}")
            o.append(f"v_cvt_pk_bf16_f32 v{r}, v{VT0}, v{VT1}")
        for r in regs: scale(r)
        for k in spills:
            for hh in range(2):
                off = k * 4096 + qb * 1024 + hh * 8
                o.append(f"ds_read_b64 v[{RD}:{RD+1}], v{VSP} offset:{off}")
                o.append("s_waitcnt lgkmcnt(0)")
                scale(RD); scale(RD + 1)
                o.append(f"ds_write_b64 v{VSP}, v[{RD}:{RD+1}] offset:{off}")
                o.append("s_waitcnt lgkmcnt(0)")
    for qb in range(4):
        s = S(h, qb)
        e = ET[0:4]
        for r in range(4):
            o.append(f"v_exp_f32 v{e[r]}, v{s+r}")
        o.append("s_nop 1")
        o.append(f"v_add_f32 v{lout[qb]}, v{lin[qb]}, v{e[0]}")
        for r in range(1, 4):
            o.append(f"v_add_f32 v{lout[qb]}, v{lout[qb]}, v{e[r]}")
        o.append(f"v_cvt_pk_bf16_f32 v{pt(qb)+2*h}, v{e[0]}, v{e[1]}")
        o.append(f"v_cvt_pk_bf16_f32 v{pt(qb)+2*h+1}, v{e[2]}, v{e[3]}")
    o.append("s_branch L2_rare_common")
    return o


def rare_common(all_sites):
    FF = ET[4:8]
    o = ["L2_rare_common:"]
    for fb in range(16):
        for qb in range(4):
            for r in range(4):
                a = O(fb, qb) + r
                t = ET[r]
                o.append(f"v_accvgpr_read_b32 v{t}, a{a}")
            for r in range(4):
                o.append(f"v_mul_f32 v{ET[r]}, v{ET[r]}, v{FF[qb]}")
            for r in range(4):
                o.append(f"v_accvgpr_write_b32 a{O(fb,qb)+r}, v{ET[r]}")
    o.append("s_nop 3")
    for st in all_sites[:-1]:
        o.append(f"s_cmp_eq_u32 s{S_SITE}, {st}")
        o.append(f"s_cbranch_scc1 L2_ret{st}")
    o.append(f"s_branch L2_ret{all_sites[-1]}")
    return o


def srd(o, d, off, nbytes, extra_sgpr=None):
    o.append(f"s_add_u32 s{d}, s4, 0x{off & 0xffffffff:x}")
    o.append(f"s_addc_u32 s{d+1}, s5, 0")
    if extra_sgpr is not None:
        o.append(f"s_add_u32 s{d}, s{d}, s{extra_sgpr}")
        o.append(f"s_addc_u32 s{d+1}, s{d+1}, 0")
    o.append(f"s_mov_b32 s{d+2}, 0x{nbytes:x}")
    o.append(f"s_mov_b32 s{d+3}, 0x00020000")


def epilogue(sg_tail, opt):
    conv = []
    for t in range(8):
        q = []
        for qb in range(4):
            st = (t * 4 + qb) * 4
            tmp = [128 + (qb % 2) * 8 + r for r in range(8)]
            for k in range(8):
                q.append((1, f"v_accvgpr_read_b32 v{tmp[k]}, a{O(2*t+k//4,qb)+k%4}"))
            for r in range(4):
                q.append((1, f"v_cvt_pk_bf16_f32 v{st+r}, v{tmp[2*r]}, v{tmp[2*r+1]}"))
            so = 40 + qb if t < 4 else 44 + qb
            q.append((1, f"buffer_store_dwordx4 {vr(st)}, v{VLANE16}, s[{SRD_OP}:{SRD_OP+3}], s{so} offen offset:{(t%4)*1024}{opt.get('st','')}"))
        conv.append(q)
    nm = len(sg_tail.mf)
    assert nm == 64
    for t in range(8):
        g0 = 8 * t + 12
        if g0 <= nm - 1:
            sg_tail.fill(conv[t], g0, min(g0 + 7, nm - 1), cap=7)
        else:
            sg_tail.put(nm - 1, "s_nop 7")
            for c, x in conv[t]:
                sg_tail.put(nm - 1, x, c)
    return sg_tail.text() + ml_store(opt)


def ml_store(opt):
    o = []
    for qb in range(4):
        l = LA[qb]
        o.append(f"v_mov_b32 v{VT1}, v{l}")
        o.append("s_nop 1")
        o.append(f"v_permlane32_swap_b32 v{l}, v{VT1}")
        o.append("s_nop 1")
        o.append(f"v_add_f32 v{l}, v{l}, v{VT1}")
        o.append(f"v_mov_b32 v{VT1}, v{l}")
        o.append("s_nop 1")
        o.append(f"v_permlane16_swap_b32 v{l}, v{VT1}")
        o.append("s_nop 1")
        o.append(f"v_add_f32 v{ET[2*qb+1]}, v{l}, v{VT1}")
        o.append(f"v_mov_b32 v{ET[2*qb]}, v{M[qb]}")
    o.append(f"v_lshlrev_b32 v{VT0}, 2, v{VLANE16}")
    o.append("s_mov_b64 exec, 0xffff")
    for qb in range(4):
        o.append(f"buffer_store_dwordx2 v[{ET[2*qb]}:{ET[2*qb+1]}], v{VT0}, s[{SRD_ML}:{SRD_ML+3}], s48 offen offset:{qb*1024}{opt.get('st','')}")
    return o


def tail_run(p, T, site0, opt):
    negm = lambda qb: vr(NEGM(qb))
    VB = [VTR, [Q(0, 3), Q(0, 3) + 1], [Q(0, 3) + 2, Q(0, 3) + 3]]
    nsp = max(T - 3, 0)
    def ploc(k, final=True):
        if k == T - 1: return lambda qb: Q(qb, 0)
        if k < nsp and final: return lambda qb, k=k: Q(qb, 1 + k)
        return lambda qb, k=k: P((p + k) & 1, qb)
    def kfr(k, h):
        i = (1 - p) + (k - 1)
        fr = []
        for ds in range(8):
            off = (i & 1) * 16384 + foff(h, ds)
            rd = [lambda f, off=off, i=i: f"ds_read_b128 {vr(f)}, v{KB[i >> 1]} offset:{off}"]
            ms = []
            for qb in range(4):
                c = negm(qb) if ds == 0 else vr(S(h, qb))
                ms.append(lambda f, qb=qb, ds=ds, c=c: f"v_mfma_f32_16x16x32_bf16 {vr(S(h,qb))}, {vr(f)}, {vr(Q(qb,ds))}, {c}")
            fr.append((rd, ms))
        return fr
    def vfr(k, fb, final=True):
        i = p + k
        rd = [lambda f, kb=kb: f"ds_read_b64_tr_b16 v[{f+2*kb}:{f+2*kb+1}], v{VB[i >> 1][fb & 1]} offset:{(i & 1) * 16384 + foff(kb, fb >> 1)}" for kb in range(2)]
        pl = ploc(k, final)
        ms = [lambda f, qb=qb: f"v_mfma_f32_16x16x32_bf16 {ar(O(fb,qb))}, {vr(f)}, {vr(pl(qb))}, {ar(O(fb,qb))}" for qb in range(4)]
        return (rd, ms)
    fr = [vfr(0, fb, False) for fb in range(4)]
    blocks = [(1, 1)] + [(k, h) for k in range(2, T) for h in range(2)]
    for k, h in blocks: fr += kfr(k, h)
    G = 4 * len(fr)
    lead = opt.get('lead', 44)
    order = []
    fb = 0
    while 4 * len(order) < lead or fb % 2:
        order += [(k, fb) for k in range(T - 1) if not (k == 0 and fb < 4)]
        fb += 1
    glast = G + 4 * len(order)
    order += [(T - 1, x) for x in range(fb)]
    for x in range(fb, 16):
        order += [(k, x) for k in range(T) if not (k == 0 and x < 4)]
    done = {}
    for i, (k, x) in enumerate(order): done[x] = G + 4 * i + 3
    fr += [vfr(k, x) for k, x in order]
    sg = build_seg(fr, [])
    nm = len(sg.mf)
    if opt.get('timing'):
        for i, gg in enumerate([30, 47, 111, G - 1, glast, (glast + nm) // 2, nm - 20]):
            sg.put(gg, f"s_memtime s[{74+2*i}:{75+2*i}]", 0)
    g = 0
    for k in range(3, T):
        sg.put(g, f"s_mov_b32 m0, s{S_M0}")
        for j in range(4):
            sg.put(g + 1 + j, f"buffer_load_dwordx4 v{VDMA}, s[{SRD_K}:{SRD_K+3}], s{S_OFF} offen offset:{j*1024} lds")
        if k + 1 < T:
            sg.put(g + 5, f"s_add_u32 s{S_OFF}, s{S_OFF}, 0x4000\ns_add_u32 s{S_M0}, s{S_M0}, 0x4000\ns_and_b32 s{S_M0}, s{S_M0}, 0x1ffff", 2)
        g += 6
    for k in range(2, T):
        gb = 16 + 32 * (2 * k - 3) - 15
        sg.put(gb, f"s_waitcnt vmcnt({4 * (T - 1 - k)})")
        sg.put(gb, "s_barrier")
    sg.put(1, f"v_add_u32 v{VSP}, s50, v{VLANE16}")
    for b in (1, 2):
        if 2 * b <= (1 - p) + (T - 2):
            sg.put(12 + b, f"v_add_u32 v{KB[b]}, 0x{0x8000*b:x}, v{VK}")
            sg.put(12 + b, f"v_and_b32 v{KB[b]}, 0x1ffff, v{KB[b]}")
    GL = G - 32
    for b in (1, 2):
        if 2 * b <= p + T - 1:
            sg.put(GL + 13 + b, f"v_add_u32 v{VB[b][0]}, 0x{0x8000*b:x}, v{VTR[0]}")
            sg.put(GL + 13 + b, f"v_and_b32 v{VB[b][0]}, 0x1ffff, v{VB[b][0]}")
            sg.put(GL + 16, f"v_xor_b32 v{VB[b][1]}, 32, v{VB[b][0]}")
    for k in range(nsp):
        gs = 16 if k == 0 else 16 + 32 * 2 * k
        for qb in range(4):
            sg.put(gs + qb, f"ds_write_b128 v{VSP}, {vr(ploc(k, False)(qb))} offset:{k*4096 + qb*1024}")
            sg.put(GL + 4 * (k + 2) + 1 + (qb & 1) + (qb >> 1) * 4, f"ds_read_b128 {vr(ploc(k)(qb))}, v{VSP} offset:{k*4096 + qb*1024}")
    rare = []
    sites = []
    sms = [(k, h) for k in range(1, T) for h in range(2)]
    cap = opt.get('tcap', 3)
    for i, (k, h) in enumerate(sms):
        st = site0 + i
        sites.append(st)
        g0 = 6 if i == 0 else 16 + 32 * i + (4 if i == len(sms) - 2 else 1)
        g1 = 16 + 32 * i + 31 if i < len(sms) - 1 else glast - 2
        q = softmax_queue(h, ploc(k, False), st)
        c = 2 if (i == 0 or i == len(sms) - 1) else cap
        ge = sg.fill(q[:-1], g0, g1, cap=c)
        sg.put(max(ge, g1 - 2) if i == len(sms) - 2 or i == 0 or (h == 0 and 1 <= k - 1 < nsp) else ge, q[-1][1])
        late = i >= len(sms) - 2
        live = [ploc(j, late) for j in range(k) if late or j >= nsp or (j > 0 and i < 2 * j)]
        spl = [j for j in range(nsp) if j < k and not late and not (j > 0 and i < 2 * j)]
        rare += rare_code(f"t{p}_{i}", h, [st], ploc(k, False), live, spl)
        if opt.get('verbose'): print("tail", p, "sm", k, h, "end", ge, "of", g1, "live", [f(0) for f in live], "spill", spl)
    g = glast
    ccap = opt.get('ccap', 3)
    if opt.get('mle'):
        q = [(1, f"v_lshlrev_b32 v{VT0}, 2, v{VLANE16}")]
        for f in ("v_mov_b32 v{e}, v{l}", "v_permlane32_swap_b32 v{l}, v{e}", "v_add_f32 v{l}, v{l}, v{e}", "v_mov_b32 v{e}, v{l}",
                  "v_permlane16_swap_b32 v{l}, v{e}", "v_add_f32 v{e1}, v{l}, v{e}", "v_mov_b32 v{e}, v{m}"):
            q += [(1, f.format(e=ET[2*qb], e1=ET[2*qb+1], l=LA[qb], m=M[qb])) for qb in range(4)]
        q.append((3, "\n".join(ml_store(opt)[-5:] + ["s_mov_b64 exec, -1"])))
        g = sg.fill(q, g, nm - 1, cap=opt['mle'])
    for t in range(8):
        q = []
        for qb in range(4):
            stg = Q(qb, 4 + t % 4)
            tmp = [128 + (qb % 4) * 8 + r for r in range(8)]
            for k in range(8):
                q.append((1, f"v_accvgpr_read_b32 v{tmp[k]}, a{O(2*t+k//4,qb)+k%4}"))
            for r in range(4):
                q.append((1, f"v_cvt_pk_bf16_f32 v{stg+r}, v{tmp[2*r]}, v{tmp[2*r+1]}"))
            so = 40 + qb if t < 4 else 44 + qb
            q.append((1, f"buffer_store_dwordx4 {vr(stg)}, v{VLANE16}, s[{SRD_OP}:{SRD_OP+3}], s{so} offen offset:{(t%4)*1024}{opt.get('st','')}"))
        if opt.get('nost'): q = [x for x in q if 'store' not in x[1]]
        if opt.get('nocv'): q = [x for x in q if 'store' in x[1]]
        cc = ccap[t] if isinstance(ccap, list) else ccap
        px = opt.get('plainx', 4 * opt.get('plain', 8))
        q = [(c, x.replace(opt.get('st', ''), '') if (4 * t + i // 13 >= px if px >= 0 else 4 * t + i // 13 < -px) else x) for i, (c, x) in enumerate(q)]
        if opt.get('half'):
            qa = [x for i, x in enumerate(q) if i % 13 in (0, 1, 2, 3, 8, 9)]
            q = [x for i, x in enumerate(q) if i % 13 not in (0, 1, 2, 3, 8, 9)]
            g = sg.fill(qa, max(g, done[2*t] + 3), nm - 1, cap=cc)
        g0 = max(g, max(done[2*t], done[2*t+1]) + 3)
        if g0 > nm - 1:
            if not opt.get('half'): sg.put(nm - 1, "s_nop 7")
            g0 = nm - 1
        g = sg.fill(q, g0, nm - 1, cap=cc)
        if opt.get('verbose'): print("  conv", t, g0, g, "of", nm)
    return sg.text() + ([] if opt.get('mle') else ml_store(opt)), rare, sites


def light(o, opt, TT):
    A = o.append
    LB0 = 0x16000
    KF = 32; VF = 96; OV = lambda fb: 160 + fb * 4 if fb < 8 else 0
    QL = lambda ds: ds * 4
    KFr = lambda h, ds: 32 + (h * 8 + ds) * 4
    VFr = lambda fb: 96 + fb * 4
    SL = [160, 164]; PL = 168; MM, LL, FF, T0, T1 = 172, 173, 174, 175, 176
    AK, AV0, AV1 = 177, 178, 179
    TM = 180
    MK = NEGM(0)
    S_N, S_SL, S_DS, S_T = 51, 52, 53, 54
    A("LT_start:")
    A("s_waitcnt lgkmcnt(0)")
    srd(o, SRD_K, H_OFF, 0)
    A(f"s_mov_b32 s{SRD_K+2}, s49")
    srd(o, SRD_Q, QF_OFF, QF_BYTES)
    A(f"s_mov_b32 s40, {39 * 16 * 8192}")
    A(f"s_mov_b32 s44, {39 * 16 * 8192 + 4096}")
    for ds in range(8):
        A(f"buffer_load_dwordx4 {vr(QL(ds))}, v{VLANE16}, s[{SRD_Q}:{SRD_Q+3}], s{40 if ds < 4 else 44} offen offset:{(ds%4)*1024}")
    def dma(so):
        for w in range(4):
            A(f"s_add_u32 m0, s{S_DS}, {LB0 + w*4096}")
            A(f"s_add_u32 s{S_T}, s{so}, {w*128}")
            for k in range(4):
                A(f"buffer_load_dwordx4 v{VDMA}, s[{SRD_K}:{SRD_K+3}], s{S_T} offen offset:{k*1024} lds")
        A(f"s_add_u32 s{S_DS}, s{S_DS}, 0x4000")
        A(f"s_and_b32 s{S_DS}, s{S_DS}, 0xffff")
    A(f"s_mov_b32 s{S_DS}, 0")
    dma(39)
    for i in range(2):
        dma(S_OFF)
        A(f"s_add_u32 s{S_OFF}, s{S_OFF}, 0x4000")
    A(f"s_mul_i32 s35, s37, 0x{OP_STRIDE:x}")
    srd(o, SRD_OP, OP_OFF, QF_BYTES, 35)
    srd(o, SRD_ML, ML_OFF, NB16 * 1024)
    A(f"s_lshl_b32 s48, s37, 3")
    A(f"s_add_u32 s48, s48, {39 * 16 * 1024}")
    lds_addrs(A)
    A(f"s_add_u32 s{S_N}, s{S_CNT}, {TT or 2}")
    A(f"s_mov_b32 s{S_SL}, {LB0}")
    A(f"v_mov_b32 v{MM}, 0xff800000")
    A(f"v_mov_b32 v{LL}, 0")
    for r in range(64): A(f"v_accvgpr_write_b32 a{r}, 0")
    A("LT_loop:")
    dma(S_OFF)
    A(f"s_add_u32 s{S_OFF}, s{S_OFF}, 0x4000")
    A(f"v_add_u32 v{AK}, s{S_SL}, v{VK}")
    A(f"v_add_u32 v{AV0}, s{S_SL}, v{VTR[0]}")
    A(f"v_add_u32 v{AV1}, s{S_SL}, v{VTR[1]}")
    A(f"s_add_u32 s{S_SL}, s{S_SL}, 0x4000")
    A(f"s_cmp_eq_u32 s{S_SL}, {LB0 + 0x10000}")
    A(f"s_cselect_b32 s{S_SL}, {LB0}, s{S_SL}")
    A("s_waitcnt vmcnt(48)")
    for ds in range(8):
        for h in range(2):
            A(f"ds_read_b128 {vr(KFr(h, ds))}, v{AK} offset:{foff(h, ds)}")
    for ds in range(8):
        A(f"s_waitcnt lgkmcnt({14 - 2*ds})")
        for h in range(2):
            A(f"v_mfma_f32_16x16x32_bf16 {vr(SL[h])}, {vr(KFr(h, ds))}, {vr(QL(ds))}, {vr(SL[h]) if ds else vr(MK)}")
    for fb in range(16):
        for kb in range(2):
            A(f"ds_read_b64_tr_b16 v[{VFr(fb)+2*kb}:{VFr(fb)+2*kb+1}], v{AV1 if fb & 1 else AV0} offset:{foff(kb, fb >> 1)}")
    for r in range(4): A(f"v_mov_b32 v{MK+r}, 0")
    A("s_nop 7")
    A(f"v_max3_f32 v{T0}, v{SL[0]}, v{SL[0]+1}, v{SL[0]+2}")
    A(f"v_max3_f32 v{T0}, v{T0}, v{SL[0]+3}, v{SL[1]}")
    A(f"v_max3_f32 v{T0}, v{T0}, v{SL[1]+1}, v{SL[1]+2}")
    A(f"v_max3_f32 v{T0}, v{T0}, v{SL[1]+3}, v{MM}")
    for sw in ("v_permlane32_swap_b32", "v_permlane16_swap_b32"):
        A(f"v_mov_b32 v{T1}, v{T0}")
        A("s_nop 1")
        A(f"{sw} v{T0}, v{T1}")
        A("s_nop 1")
        A(f"v_max_f32 v{T0}, v{T0}, v{T1}")
    A(f"v_sub_f32 v{FF}, v{MM}, v{T0}")
    A(f"v_exp_f32 v{FF}, v{FF}")
    A(f"v_mov_b32 v{MM}, v{T0}")
    for r in range(8): A(f"v_sub_f32 v{SL[0]+r}, v{SL[0]+r}, v{MM}")
    for r in range(8): A(f"v_exp_f32 v{SL[0]+r}, v{SL[0]+r}")
    A(f"v_mul_f32 v{LL}, v{LL}, v{FF}")
    for r in range(4): A(f"v_cvt_pk_bf16_f32 v{PL+r}, v{SL[0]+2*r}, v{SL[0]+2*r+1}")
    A(f"v_cmp_neq_f32 vcc, 1.0, v{FF}")
    for r in range(8): A(f"v_add_f32 v{LL}, v{LL}, v{SL[0]+r}")
    A("s_cbranch_vccz LT_nors")
    for c in range(8):
        for r in range(8): A(f"v_accvgpr_read_b32 v{TM+r}, a{8*c+r}")
        for r in range(8): A(f"v_mul_f32 v{TM+r}, v{TM+r}, v{FF}")
        for r in range(8): A(f"v_accvgpr_write_b32 a{8*c+r}, v{TM+r}")
    A("LT_nors:")
    A("s_waitcnt lgkmcnt(0)")
    A("s_nop 1")
    for fb in range(16):
        A(f"v_mfma_f32_16x16x32_bf16 {ar(fb*4)}, {vr(VFr(fb))}, {vr(PL)}, {ar(fb*4)}")
    A(f"s_sub_u32 s{S_N}, s{S_N}, 1")
    A(f"s_cmp_lg_u32 s{S_N}, 0")
    A("s_cbranch_scc1 LT_loop")
    A("s_nop 15")
    for t in range(8):
        for r in range(8): A(f"v_accvgpr_read_b32 v{TM+r}, a{8*t+r}")
        for r in range(4): A(f"v_cvt_pk_bf16_f32 v{32+4*t+r}, v{TM+2*r}, v{TM+2*r+1}")
        A(f"buffer_store_dwordx4 {vr(32+4*t)}, v{VLANE16}, s[{SRD_OP}:{SRD_OP+3}], s{40 if t < 4 else 44} offen offset:{(t%4)*1024}{opt.get('st','')}")
    for sw in ("v_permlane32_swap_b32", "v_permlane16_swap_b32"):
        A(f"v_mov_b32 v{T1}, v{LL}")
        A("s_nop 1")
        A(f"{sw} v{LL}, v{T1}")
        A("s_nop 1")
        A(f"v_add_f32 v{LL}, v{LL}, v{T1}")
    A(f"v_lshlrev_b32 v{T0}, 2, v{VLANE16}")
    A("s_mov_b64 exec, 0xffff")
    A(f"buffer_store_dwordx2 v[{MM}:{LL}], v{T0}, s[{SRD_ML}:{SRD_ML+3}], s48 offen{opt.get('st','')}")
    A("s_waitcnt vmcnt(0)")
    A("s_branch L2_fin")


def lds_addrs(A):
    L = VLANE16
    A(f"v_bfe_u32 v{VK}, v{L}, 4, 3")
    A(f"v_lshlrev_b32 v{VK}, 6, v{VK}")
    A(f"v_bfe_u32 v{VT0}, v{L}, 7, 1")
    A(f"v_lshl_or_b32 v{VK}, v{VT0}, 10, v{VK}")
    A(f"v_bfe_u32 v{VT0}, v{L}, 8, 2")
    A(f"v_lshl_or_b32 v{VK}, v{VT0}, 4, v{VK}")
    A(f"v_bfe_u32 v{VT0}, v{L}, 6, 1")
    A(f"v_lshlrev_b32 v{VT0}, 5, v{VT0}")
    A(f"v_xor_b32 v{VK}, v{VK}, v{VT0}")
    A(f"v_and_b32 v{VTR[0]}, 0x1c0, v{L}")
    A(f"v_bfe_u32 v{VT0}, v{L}, 9, 1")
    A(f"v_lshl_or_b32 v{VTR[0]}, v{VT0}, 10, v{VTR[0]}")
    A(f"v_bfe_u32 v{VT0}, v{L}, 8, 1")
    A(f"v_lshl_or_b32 v{VTR[0]}, v{VT0}, 5, v{VTR[0]}")
    A(f"v_bfe_u32 v{VT0}, v{L}, 4, 2")
    A(f"v_lshl_or_b32 v{VTR[0]}, v{VT0}, 3, v{VTR[0]}")
    A(f"v_xor_b32 v{VTR[1]}, 32, v{VTR[0]}")
    A(f"v_bfe_i32 v{VT0}, v{L}, 8, 1")
    for r in range(4):
        A(f"v_and_b32 v{NEGM(0)+r}, s{S_MASK}, v{VT0}")


def prologue2(o, opt, T):
    A = o.append
    Z = ET[0]
    for r in range(4):
        A(f"v_mov_b32 v{Z+r}, 0")
    nvm = [6]
    qidx = {}
    zi = 0
    for ds in range(8):
        for qb in range(4):
            so = 40 + qb if ds < 4 else 44 + qb
            A(f"buffer_load_dwordx4 {vr(Q(qb,ds))}, v{VLANE16}, s[{SRD_Q}:{SRD_Q+3}], s{so} offen offset:{(ds%4)*1024}")
            nvm[0] += 1
            qidx[(ds, qb)] = nvm[0]
            if qb % 2 == 1:
                A(f"v_mfma_f32_32x32x16_bf16 a[{16*zi}:{16*zi+15}], {vr(Z)}, {vr(Z)}, 0")
                zi += 1
    T(1)
    lds_addrs(A)
    items = []
    dm = lambda k: (1, f"buffer_load_dwordx4 v{VDMA}, s[{SRD_K}:{SRD_K+3}], s{S_OFF} offen offset:{k*1024} lds")
    items += [dm(2), dm(3)]
    items.append((0, f"s_add_u32 s{S_OFF}, s{S_OFF}, 0x4000\ns_add_u32 m0, s{S_M0}, 0x8000\ns_nop 0"))
    items += [dm(k) for k in range(4)]
    items.append((0, f"s_add_u32 s{S_OFF}, s{S_OFF}, 0x4000\ns_add_u32 s{S_M0}, s{S_M0}, 0xc000"))
    spre = opt.get('spre', 0)
    while spre > 0:
        v, t = items.pop(0)
        A(t); nvm[0] += v; spre -= v
    T(2)
    A(f"s_waitcnt vmcnt({nvm[0]-6})")
    A("s_barrier")
    T(3)
    TB = P_BASE[1]
    dst = [S_BASE[0], S_BASE[1], TB]
    fr = []
    for ds in range(8):
        for b in range(3):
            ms = []
            for qb in range(4):
                d = vr(dst[b] + 4 * qb)
                c0 = vr(NEGM(0)) if b < 2 else '0'
                ms.append(lambda f, qb=qb, ds=ds, d=d, c0=c0: f"v_mfma_f32_16x16x32_bf16 {d}, {vr(f)}, {vr(Q(qb,ds))}, {d if ds else c0}")
            fr.append((kread((b >> 1) * 16384 + foff(b & 1, ds)), ms))
    for i in range(RING):
        A(fr[i][0][0](F(i)))
    sg = build_seg(fr, [])
    per = opt.get('sper', 3)
    for ds in range(8):
        g = 12 * ds - 1
        sg.put(g, f"s_waitcnt vmcnt({nvm[0]-qidx[(ds,3)]})")
        k = 0
        gg = g + 2
        while items and (k < per or ds == 7):
            v, t = items.pop(0)
            sg.put(min(gg, 95), t); nvm[0] += v; k += v; gg += 2
    o += sg.text()
    T(6)
    R4 = range(4)
    s0 = lambda qb: S(0, qb)
    s1 = lambda qb: S(1, qb)
    for qb in R4: A(f"v_max3_f32 v{M[qb]}, v{s0(qb)}, v{s0(qb)+1}, v{s0(qb)+2}")
    for qb in R4: A(f"v_max3_f32 v{M[qb]}, v{M[qb]}, v{s0(qb)+3}, v{s1(qb)}")
    for qb in R4: A(f"v_max3_f32 v{M[qb]}, v{M[qb]}, v{s1(qb)+1}, v{s1(qb)+2}")
    for qb in R4: A(f"v_max_f32 v{M[qb]}, v{M[qb]}, v{s1(qb)+3}")
    for sw in ("v_permlane32_swap_b32", "v_permlane16_swap_b32"):
        for qb in R4: A(f"v_mov_b32 v{ET[qb]}, v{M[qb]}")
        for qb in R4: A(f"{sw} v{M[qb]}, v{ET[qb]}")
        for qb in R4: A(f"v_max_f32 v{M[qb]}, v{M[qb]}, v{ET[qb]}")
    for h in range(2):
        for qb in R4:
            for r in R4: A(f"v_sub_f32 v{S(h,qb)+r}, v{S(h,qb)+r}, v{M[qb]}")
            for r in R4: A(f"v_exp_f32 v{S(h,qb)+r}, v{S(h,qb)+r}")
            if h == 0:
                for r in R4: A(f"v_sub_f32 v{NEGM(qb)+r}, 0, v{M[qb]}")
        if h == 0:
            A("s_waitcnt vmcnt(4)")
            A("s_barrier")
            for i in range(RING):
                for x in vread(0, i): A(x(F(i)))
    T(7)
    for h in range(2):
        for qb in R4:
            s = S(h, qb)
            A(f"v_cvt_pk_bf16_f32 v{P(0,qb)+2*h}, v{s}, v{s+1}")
            A(f"v_cvt_pk_bf16_f32 v{P(0,qb)+2*h+1}, v{s+2}, v{s+3}")
    for qb in R4: A(f"v_add_f32 v{LA[qb]}, v{s0(qb)}, v{s0(qb)+1}")
    for qb in R4: A(f"v_add_f32 v{LB[qb]}, v{s0(qb)+2}, v{s0(qb)+3}")
    for r in R4:
        for qb in R4:
            t = LA if r % 2 == 0 else LB
            A(f"v_add_f32 v{t[qb]}, v{t[qb]}, v{s1(qb)+r}")
    for qb in R4: A(f"v_add_f32 v{LA[qb]}, v{LA[qb]}, v{LB[qb]}")
    for qb in R4:
        for r in R4: A(f"v_sub_f32 v{s0(qb)+r}, v{TB+4*qb+r}, v{M[qb]}")


def gen_k2(opt=None):
    opt = opt or {}
    o = []
    A = o.append
    def T(i):
        if opt.get('timing'): A(f"s_memtime s[{74+2*i}:{75+2*i}]")
    A("s_load_dwordx2 s[4:5], s[0:1], %d" % KA_WS)
    if opt.get('timing'):
        A("s_load_dwordx2 s[60:61], s[0:1], %d" % KA_OUT)
        A("s_memtime s[62:63]")
        A("s_memrealtime s[64:65]")
    A("s_and_b32 s35, s2, 7")
    A("s_lshr_b32 s37, s2, 3")
    A("s_cmp_ge_u32 s37, 30")
    A("s_cbranch_scc1 LE_start")
    if opt.get('map', 1) == 1:
        A("s_mul_i32 s38, s37, 52")
        A("s_lshr_b32 s38, s38, 8")
        A("s_mul_i32 s39, s38, 5")
        A("s_sub_u32 s39, s37, s39")
        A("s_mov_b32 s37, s38")
        A("s_mul_i32 s38, s35, 5")
        A("s_add_u32 s38, s38, s39")
    else:
        A("s_mul_i32 s38, s37, 26")
        A("s_lshr_b32 s38, s38, 8")
        A("s_mul_i32 s39, s38, 10")
        A("s_sub_u32 s39, s37, s39")
        A("s_and_b32 s37, s35, 1")
        A("s_mul_i32 s37, s37, 3")
        A("s_add_u32 s37, s37, s38")
        A("s_lshr_b32 s38, s35, 1")
        A("s_mul_i32 s38, s38, 10")
        A("s_add_u32 s38, s38, s39")
    A("v_lshrrev_b32 v1, 6, v0")
    A(f"v_and_b32 v{VLANE16}, 63, v0")
    A(f"v_lshlrev_b32 v{VLANE16}, 4, v{VLANE16}")
    A(f"v_readfirstlane_b32 s{S_WAVE}, v1")
    cnts = opt.get('cnts', [52, 52, 52, 52, 52, 53])
    assert sum(cnts) == NT and len(cnts) == NSPLIT
    st = [sum(cnts[:i]) for i in range(NSPLIT)] + [NT - 1]
    pk = sum(x << (9 * i) for i, x in enumerate(st))
    A(f"s_mov_b32 s50, 0x{pk & 0xffffffff:x}")
    A(f"s_mov_b32 s51, 0x{pk >> 32:x}")
    A(f"s_mul_i32 s39, s37, 9")
    A(f"s_lshr_b64 s[50:51], s[50:51], s39")
    A(f"s_and_b32 s39, s50, 0x1ff")
    A(f"s_bfe_u32 s49, s50, 0x90009")
    A(f"s_sub_u32 s{S_CNT}, s49, s39")
    TT = opt.get('trun', 0)
    A(f"s_sub_u32 s{S_CNT}, s{S_CNT}, {TT or 2}")
    A(f"s_lshl_b32 s39, s39, 14")
    A(f"s_lshl_b32 s49, s49, 14")
    A(f"s_add_u32 s{S_OFF}, s39, 0x4000")
    A(f"s_cmp_eq_u32 s37, {NSPLIT-1}")
    A(f"s_addc_u32 s{S_CNT}, s{S_CNT}, 0")
    A(f"s_cmp_eq_u32 s37, {NSPLIT-1}")
    A(f"s_cselect_b32 s{S_OFF}, s39, s{S_OFF}")
    A(f"s_cselect_b32 s39, {(NT-1)*16384}, s39")
    A(f"s_cselect_b32 s49, {NT*16384}, s49")
    A(f"s_cselect_b32 s{S_MASK}, 0xff800000, 0")
    A(f"s_mov_b32 s{S_THR}, 0x5d800000")
    A("v_and_b32 v2, 63, v0")
    A("v_bfe_u32 v3, v2, 3, 2")
    A("v_bfe_u32 v4, v2, 2, 1")
    A(f"v_lshlrev_b32 v{VDMA}, 12, v3")
    A(f"v_lshl_or_b32 v{VDMA}, v4, 9, v{VDMA}")
    A(f"v_lshl_or_b32 v{VDMA}, v1, 7, v{VDMA}")
    A("v_lshrrev_b32 v4, 5, v2")
    A(f"v_lshl_or_b32 v{VDMA}, v4, 6, v{VDMA}")
    A("v_and_b32 v3, 2, v3")
    A("v_and_b32 v4, 3, v2")
    A("v_xor_b32 v3, v3, v4")
    A(f"v_lshl_or_b32 v{VDMA}, v3, 4, v{VDMA}")
    if opt.get('light'):
        A("s_cmp_eq_u32 s38, 39")
        A("s_cbranch_scc1 LT_disp")
    A(f"s_lshl_b32 s{S_M0}, s{S_WAVE}, 12")
    A(f"s_lshl_b32 s50, s{S_WAVE}, 13")
    A(f"s_add_u32 s50, s50, 0x20000")
    A(f"s_mov_b32 m0, s{S_M0}")
    A("s_waitcnt lgkmcnt(0)")
    T(0)
    srd(o, SRD_K, H_OFF, 0)
    A(f"s_mov_b32 s{SRD_K+2}, s49")
    for k in range(4):
        A(f"buffer_load_dwordx4 v{VDMA}, s[{SRD_K}:{SRD_K+3}], s39 offen offset:{k*1024} lds")
    A(f"s_add_u32 m0, s{S_M0}, 0x4000")
    srd(o, SRD_Q, QF_OFF, QF_BYTES)
    for k in range(2):
        A(f"buffer_load_dwordx4 v{VDMA}, s[{SRD_K}:{SRD_K+3}], s{S_OFF} offen offset:{k*1024} lds")
    A(f"s_mul_i32 s35, s37, 0x{OP_STRIDE:x}")
    srd(o, SRD_OP, OP_OFF, QF_BYTES, 35)
    srd(o, SRD_ML, ML_OFF, NB16 * 1024)
    A(f"s_lshl_b32 s35, s38, 4")
    A(f"s_lshl_b32 s41, s{S_WAVE}, 2")
    A(f"s_add_u32 s35, s35, s41")
    A(f"s_lshl_b32 s40, s35, 13")
    for qb in range(1, 4):
        A(f"s_add_u32 s{40+qb}, s40, {qb*8192}")
    for qb in range(4):
        A(f"s_add_u32 s{44+qb}, s{40+qb}, 4096")
    A(f"s_lshl_b32 s48, s35, 10")
    A(f"s_lshl_b32 s35, s37, 3")
    A(f"s_add_u32 s48, s48, s35")
    prologue2(o, opt, T)
    A("s_nop 1")
    if opt.get('timing'):
        A("s_memtime s[66:67]")
        A("s_waitcnt lgkmcnt(0)")
    sites = {}
    n = 0
    for kind in ('loop', 'tail2'):
        for p in (0, 1):
            sites[(kind, p)] = (n, n + 1)
            n += 2
    rares = []; alls = list(range(4 if TT else n))
    A(".p2align 6")
    A("L2_loop:")
    o += body(0, 'loop', sites[('loop', 0)], opt).text()
    A("s_cbranch_scc1 L2_tail_1")
    o += body(1, 'loop', sites[('loop', 1)], opt).text()
    A("s_cbranch_scc0 L2_loop")
    for p in (0, 1):
        A(f"L2_tail_{p}:")
        if opt.get('timing'):
            A("s_memtime s[68:69]")
            A("s_waitcnt lgkmcnt(0)")
        if TT:
            tl, rr, ss = tail_run(p, TT, len(alls), opt)
            o += tl; rares += rr; alls += ss
        else:
            o += body(p, 'tail2', sites[('tail2', p)], opt).text()
            A("s_nop 1")
            T(8)
            o += epilogue(body(1 - p, 'tail1', None, opt), opt)
        T(9)
        A("s_branch L2_fin")
    if opt.get('valu', 1):
        for p in (0, 1):
            for h in (0, 1):
                o += rare_code(p, h, [sites[('loop', p)][h]] + ([] if TT else [sites[('tail2', p)][h]]))
        o += rares
        o += rare_common(alls)
    import gen_eg
    if opt.get('light'):
        A("LT_disp:")
        A(f"s_cmp_eq_u32 s{S_WAVE}, 0")
        A("s_cbranch_scc1 LT_start")
        A(f"s_mov_b32 s{gen_eg.S_W}, s{S_WAVE}")
        A(f"s_mul_i32 s{gen_eg.S_B}, s{S_WAVE}, 6")
        A(f"s_add_u32 s{gen_eg.S_B}, s{gen_eg.S_B}, s37")
        A(f"s_add_u32 s{gen_eg.S_B}, s{gen_eg.S_B}, 42")
        A(f"s_cmp_lt_u32 s{gen_eg.S_B}, {NBU}")
        A("s_cbranch_scc1 LE_common")
        A("s_branch L2_end")
        light(o, opt, TT)
    gen_eg.gen_edge(o, opt)
    A("L2_fin:")
    if opt.get('timing'):
        A("s_mov_b64 exec, -1")
        A("s_waitcnt vmcnt(0)")
        A("s_memtime s[70:71]")
        A("s_memrealtime s[72:73]")
        A("s_waitcnt lgkmcnt(0)")
        A("s_sub_u32 s66, s66, s62")
        A("s_sub_u32 s68, s68, s62")
        A("s_sub_u32 s70, s70, s62")
        for i in range(10):
            A(f"s_sub_u32 s{74+2*i}, s{74+2*i}, s62\nv_mov_b32 v{4+i}, s{74+2*i}")
        A("v_mov_b32 v14, s64\nv_mov_b32 v15, s72")
        A("s_sub_u32 s72, s72, s64")
        A("v_mov_b32 v0, s66\nv_mov_b32 v1, s68\nv_mov_b32 v2, s70\nv_mov_b32 v3, s72")
        A("s_mov_b32 s62, 0x100000\ns_mov_b32 s63, 0x00020000")
        A(f"s_lshl_b32 s35, s2, 2")
        A(f"s_add_u32 s35, s35, s{S_WAVE}")
        A(f"s_lshl_b32 s35, s35, 10")
        A(f"buffer_store_dwordx4 v[0:3], v{VLANE16}, s[60:63], s35 offen")
        A("s_add_u32 s35, s35, 0x200000\ns_mov_b32 s62, 0x800000")
        for k in range(3):
            A(f"buffer_store_dwordx4 v[{4+4*k}:{7+4*k}], v{VLANE16}, s[60:63], s35 offen")
            A("s_add_u32 s35, s35, 0x100000")
    A("L2_end:")
    return "\n".join(o)


def kernel_desc(opt=None):
    return dict(name="k2_kernel", body=gen_k2(opt), vgpr=512, accum=256, grid=256, block=256, lds=163840 if (opt or {}).get('trun', 0) > 3 or (opt or {}).get('light') else 131072)
```

```python
from layout import *

def gen_k3(opt=None):
    opt = opt or {}
    o = []
    A = o.append
    A("s_load_dwordx2 s[4:5], s[0:1], %d" % KA_X)
    A("s_load_dwordx2 s[6:7], s[0:1], %d" % KA_DEG)
    A("s_load_dwordx2 s[8:9], s[0:1], %d" % KA_OUT)
    A("s_load_dwordx2 s[10:11], s[0:1], %d" % KA_WS)
    if opt.get('map', 0):
        A("s_cmp_ge_u32 s2, 640")
        A("s_cbranch_scc1 L3_end")
        A("s_and_b32 s3, s2, 7")
        A("s_lshr_b32 s2, s2, 3")
        A("s_mul_i32 s3, s3, 80")
        A("s_add_u32 s2, s2, s3")
    A("s_cmp_ge_u32 s2, 625")
    A("s_cbranch_scc1 L3_end")
    A("v_and_b32 v1, 63, v0")
    A("v_lshrrev_b32 v2, 6, v0")
    A("v_bfe_u32 v5, v1, 1, 4")
    A("v_and_b32 v8, 1, v1")
    A("v_lshrrev_b32 v6, 5, v1")
    A("v_lshl_add_u32 v6, v2, 1, v6")
    A("v_lshlrev_b32 v4, 3, v5")
    A("v_lshrrev_b32 v3, 2, v5")
    A("v_lshl_add_u32 v3, v6, 2, v3")
    A("v_lshl_add_u32 v3, v3, 2, v8")
    A("v_and_b32 v7, 3, v5")
    A("v_lshl_add_u32 v3, v3, 2, v7")
    A("v_lshlrev_b32 v3, 4, v3")
    A("v_lshlrev_b32 v7, 1, v5")
    A("v_lshlrev_b32 v5, 9, v5")
    A("v_lshl_add_u32 v5, v6, 6, v5")
    A("v_lshl_add_u32 v5, v8, 4, v5")
    HO = 32
    A("s_lshl_b32 s12, s2, 13")
    A("s_lshl_b32 s13, s2, 9")
    A("s_lshl_b32 s14, s2, 5")
    A("s_waitcnt lgkmcnt(0)")
    SX, SD, SO, SP, SM, SH = 16, 20, 24, 28, 32, 36
    srd_from(o, SM, 10, ML_OFF, (NSPLIT - 1) * ML_STRIDE + NB16 * 512)
    srd_from(o, SP, 10, OP_OFF, (NSPLIT - 1) * OP_STRIDE + QF_BYTES)
    ML = 8
    OPR = 20
    XR = 68; HR = 76; DG = 84
    for s in range(NSPLIT):
        A(f"s_add_u32 s{40+s}, s13, 0x{s*ML_STRIDE:x}")
        A(f"buffer_load_dwordx2 v[{ML+2*s}:{ML+2*s+1}], v4, {sr(SM)}, s{40+s} offen")
    for s in range(NSPLIT):
        A(f"s_add_u32 s{48+s}, s12, 0x{s*OP_STRIDE:x}")
        for h in range(2):
            A(f"buffer_load_dwordx4 {vr(OPR+(s*2+h)*4)}, v3, {sr(SP)}, s{48+s} offen offset:{h*128}")
    srd_from(o, SH, 10, HL_OFF, HL_BYTES)
    srd_from(o, SX, 4, 0, N * 512)
    srd_from(o, SD, 6, 0, N * 2)
    srd_from(o, SO, 8, 0, N * 512)
    for h in range(2):
        A(f"buffer_load_dwordx4 {vr(HR+4*h)}, v5, {sr(SH)}, s12 offen offset:{h*HO}")
    for h in range(2):
        A(f"buffer_load_dwordx4 {vr(XR+4*h)}, v5, {sr(SX)}, s12 offen offset:{h*HO}")
    A(f"buffer_load_ushort v{DG}, v7, {sr(SD)}, s14 offen")
    A("s_mov_b32 s15, 0xffff0000")
    A("s_waitcnt vmcnt(17)")
    m = lambda s: ML + 2 * s
    l = lambda s: ML + 2 * s + 1
    A(f"v_max3_f32 v1, v{m(0)}, v{m(1)}, v{m(2)}")
    A(f"v_max3_f32 v2, v{m(3)}, v{m(4)}, v{m(5)}")
    A(f"v_max_f32 v1, v1, v2")
    for s in range(NSPLIT):
        A(f"v_sub_f32 v{m(s)}, v{m(s)}, v1")
    for s in range(NSPLIT):
        A(f"v_exp_f32 v{m(s)}, v{m(s)}")
    A("s_nop 0")
    A(f"v_mul_f32 v2, v{m(0)}, v{l(0)}")
    for s in range(1, NSPLIT):
        A(f"v_fmac_f32 v2, v{m(s)}, v{l(s)}")
    A("v_rcp_f32 v2, v2")
    A("s_nop 0")
    for s in range(NSPLIT):
        A(f"v_mul_f32 v{m(s)}, v{m(s)}, v2")
    ACC = 88
    T = 104
    n = 0
    for s in range(NSPLIT):
        for h in range(2):
            A(f"s_waitcnt vmcnt({16 - (s*2+h)})")
            r = OPR + (s * 2 + h) * 4
            for k in range(4):
                t = T + (n % 4) * 2; n += 1
                a = ACC + (k // 2) * 8 + (h * 2 + k % 2) * 2
                A(f"v_lshlrev_b32 v{t}, 16, v{r+k}")
                A(f"v_and_b32 v{t+1}, s15, v{r+k}")
                if s == 0:
                    A(f"v_pk_mul_f32 v[{a}:{a+1}], v[{t}:{t+1}], v[{m(s)}:{m(s)+1}] op_sel_hi:[1,0]")
                else:
                    A(f"v_pk_fma_f32 v[{a}:{a+1}], v[{t}:{t+1}], v[{m(s)}:{m(s)+1}], v[{a}:{a+1}] op_sel_hi:[1,0,1]")
    A("s_waitcnt vmcnt(0)")
    A(f"v_lshlrev_b32 v{DG}, 16, v{DG}")
    for h in range(2):
        for k in range(4):
            t = T + (n % 4) * 2; n += 1
            a = ACC + h * 8 + k * 2
            A(f"v_lshlrev_b32 v{t}, 16, v{HR+4*h+k}")
            A(f"v_and_b32 v{t+1}, s15, v{HR+4*h+k}")
            A(f"v_pk_fma_f32 v[{a}:{a+1}], v[{t}:{t+1}], v[{DG}:{DG+1}], v[{a}:{a+1}] op_sel_hi:[1,0,1]")
            t = T + (n % 4) * 2; n += 1
            A(f"v_lshlrev_b32 v{t}, 16, v{XR+4*h+k}")
            A(f"v_and_b32 v{t+1}, s15, v{XR+4*h+k}")
            A(f"v_pk_add_f32 v[{a}:{a+1}], v[{t}:{t+1}], v[{a}:{a+1}]")
            A(f"v_cvt_pk_bf16_f32 v{OPR+4*h+k}, v{a}, v{a+1}")
        A(f"buffer_store_dwordx4 {vr(OPR+4*h)}, v5, {sr(SO)}, s12 offen offset:{h*HO}")
    A("L3_end:")
    return "\n".join(o)


def kernel_desc(opt=None):
    return dict(name="k3_kernel", body=gen_k3(opt), vgpr=112, accum=112, grid=640 if (opt or {}).get('map') else 625, block=256, lds=0)
```

```python
import re
REG = re.compile(r'\b([vas])(\d+)\b|\b([vas])\[(\d+):(\d+)\]|\b(vcc|exec|m0|scc)\b')
TRANS = ('v_exp_f32', 'v_log_f32', 'v_rcp_f32', 'v_rsq_f32', 'v_sqrt_f32', 'v_sin_f32', 'v_cos_f32')

def regs(op):
    out = set()
    for m in REG.finditer(op):
        if m.group(1):
            out.add((m.group(1), int(m.group(2))))
        elif m.group(3):
            for i in range(int(m.group(4)), int(m.group(5)) + 1):
                out.add((m.group(3), i))
        else:
            n = m.group(6)
            if n == 'vcc':
                out.add(('s', 106)); out.add(('s', 107))
            elif n == 'exec':
                out.add(('s', 126)); out.add(('s', 127))
            elif n == 'm0':
                out.add(('s', 124))
    return out

def split_ops(s):
    ops, d, cur = [], 0, ''
    for ch in s:
        if ch == '[': d += 1
        if ch == ']': d -= 1
        if ch == ',' and d == 0:
            ops.append(cur.strip()); cur = ''
        else:
            cur += ch
    if cur.strip(): ops.append(cur.strip())
    return ops

class I:
    pass

def parse(line):
    line = line.split(';')[0].split('//')[0].strip()
    if not line or line.endswith(':') or line.startswith('.'):
        return None
    p = line.split(None, 1)
    i = I(); i.text = line; i.op = p[0]
    ops = split_ops(p[1]) if len(p) > 1 else []
    i.ops = ops
    op = i.op
    i.mfma = op.startswith('v_mfma')
    i.valu = op.startswith('v_') and not i.mfma
    i.vmem = op.startswith('buffer_') or op.startswith('global_')
    i.ds = op.startswith('ds_')
    i.salu = op.startswith('s_')
    i.lds_dma = i.vmem and re.search(r'\blds\b', line) is not None
    i.dpp = 'dpp' in line or 'row_' in line or 'quad_perm' in line
    i.ws = 1
    if op == 's_nop':
        i.ws = int(ops[0], 0) + 1
    nd = 1
    if op.startswith(('buffer_store', 'global_store', 's_cmp', 's_bitcmp', 's_cbranch', 's_branch', 's_waitcnt', 's_barrier', 's_nop', 's_endpgm', 's_setprio', 's_sleep', 's_setpc')) or i.lds_dma:
        nd = 0
    if i.ds and not (op.startswith('ds_read') or 'rtn' in op or 'permute' in op or 'swizzle' in op):
        nd = 0
    if op.startswith(('buffer_atomic', 'global_atomic')):
        nd = 0
    i.dst = set(); i.src = set()
    for k, o in enumerate(ops):
        r = regs(o)
        if k < nd: i.dst |= r
        else: i.src |= r
    if 'swap' in op and i.valu:
        i.dst |= regs(ops[1]); i.src |= regs(ops[0])
    if op.startswith(('v_cndmask_b32', 'v_addc', 'v_subb')) and len(ops) == 3:
        i.src |= regs('vcc')
    if op.startswith('v_fmac') or op.startswith('v_dot2c') or op.startswith('v_writelane'):
        i.src |= i.dst
    if op.startswith(('v_add_co', 'v_sub_co')):
        i.dst |= regs(ops[1]); i.src -= regs(ops[1])
    if op.startswith('s_and_saveexec') or op.startswith('s_or_saveexec'):
        i.dst |= regs('exec')
    if i.mfma:
        i.A = regs(ops[1]); i.B = regs(ops[2]); i.C = regs(ops[3]); i.Dtxt = ops[0]; i.Ctxt = ops[3]
        i.passes = 8 if '32x32' in op else 4
    if op.startswith(('buffer_store_dwordx4', 'buffer_store_dwordx3', 'global_store_dwordx4')):
        i.wide = regs(ops[0]) if op.startswith('buffer') else regs(ops[1])
    else:
        i.wide = set()
    return i

def check(text, name=''):
    ins = [x for x in (parse(l) for l in text.split('\n')) if x]
    errs = []
    for n, c in enumerate(ins):
        dist = 0
        for k in range(n - 1, max(-1, n - 24), -1):
            p = ins[k]
            need = 0; why = ''
            def req(v, w):
                nonlocal need, why
                if v > need: need, why = v, w
            if p.valu:
                vd = {r for r in p.dst if r[0] in 'va'}
                sd = {r for r in p.dst if r[0] == 's'}
                if c.mfma and vd & (c.A | c.B | c.C): req(2, 'valu->mfma')
                if p.op.startswith(TRANS) and c.valu and not c.op.startswith(TRANS) and vd & c.src: req(1, 'trans->valu')
                if p.op.startswith(TRANS) and (c.vmem or c.ds) and vd & c.src: req(1, 'trans->mem')
                if c.op.startswith(('v_readlane', 'v_readfirstlane')) and vd & c.src: req(1, 'valu->readlane')
                if c.op.startswith('v_permlane') and vd & (c.src | c.dst): req(2, 'valu->permlane')
                if c.dpp and vd & c.src: req(2, 'valu->dpp')
                if sd:
                    if c.vmem and sd & c.src: req(5, 'valu sgpr->vmem')
                    if c.valu and sd & c.src: req(2, 'valu sgpr->valu')
                    if c.op.startswith(('v_readlane', 'v_writelane')) and len(c.ops) > 2 and sd & regs(c.ops[2]): req(4, 'valu sgpr->lanesel')
            if p.mfma:
                D = p.dst
                big = 8 if p.passes == 4 else 12
                if c.mfma:
                    if D & (c.A | c.B): req(big, 'mfma D->A/B')
                    if D & c.C and not (p.Dtxt == c.Ctxt and p.passes == c.passes): req(big - 2, 'mfma D->C overlap')
                    if D & c.dst and not (p.Dtxt == c.Ctxt): req(big, 'mfma WAW mfma')
                elif (c.valu or c.vmem or c.ds) and D & (c.src | c.dst): req(big, 'mfma D->use')
                if c.valu and p.C & c.dst: req(3 if p.passes == 4 else 7, 'mfma C WAR')
            if p.wide and (c.valu or c.mfma) and p.wide & c.dst: req(2, 'store data WAR')
            if p.salu and ('s', 124) in p.dst and c.lds_dma: req(1, 'm0->lds dma')
            if need > dist:
                errs.append(f"{name}: {why}: need {need} have {dist}\n    {p.text}\n    {c.text}")
            dist += p.ws
            if dist >= 20: break
    return errs

def fix(lines):
    out = []
    for l in lines:
        for t in l.split('\n'):
            c = parse(t)
            if c is not None:
                while True:
                    win = [x for x, p in out[-24:] if p is not None] + [t]
                    e = [m for m in check_last(win)]
                    if not e: break
                    need = max(e)
                    out.append((f"s_nop {need-1}", parse(f"s_nop {need-1}")))
            out.append((t, c))
    return [t for t, _ in out]

def check_last(win):
    errs = check("\n".join(win[:-1]))
    errs2 = check("\n".join(win))
    new = errs2[len(errs):]
    return [int(re.search(r'need (\d+) have (\d+)', m).group(1)) - int(re.search(r'need (\d+) have (\d+)', m).group(2)) for m in new]
```

```python
N = 10000
D = 256
E = 160000
NB16 = 626
NT = 313
FRAGBLK = 8192
QF_OFF = 0
KF_OFF = 8 << 20
VF_OFF = 16 << 20
ME_OFF = 104 << 20
H_OFF = ME_OFF
WF_OFF = 16 << 20
OP_OFF = 32 << 20
OP_STRIDE = 6 << 20
ML_OFF = 96 << 20
ML_STRIDE = 1 << 20
HL_OFF = 112 << 20
ECNT_OFF = 120 << 20
EDGE_OFF = 128 << 20
QF_BYTES = NB16 * FRAGBLK
KF_BYTES = NB16 * FRAGBLK
VF_BYTES = NT * 16384
ME_BYTES = N * 512
HL_BYTES = N * 512
NSPLIT = 6
NQT = 40
K1_WGS = 256
EPW = E // K1_WGS
NBK = 64
BN = 157
BMAGIC, BSHIFT = 6679, 20
NEW = 16
ECAP = 10240
ECNT_BYTES = NBK * NEW * 4
EDGE_BYTES = NBK * NEW * ECAP * 4
assert all((d * BMAGIC) >> BSHIFT == d // BN for d in range(N)) and NBK * BN >= N
KA_X, KA_SRC, KA_DST, KA_DEG, KA_WMSG, KA_WQ, KA_WK, KA_WV, KA_WOUT, KA_OUT, KA_DBG, KA_WS = [8 * i for i in range(12)]


def vr(b, n=4): return f"v[{b}:{b+n-1}]"
def ar(b, n=4): return f"a[{b}:{b+n-1}]"
def sr(b, n=4): return f"s[{b}:{b+n-1}]"


class Seg:
    def __init__(self):
        self.mf = []
        self.gap = []
        self.pre = []

    def add_mfma(self, t):
        self.mf.append(t)
        self.gap.append([])

    def used(self, g):
        return sum(c for c, _ in self.gap[g])

    def put(self, g, text, cost=1):
        if g < 0:
            self.pre.append((cost, text))
        else:
            self.gap[g].append((cost, text))

    def fill(self, queue, g0, g1, cap=2):
        g = g0
        for cost, text in queue:
            while g < g1 and self.used(g) + cost > cap:
                g += 1
            self.gap[g].append((cost, text))
        return g

    def text(self):
        o = [t for _, t in self.pre]
        for m, gp in zip(self.mf, self.gap):
            o.append(m)
            o += [t for _, t in gp]
        return o


def srd_from(o, d, plo, off, nbytes, extra_sgpr=None):
    o.append(f"s_add_u32 s{d}, s{plo}, 0x{off & 0xffffffff:x}")
    o.append(f"s_addc_u32 s{d+1}, s{plo+1}, 0")
    if extra_sgpr is not None:
        o.append(f"s_add_u32 s{d}, s{d}, s{extra_sgpr}")
        o.append(f"s_addc_u32 s{d+1}, s{d+1}, 0")
    if isinstance(nbytes, str):
        o.append(f"s_mov_b32 s{d+2}, {nbytes}")
    else:
        o.append(f"s_mov_b32 s{d+2}, 0x{nbytes:x}")
    o.append(f"s_mov_b32 s{d+3}, 0x00020000")
```

```python
class Ins:
    __slots__ = ('t', 'cost', 'cls', 'tag', 'needs')
    def __init__(self, t, cost=1, cls=None, tag=None, needs=()):
        self.t, self.cost, self.cls, self.tag, self.needs = t, cost, cls, tag, tuple(needs)

def V(t, cost=1, needs=()): return Ins(t, cost, needs=needs)
def LD(t, tag=None, needs=()): return Ins(t, 1, 'lgkm', tag, needs)
def VM(t, tag=None, needs=()): return Ins(t, 1, 'vm', tag, needs)
def W(*tags): return Ins(None, 1, needs=tags)

class Stream:
    def __init__(self):
        self.pre = []
        self.mf = []
        self.gap = []
    def n(self): return len(self.mf)
    def mfma(self, t, needs=()):
        self.mf.append(Ins(t, 0, needs=needs)); self.gap.append([]); return len(self.mf) - 1
    def used(self, g): return sum(i.cost for i in self.gap[g])
    def put(self, g, ins):
        if isinstance(ins, str): ins = V(ins)
        (self.pre if g < 0 else self.gap[g]).append(ins)
    def fill(self, queue, g0, g1=None, cap=2):
        if g1 is None: g1 = self.n() - 1
        g = g0
        for ins in queue:
            if isinstance(ins, int):
                g = min(g + ins, g1); continue
            if isinstance(ins, str): ins = V(ins)
            while g < g1 and self.used(g) + ins.cost > cap: g += 1
            self.gap[g].append(ins)
        return g
    def spread(self, groups, g0, g1):
        n = len(groups); e = g0
        for k, grp in enumerate(groups):
            g = max(g0 + (g1 - g0) * k // n, e)
            e = self.fill(grp, g, g1)
    def seq(self):
        o = list(self.pre)
        for m, gp in zip(self.mf, self.gap):
            o.append(m); o += gp
        return o
    def stats(self, cap=2):
        over = sum(max(0, self.used(g) - cap) for g in range(self.n() - 1))
        return dict(mfma=self.n(), units=sum(self.used(g) for g in range(self.n())), over=over, tail=self.used(self.n() - 1))

MAXC = {'lgkm': 15, 'vm': 63}
class Emitter:
    def __init__(self, split=0):
        self.cnt = {'lgkm': 0, 'vm': 0}; self.done = {'lgkm': 0, 'vm': 0}; self.pos = {}; self.o = []; self.auto = 0
        self.split = split; self.kind = []; self.vdone = set()
    def emit(self, seq):
        for ins in seq:
            if isinstance(ins, str): ins = V(ins)
            if ins.needs:
                w = {}
                for tag in ins.needs:
                    cls, idx = self.pos[tag]
                    if cls == 'vm' and self.split:
                        if idx not in self.vdone: w.setdefault('vs', []).append(idx)
                        continue
                    if idx >= self.done[cls]: w[cls] = max(w.get(cls, -1), idx)
                if w:
                    s = "s_waitcnt"
                    if 'vs' in w:
                        K = self.kind
                        yo = lambda i: sum(1 for j in range(i + 1, len(K)) if K[j] == K[i] or (K[i] and self.split == 1))
                        n = min(min(yo(i) for i in w['vs']), 63)
                        s += f" vmcnt({n})"
                        self.vdone |= {i for i in range(len(K)) if yo(i) >= n}
                    for cls in ('vm', 'lgkm'):
                        if cls in w:
                            n = min(self.cnt[cls] - 1 - w[cls], MAXC[cls])
                            s += f" {cls}cnt({n})"
                            self.done[cls] = self.cnt[cls] - n
                    self.o.append(s)
                    if ins.t is not None: self.auto += 1
            if ins.t is not None: self.o.append(ins.t)
            if ins.cls:
                if ins.tag is not None:
                    self.pos[ins.tag] = (ins.cls, self.cnt[ins.cls])
                self.cnt[ins.cls] += 1
                if ins.cls == 'vm': self.kind.append(ins.t.rstrip().endswith(' lds'))
        return self.o

def ring_build(st, frags, R, base, pair=True):
    F = lambda i: base + (i % R) * 4
    span = []; marks = {}
    for i, fr in enumerate(frags):
        a = st.n()
        if 'mark' in fr: marks[fr['mark']] = a
        for k, m in enumerate(fr['mf']):
            nd = [('f', i)] if fr['reads'] else []
            st.mfma(m(F(i)), needs=nd + list(fr.get('needs', ())))
        span.append((a, st.n() - 1))
    def issue(j, gaps):
        fr = frags[j]
        for x in fr.get('pre', ()): st.put(gaps[0], x)
        for k, r in enumerate(fr['reads']):
            st.put(gaps[min(k, len(gaps) - 1)], LD(r(F(j)), tag=('f', j) if k == len(fr['reads']) - 1 else None))
    for j in range(min(R - 1, len(frags))): issue(j, [-1])
    covered = -1
    def wait(i, g):
        nonlocal covered
        if i <= covered or i >= len(frags): return
        tags = [('f', i)] + list(frags[i].get('needs', ()))
        covered = i
        if pair and i + 1 < len(frags) and len(frags[i]['mf']) <= 2 and not frags[i + 1].get('needs') and not frags[i + 1].get('nopair'):
            tags.append(('f', i + 1)); covered = i + 1
        st.put(g, W(*tags))
    wait(0, -1)
    for i in range(len(frags)):
        a, b = span[i]
        j = i + R - 1
        if j < len(frags): issue(j, list(range(a, b + 1)))
        wait(i + 1, b)
    return marks, span
```

```python
import sys, os
here = os.path.dirname(os.path.abspath(__file__))
sys.path.insert(0, here)
import gen, hazard
DEFAULTS = {"k1": {"st": " sc1", "code_end": "L3_end", "late": 1, "npre": 2, "rc": 3, "nopk": 2}, "k2": {"map": 1, "sper": 2, "st": " sc1", "gdma": [52, 53, 57, 61, 65], "new": 32, "light": 1, "trun": 5, "half": 1, "mle": 3, "ccap": [3, 3, 3, 2, 2, 2, 2, 2], "cnts": [51, 51, 52, 53, 53, 53]}, "k3": {"map": 1, "d": 6, "order": "m3", "nopk": 1}}
DEFAULTS_F = {"st": " sc1", "new": 32, "mle": 3, "ccap": [3, 3, 3, 2, 2, 2, 2, 2]}
def kernels(opt=None):
    opt0 = opt or {}
    opt = {k: dict(v, **(opt0.get(k) or {})) for k, v in DEFAULTS.items()}
    if opt0.get('old') or opt0.get('emu1'): opt['k2']['new'] = 16
    if opt0.get('old'):
        del opt['k2']['gdma']
        import gen_k1, gen_k2, gen_k3
        return [gen_k1.kernel_desc(opt['k1']), gen_k2.kernel_desc(opt['k2']), gen_k3.kernel_desc(opt['k3'])]
    import gen_k2n
    if opt0.get('f0', 1):
        import gen_k2f as gen_k2n
        opt['k1']['f0'] = 1
        opt['k2'] = dict(DEFAULTS_F, **(opt0.get('k2') or {}))
    ks = []
    if opt0.get('nok3'): opt['k1']['code_end'] = 'L2_end'
    if opt0.get('emu1'):
        import gen_k1; ks.append(gen_k1.kernel_desc(opt['k1']))
    else:
        import gen_k1n; ks.append(gen_k1n.kernel_desc(opt['k1']))
    ks.append(gen_k2n.kernel_desc(opt['k2']))
    if not opt0.get('nok3'):
        import importlib; ks.append(importlib.import_module(opt0.get('k3mod', 'gen_k3n')).kernel_desc(opt['k3']))
    if opt0.get('rt'):
        for i, k in enumerate(ks): k['body'] = rt_wrap(k['body'], i)
    return ks
def rt_wrap(body, i):
    pre = "s_memrealtime s[96:97]\n"
    post = f"""
s_mov_b64 exec, 1
s_load_dwordx2 s[84:85], s[0:1], 88
s_waitcnt vmcnt(0)
s_memrealtime s[94:95]
s_getreg_b32 s88, hwreg(HW_REG_HW_ID)
s_waitcnt lgkmcnt(0)
s_add_u32 s84, s84, 0x{(220 + i) << 20:x}
s_addc_u32 s85, s85, 0
s_mov_b32 s86, 0x100000
s_mov_b32 s87, 0x00020000
s_and_b32 s88, s88, 0x3f
s_lshl_b32 s89, s2, 6
s_or_b32 s88, s88, s89
s_lshl_b32 s88, s88, 3
v_mov_b32 v0, s96
v_mov_b32 v1, s94
v_mov_b32 v2, 0
buffer_store_dwordx2 v[0:1], v2, s[84:87], s88 offen"""
    lines = body.split("\n")
    if lines[0].startswith("s_getpc"): return lines[0] + "\n" + pre + "\n".join(lines[1:]) + post
    return pre + body + post
if __name__ == "__main__":
    import json
    opt = json.loads(sys.argv[2]) if len(sys.argv) > 2 else {}
    ks = kernels(opt)
    for k in ks:
        e = hazard.check(k['body'], k['name'])
        assert not e, "\n".join(e)
    out = sys.argv[1] if len(sys.argv) > 1 else os.path.join(here, "..", "standalone__hybrid_graph_tf_graphgps__graph.s")
    open(out, "w").write(gen.build_file(ks))
    print("wrote", out, os.path.getsize(out))
```

```python
from layout import *
from sched import *
import gen_eg, hazard

MF = "v_mfma_f32_16x16x32_bf16"
def Q(qb, ds): return (qb * 8 + ds) * 4
def PS(sl, qb): return 128 + sl * 16 + qb * 4
def S(h, qb): return 192 + h * 16 + qb * 4
RA, RB, RC = 224, 232, 240
VK, VTR, VDMA, VL16, VT0, VT1, VT2 = 248, [249, 250], 251, 252, 253, 254, 255
def O(fb, qb): return (fb * 4 + qb) * 4
SRD_Q, SRD_K, SRD_OP, SRD_ML = 8, 12, 20, 24
S_OFF, S_H, S_CNT, S_T, S_MASK, S_WAVE, S_SPL, S_QT, S_FIRST, S_NT = 28, 30, 31, 32, 33, 34, 37, 38, 39, 29
S_QO, S_ML, S_END = 40, 48, 49


def foff(kb, c): return (c >> 1) * 4096 + kb * 2048 + (c & 1) * 512


def kgroup(h, d0, off, dst, vk=VK, chain=1):
    rd = [lambda r, u=u: f"ds_read_b128 {vr(r + 4 * u)}, v{vk} offset:{off + foff(h, d0 + u)}" for u in range(2)]
    od = [(qb, u) for qb in range(4) for u in range(2)] if chain else [(qb, u) for u in range(2) for qb in range(4)]
    mf = [lambda r, qb=qb, u=u: f"{MF} {vr(dst(qb))}, {vr(r + 4 * u)}, {vr(Q(qb, d0 + u))}, {vr(dst(qb)) if d0 + u else 0}" for qb, u in od]
    return dict(rd=rd, mf=mf)


def vgroup(frs, chain=1):
    rd = []
    for u, (fb, off, vt, _) in enumerate(frs):
        rd += [lambda r, u=u, kb=kb, fb=fb, off=off, vt=vt: f"ds_read_b64_tr_b16 v[{r+4*u+2*kb}:{r+4*u+2*kb+1}], v{vt[fb & 1]} offset:{off + foff(kb, fb >> 1)}" for kb in range(2)]
    same = frs[0][0] == frs[1][0] and chain
    od = [(qb, u) for qb in range(4) for u in range(2)] if same else [(qb, u) for u in range(2) for qb in range(4)]
    mf = [lambda r, qb=qb, u=u: f"{MF} {ar(O(frs[u][0], qb))}, {vr(r + 4 * u)}, {vr(frs[u][3](qb))}, {ar(O(frs[u][0], qb))}" for qb, u in od]
    return dict(rd=rd, mf=mf)


def kblock(h, off, dst, vk=VK, chain=1): return [kgroup(h, d, off, dst, vk, chain) for d in range(0, 8, 2)]


def build(groups, ring, nxt, opt, inflight=2):
    st = Stream()
    allg = list(groups) + list(nxt)
    for i, g in enumerate(groups):
        for m in g['mf']: st.mfma(m(ring[i]))
    em = Emitter()
    for i in range(min(inflight, len(allg))):
        em.cnt['lgkm'] += len(allg[i]['rd'])
        em.pos[('g', i)] = ('lgkm', em.cnt['lgkm'] - 1)
    for i in range(inflight, 2):
        for k, r in enumerate(allg[i]['rd']): st.put(-1, LD(r(ring[i]), tag=('g', i) if k == len(allg[i]['rd']) - 1 else None))
    st.put(-1, W(('g', 0)))
    rp = {2: opt.get('rpk', [0, 4]), 4: opt.get('rpv', [0, 2, 4, 6])}
    wp = opt.get('wp', 7)
    for i in range(len(groups)):
        j = i + 2
        if j < len(allg):
            rd = allg[j]['rd']
            late = groups[i].get('rlate', 0)
            for k, r in enumerate(rd):
                st.put(8 * i + max(rp[len(rd)][k], late), LD(r(ring[j]), tag=('g', j) if k == len(rd) - 1 else None))
        if i + 1 < len(groups): st.put(8 * i + wp, W(('g', i + 1)))
    return st, em


def place_sm(st, src, dst, h, g, ready=None, dead=None, cap=2, add=None, name=""):
    last = st.n() - 1
    def room(g, c):
        while g < last and st.used(g) + c > cap: g += 1
        return g
    def half(a, b):
        for x in range(a, min(b, last) + 1):
            if st.used(x) == cap - 1: return x
    end = g
    for qb in range(4):
        s = src(qb)
        if ready: g = max(g, ready(qb))
        if add:
            for r in range(4):
                g = room(g, 1); st.put(g, V(f"v_add_f32 v{s+r}, v{s+r}, v{add(qb)}"))
        ge = []
        for r in range(4):
            g = room(g, 2); st.put(g, V(f"v_exp_f32 v{s+r}, v{s+r}", cost=2)); ge.append(g)
        c = lambda u: V(f"v_cvt_pk_bf16_f32 v{dst(qb)+2*h+u}, v{s+2*u}, v{s+2*u+1}")
        g0 = half(ge[1] + 1, ge[3] + 2)
        if g0 is not None: st.put(g0, c(0))
        g1 = half(ge[3] + 1, ge[3] + 3)
        if g0 is None or g1 is None: g1 = room(min(ge[3] + 1, last), 2 if g0 is None else 1)
        if g1 == ge[3]: st.put(g1, V("s_nop 0"))
        if g0 is None: st.put(g1, c(0))
        st.put(g1, c(1))
        end = max(g1, g0 or 0)
        if dead: assert end <= dead(qb), (name, qb, end, dead(qb))
    return g, end


def dma(k, opt): return VM(f"buffer_load_dwordx4 v{VDMA}, s[{SRD_K}:{SRD_K+3}], s{S_OFF} offen offset:{k*1024}{opt.get('dl','')} lds")


def vfirst(p, n=2):
    return [vgroup([(fb, (2 * p + u) * 16384, VTR, lambda qb, u=u: PS(2 * p + u, qb)) for u in range(2)]) for fb in range(n)]


def body(p, opt):
    qc, pc = opt.get('qc', 1), opt.get('pc', 1)
    pv = lambda f0: [vgroup([(fb, (2 * p + u) * 16384, VTR, lambda qb, u=u: PS(2 * p + u, qb)) for u in range(2)], pc) for fb in range(f0, f0 + 4)]
    ko = [2, 3, 3, 0] if p == 0 else [0, 1, 1, 2]
    Sf = lambda h: (lambda qb: S(h, qb))
    gr = []
    for b in range(4):
        gr += pv(4 * b) + kblock(1 - b % 2, ko[b] * 16384, Sf(1 - b % 2), chain=qc)
    RD = PS(3 - 2 * p, 0)
    ring = [RA, RB, RC, RD] * 2 + [RA, RB, RC] * 8 + [RA, RB]
    st, em = build(gr, ring, vfirst(1 - p), opt)
    if p == 0: st.put(opt.get('gvk', 190), V(f"v_xor_b32 v{VK}, 0x10000, v{VK}"))
    else:
        for k in range(2): st.put(opt.get('gvt', 225) + 2 * k, V(f"v_xor_b32 v{VTR[k]}, 0x10000, v{VTR[k]}"))
    gb = opt.get('gbar', 71)
    gd = opt.get('gdma', [73, 81, 89, 97, 105, 113, 121, 129])
    assert gb < 80
    nb = sum(1 for x in gd if x < gb)
    assert nb <= 4 and gd[4] - gd[3] >= 3 and gd[0] >= 2 and gd[7] + 2 < 253 and gb not in gd
    if not opt.get('nobar'):
        st.put(gb, V(f"s_waitcnt vmcnt({nb})")); st.put(gb, V("s_barrier"))
    if not opt.get('nodma'):
        for t in range(2):
            mo = (1 + 2 * p + t) % 4
            if mo == 0: st.put(gd[3] + 1, V(f"s_xor_b32 s{S_H}, s{S_H}, 0x10000"))
            st.put(gd[4 * t] - 2, V(f"s_add_u32 m0, s{S_H}, 0x{mo * 0x4000:x}"))
            for k in range(4): st.put(gd[4 * t + k], dma(k, opt))
            st.put(gd[4 * t + 3] + 2, V(f"s_add_u32 s{S_OFF}, s{S_OFF}, 0x4000"))
    st.put(opt.get('gcnt', 253), V(f"s_sub_u32 s{S_CNT}, s{S_CNT}, 1"))
    if opt.get('valu', 1):
        nP = 2 - 2 * p
        g0 = opt.get('g0', [3, 67, 131, 195])
        for b, (h, sl) in enumerate([(0, nP), (1, nP), (0, nP + 1), (1, nP + 1)]):
            _, e = place_sm(st, lambda qb: S(h, qb), lambda qb: PS(sl, qb), h, g0[b], ready=lambda qb: 64 * b - 1 + 2 * qb,
                            dead=lambda qb: min(64 * b + 95 + 2 * qb, 254), name="body")
            if opt.get('verbose'): print("body", p, "sm", b, "end", e)
    if opt.get('verbose'): print(st.stats(), [(g, st.used(g)) for g in range(st.n()) if st.used(g) > 2])
    return em.emit(st.seq())


def ml_l(opt):
    o = []
    for qb in range(4): o.append(f"v_accvgpr_read_b32 v{S(0,0)+qb}, a{O(0,qb)}")
    l = S(0, 0)
    o.append(f"v_lshlrev_b32 v{VT0}, 2, v{VL16}")
    o.append(f"v_max3_u32 v{VT1}, v{l}, v{l+1}, v{l+2}")
    o.append(f"v_min3_u32 v{VT2}, v{l}, v{l+1}, v{l+2}")
    o.append(f"v_max_u32 v{VT1}, v{VT1}, v{l+3}")
    o.append(f"v_min_u32 v{VT2}, v{VT2}, v{l+3}")
    x = ["s_mov_b64 exec, 0xffff"]
    for qb in range(4):
        x.append(f"buffer_store_dword v{l+qb}, v{VT0}, s[{SRD_ML}:{SRD_ML+3}], s{S_ML} offen offset:{qb*1024+4}{opt.get('st','')}")
    x.append(f"v_cmp_lt_u32 s[50:51], s52, v{VT1}")
    x.append(f"v_cmp_gt_u32 vcc, s53, v{VT2}")
    x.append("s_mov_b64 exec, -1")
    return o, x


def tail(p, T, opt):
    qc, pc = opt.get('qc', 1), opt.get('pc', 1)
    VO = [Q(0, 3), Q(0, 3) + 1]
    VSP = VT2
    assert 4 <= T <= 7
    nsp = max(0, T - 5)
    def ploc(k, final=True):
        if k == T - 1 and T >= 5: return lambda qb: Q(qb, 0)
        if k < nsp and final: return lambda qb: Q(qb, 1 + k)
        return lambda qb: PS((2 * p + k) % 4, qb)
    def vf(k, fb):
        i = 2 * p + k
        return (fb, (i % 4) * 16384, VO if i // 4 % 2 else VTR, ploc(k))
    gr = vfirst(p)
    blocks = [(2, 1)] + [(k, h) for k in range(3, T) for h in range(2)]
    tog = None
    for k, h in blocks:
        i = 2 * p + k
        if i == 4 + 4 * p and h == 0: tog = len(gr)
        gr += kblock(h, (i % 4) * 16384, lambda qb, h=h: S(h, qb), chain=qc)
    G = 8 * len(gr)
    early, late = [], []
    for t in range(8):
        e, l = [], []
        for fb in (2 * t, 2 * t + 1):
            for k in range(0, T - 1, 2):
                if k == 0 and fb < 2: continue
                (l if k + 1 == T - 1 else e).append([(k, fb), (k + 1, fb)])
        if T % 2: l.append([(T - 1, 2 * t), (T - 1, 2 * t + 1)])
        early.append(e); late.append(l)
    order = []; lead = opt.get("lead", 52); t = 0
    while 8 * len(order) < lead:
        while not early[t]: t += 1
        order.append(early[t].pop(0))
    glast = G + 8 * len(order)
    for t in range(8):
        r = early[t] + late[t]
        if opt.get('fo', 1): r.sort(key=lambda g: g[0][1] + g[1][1])
        order += r
    done = {}; doneq = {}
    for i, g in enumerate(order):
        for u, (k, fb) in enumerate(g):
            done[fb] = G + 8 * i + 7
            for qb in range(4): doneq[(fb, qb)] = G + 8 * i + (2 * qb + 1 if g[0][1] == g[1][1] and pc else 4 * u + qb)
    gr += [vgroup([vf(k, fb) for k, fb in g], pc) for g in order]
    ring = ([RA, RB, RC] * 40)[:len(gr)]
    st, em = build(gr, ring, [], dict(opt, rpv=opt.get('trpv', [0, 0, 4, 4]), rpk=opt.get('trpk', [0, 4])))
    nm = st.n()
    if opt.get('timing'):
        for i, gg in enumerate([30, 47, 111, G - 1, glast, (glast + nm) // 2, nm - 20]):
            st.put(gg, V(f"s_memtime s[{74+2*i}:{75+2*i}]", cost=0))
    gb = 8 * 4 - 1
    st.put(gb, V("s_waitcnt vmcnt(0)")); st.put(gb, V("s_barrier"))
    lateq = []
    for t in range(T - 5):
        mo = (1 + 2 * p + t) % 4
        if mo == 0: lateq.append(V(f"s_xor_b32 s{S_H}, s{S_H}, 0x10000"))
        lateq += [V(f"s_add_u32 m0, s{S_H}, 0x{mo * 0x4000:x}"), 1]
        for k in range(4): lateq += [V(dma(k, opt).t), 2]
        lateq.append(V(f"s_add_u32 s{S_OFF}, s{S_OFF}, 0x4000"))
    spq = []
    if T > 5:
        st.put(159, V("s_waitcnt vmcnt(0)")); st.put(159, V("s_barrier"))
    if tog is not None: st.put(8 * (tog - 2) - 1, V(f"v_xor_b32 v{VK}, 0x10000, v{VK}"))
    GL = G - 32
    if 2 * p + T - 1 >= 4:
        for k in range(2): st.put(GL + 12 + k, V(f"v_xor_b32 v{VO[k]}, 0x10000, v{VTR[k]}"))
    if nsp:
        st.put(1, V(f"s_lshl_b32 s36, s{S_WAVE}, 13")); st.put(3, V(f"s_add_u32 s36, s36, 0x20000")); st.put(5, V(f"v_add_u32 v{VSP}, s36, v{VL16}"))
        for k in range(nsp):
            for qb in range(4):
                spq += [LD(f"ds_write_b128 v{VSP}, {vr(ploc(k, False)(qb))} offset:{k*4096 + qb*1024}"), 1]
                st.put(GL + 10 + 8 * k + 4 * (qb >> 1), LD(f"ds_read_b128 {vr(ploc(k)(qb))}, v{VSP} offset:{k*4096 + qb*1024}", tag='rl'))
        st.put(G - 1, W('rl'))
    sms = [(k, h) for k in range(2, T) for h in range(2)]
    g = 3
    for i, (k, h) in enumerate(sms):
        rdy = lambda qb: 16 + 32 * i - 1 + 2 * qb if not (T >= 5 and i == len(sms) - 2) else 16 + 32 * i + 1 + 2 * qb
        dd = lambda qb: 16 + 32 * (i + 1) - 1 + 2 * qb if i < len(sms) - 2 else glast - 2
        g, e = place_sm(st, lambda qb: S(h, qb), ploc(k, False), h, g, ready=rdy if i else None, dead=dd, cap=opt.get('tcap', 2), name="tail")
        if opt.get('verbose'): print("tail", p, T, "sm", k, h, "end", e, "of", dd(3))
    e1 = st.fill(lateq, 32, 100) if lateq else 0
    e2 = st.fill(spq, 8, 140) if spq else 0
    assert e1 < 100 and e2 < 140
    if opt.get('verbose'): print("  late dma end", e1, "spill end", e2)
    g = glast
    ccap = opt.get('ccap', 3)
    a, x = ml_l(opt)
    g = st.fill([V(y) for y in a] + [V("\n".join(x), cost=3)], max(g, done[0] + 5), nm - 1, cap=opt.get('mle', 3))
    lat = opt.get('clat', 5)
    for t in range(8):
        cc = ccap[t] if isinstance(ccap, list) else ccap
        for u in range(2):
            for qb in range(4):
                stg = Q(qb, 4 + t % 4)
                tmp = [S(0, 0) + qb * 8 + r for r in range(8)]
                q = [V(f"v_accvgpr_read_b32 v{tmp[4*u+k]}, a{O(2*t+u,qb)+k}") for k in range(4)]
                q += [V(f"v_cvt_pk_bf16_f32 v{stg+2*u+r}, v{tmp[4*u+2*r]}, v{tmp[4*u+2*r+1]}") for r in range(2)]
                so = S_QO + qb if t < 4 else S_QO + 4 + qb
                stx = opt.get('st', '') if 4 * t + qb < opt.get('plainx', 32) else ''
                if u: q.append(V(f"buffer_store_dwordx4 {vr(stg)}, v{VL16}, s[{SRD_OP}:{SRD_OP+3}], s{so} offen offset:{(t%4)*1024}{stx}"))
                g = st.fill(q, min(max(g, doneq[(2*t+u, qb)] + lat), nm - 1), nm - 1, cap=cc if doneq[(2*t+u, qb)] < nm - 24 else opt.get('lcap', 4))
        if opt.get('verbose'): print("  conv", t, g, "of", nm)
    return hazard.fix(em.emit(st.seq()))


def lds_addrs(A):
    L = VL16
    A(f"v_bfe_u32 v{VK}, v{L}, 4, 3")
    A(f"v_lshlrev_b32 v{VK}, 6, v{VK}")
    A(f"v_bfe_u32 v{VT0}, v{L}, 7, 1")
    A(f"v_lshl_or_b32 v{VK}, v{VT0}, 10, v{VK}")
    A(f"v_bfe_u32 v{VT0}, v{L}, 8, 2")
    A(f"v_lshl_or_b32 v{VK}, v{VT0}, 4, v{VK}")
    A(f"v_bfe_u32 v{VT0}, v{L}, 6, 1")
    A(f"v_lshlrev_b32 v{VT0}, 5, v{VT0}")
    A(f"v_xor_b32 v{VK}, v{VK}, v{VT0}")
    A(f"v_and_b32 v{VTR[0]}, 0x1c0, v{L}")
    A(f"v_bfe_u32 v{VT0}, v{L}, 9, 1")
    A(f"v_lshl_or_b32 v{VTR[0]}, v{VT0}, 10, v{VTR[0]}")
    A(f"v_bfe_u32 v{VT0}, v{L}, 8, 1")
    A(f"v_lshl_or_b32 v{VTR[0]}, v{VT0}, 5, v{VTR[0]}")
    A(f"v_bfe_u32 v{VT0}, v{L}, 4, 2")
    A(f"v_lshl_or_b32 v{VTR[0]}, v{VT0}, 3, v{VTR[0]}")
    A(f"v_xor_b32 v{VTR[1]}, 32, v{VTR[0]}")


def light(o, opt, nm, LB0, NS, nq):
    A = o.append
    QL = lambda ds: ds * 4
    KFr = lambda h, ds: 32 + (h * 8 + ds) * 4
    VFr = lambda fb: 96 + fb * 4
    SL = [160, 164]; PL = 168; MM, LL, FF, T0, T1 = 172, 173, 174, 175, 176
    AK, AV0, AV1, ODD = 177, 178, 179, 188
    TM = 180; MK = 192
    S_N, S_SL, S_DS, S_X, S_NQ, S_B, S_E, S_O = 51, 52, 53, 54, 55, 56, 57, 58
    A(f"s_mov_b32 s{S_B}, {LB0}")
    A(f"s_add_u32 s{S_E}, s{S_B}, {NS * 0x4000}")
    A(f"s_mov_b32 s{S_NQ}, {nq}")
    A(f"v_bfe_i32 v{ODD}, v{VL16}, 8, 1")
    A(f"{nm}_q:")
    A(f"s_add_u32 s44, s{S_QO}, 4096")
    for ds in range(8):
        A(f"buffer_load_dwordx4 {vr(QL(ds))}, v{VL16}, s[{SRD_Q}:{SRD_Q+3}], s{S_QO if ds < 4 else 44} offen offset:{(ds%4)*1024}")
    def dm():
        for w in range(4):
            A(f"s_add_u32 m0, s{S_DS}, {w*4096}")
            A(f"s_add_u32 s{S_X}, s{S_O}, {w*128}")
            for k in range(4):
                A(f"buffer_load_dwordx4 v{VDMA}, s[{SRD_K}:{SRD_K+3}], s{S_X} offen offset:{k*1024} lds")
        A(f"s_add_u32 s{S_DS}, s{S_DS}, 0x4000")
        A(f"s_cmp_eq_u32 s{S_DS}, s{S_E}")
        A(f"s_cselect_b32 s{S_DS}, s{S_B}, s{S_DS}")
        A(f"s_add_u32 s{S_O}, s{S_O}, 0x4000")
    A(f"s_mov_b32 s{S_DS}, s{S_B}")
    A(f"s_mov_b32 s{S_O}, s{S_FIRST}")
    for i in range(NS - 1): dm()
    A(f"s_mov_b32 s{S_N}, s{S_NT}")
    A(f"s_mov_b32 s{S_SL}, s{S_B}")
    A(f"v_mov_b32 v{MM}, 0xff800000")
    for r in range(64): A(f"v_accvgpr_write_b32 a{r}, 0")
    A(f"{nm}_loop:")
    dm()
    A(f"v_add_u32 v{AK}, s{S_SL}, v{VK}")
    A(f"v_add_u32 v{AV0}, s{S_SL}, v{VTR[0]}")
    A(f"v_add_u32 v{AV1}, s{S_SL}, v{VTR[1]}")
    A(f"s_add_u32 s{S_SL}, s{S_SL}, 0x4000")
    A(f"s_cmp_eq_u32 s{S_SL}, s{S_E}")
    A(f"s_cselect_b32 s{S_SL}, s{S_B}, s{S_SL}")
    A(f"s_cmp_eq_u32 s{S_N}, 1")
    A(f"s_cselect_b32 s{S_X}, s{S_MASK}, 0")
    for r in range(4): A(f"v_and_b32 v{MK+r}, s{S_X}, v{ODD}")
    A(f"s_waitcnt vmcnt({16 * (NS - 1)})")
    for ds in range(8):
        for h in range(2):
            A(f"ds_read_b128 {vr(KFr(h, ds))}, v{AK} offset:{foff(h, ds)}")
    for ds in range(8):
        A(f"s_waitcnt lgkmcnt({14 - 2*ds})")
        for h in range(2):
            A(f"{MF} {vr(SL[h])}, {vr(KFr(h, ds))}, {vr(QL(ds))}, {vr(SL[h]) if ds else vr(MK)}")
    for fb in range(16):
        for kb in range(2):
            A(f"ds_read_b64_tr_b16 v[{VFr(fb)+2*kb}:{VFr(fb)+2*kb+1}], v{AV1 if fb & 1 else AV0} offset:{foff(kb, fb >> 1)}")
    A("s_nop 7")
    A(f"v_max3_f32 v{T0}, v{SL[0]}, v{SL[0]+1}, v{SL[0]+2}")
    A(f"v_max3_f32 v{T0}, v{T0}, v{SL[0]+3}, v{SL[1]}")
    A(f"v_max3_f32 v{T0}, v{T0}, v{SL[1]+1}, v{SL[1]+2}")
    A(f"v_max3_f32 v{T0}, v{T0}, v{SL[1]+3}, v{MM}")
    for sw in ("v_permlane32_swap_b32", "v_permlane16_swap_b32"):
        A(f"v_mov_b32 v{T1}, v{T0}")
        A("s_nop 1")
        A(f"{sw} v{T0}, v{T1}")
        A("s_nop 1")
        A(f"v_max_f32 v{T0}, v{T0}, v{T1}")
    A(f"v_sub_f32 v{FF}, v{MM}, v{T0}")
    A(f"v_exp_f32 v{FF}, v{FF}")
    A(f"v_mov_b32 v{MM}, v{T0}")
    for r in range(8): A(f"v_sub_f32 v{SL[0]+r}, v{SL[0]+r}, v{MM}")
    for r in range(8): A(f"v_exp_f32 v{SL[0]+r}, v{SL[0]+r}")
    A(f"v_cmp_neq_f32 vcc, 1.0, v{FF}")
    for r in range(4): A(f"v_cvt_pk_bf16_f32 v{PL+r}, v{SL[0]+2*r}, v{SL[0]+2*r+1}")
    A(f"s_cbranch_vccz {nm}_nors")
    for c in range(8):
        for r in range(8): A(f"v_accvgpr_read_b32 v{TM+r}, a{8*c+r}")
        for r in range(8): A(f"v_mul_f32 v{TM+r}, v{TM+r}, v{FF}")
        for r in range(8): A(f"v_accvgpr_write_b32 a{8*c+r}, v{TM+r}")
    A(f"{nm}_nors:")
    A("s_waitcnt lgkmcnt(0)")
    A("s_nop 1")
    for fb in range(16):
        A(f"{MF} {ar(fb*4)}, {vr(VFr(fb))}, {vr(PL)}, {ar(fb*4)}")
    A(f"s_sub_u32 s{S_N}, s{S_N}, 1")
    A(f"s_cmp_lg_u32 s{S_N}, 0")
    A(f"s_cbranch_scc1 {nm}_loop")
    A("s_nop 15")
    A(f"v_accvgpr_read_b32 v{LL}, a0")
    for t in range(8):
        for r in range(8): A(f"v_accvgpr_read_b32 v{TM+r}, a{8*t+r}")
        for r in range(4): A(f"v_cvt_pk_bf16_f32 v{32+4*t+r}, v{TM+2*r}, v{TM+2*r+1}")
        A(f"buffer_store_dwordx4 {vr(32+4*t)}, v{VL16}, s[{SRD_OP}:{SRD_OP+3}], s{S_QO if t < 4 else 44} offen offset:{(t%4)*1024}{opt.get('st','')}")
    A(f"v_lshlrev_b32 v{T0}, 2, v{VL16}")
    A("s_mov_b64 exec, 0xffff")
    A(f"buffer_store_dwordx2 v[{MM}:{LL}], v{T0}, s[{SRD_ML}:{SRD_ML+3}], s{S_ML} offen{opt.get('st','')}")
    A("s_mov_b64 exec, -1")
    A("s_waitcnt vmcnt(0)")
    A(f"s_add_u32 s{S_QO}, s{S_QO}, 8192")
    A(f"s_add_u32 s{S_ML}, s{S_ML}, 1024")
    A(f"s_sub_u32 s{S_NQ}, s{S_NQ}, 1")
    A(f"s_cmp_lg_u32 s{S_NQ}, 0")
    A(f"s_cbranch_scc1 {nm}_q")
    A("s_branch L2_fin")


def prologue(o, opt, T):
    A = o.append
    Z = S(1, 0)
    for r in range(4): A(f"v_mov_b32 v{Z+r}, 0")
    nvm = [6]
    qidx = {}
    zi = 0
    for ds in range(8):
        for qb in range(4):
            so = S_QO + qb if ds < 4 else S_QO + 4 + qb
            A(f"buffer_load_dwordx4 {vr(Q(qb,ds))}, v{VL16}, s[{SRD_Q}:{SRD_Q+3}], s{so} offen offset:{(ds%4)*1024}")
            nvm[0] += 1
            qidx[(ds, qb)] = nvm[0]
            if qb % 2 == 1:
                A(f"v_mfma_f32_32x32x16_bf16 a[{16*zi}:{16*zi+15}], {vr(Z)}, {vr(Z)}, 0")
                zi += 1
    T(1)
    lds_addrs(A)
    items = []
    dm = lambda k: (1, dma(k, {}).t)
    items += [dm(2), dm(3)]
    for t in range(2, 5):
        items.append((0, f"s_add_u32 s{S_OFF}, s{S_OFF}, 0x4000\ns_add_u32 m0, s{S_H}, 0x{t*0x4000:x}\ns_nop 0"))
        items += [dm(k) for k in range(4)]
        items[-1] = (1, items[-1][1], t)
    items.append((0, f"s_add_u32 s{S_OFF}, s{S_OFF}, 0x4000\ns_xor_b32 s{S_H}, s{S_H}, 0x10000"))
    tidx = {1: 8}
    T(2)
    A(f"s_waitcnt vmcnt({nvm[0]-6})")
    A("s_barrier")
    T(3)
    dst = [lambda qb: PS(2, qb), lambda qb: PS(3, qb), lambda qb: S(0, qb)]
    gr = []
    for d in range(0, 8, 2):
        for b in range(3): gr.append(kgroup(b & 1, d, (b >> 1) * 16384, dst[b], chain=0 if d == 0 and b == 0 and 0 else 1))
    ring = [RA, RB, RC] * 4
    st, em = build(gr, ring, [], opt, inflight=0)
    per = opt.get('sper', 4)
    pos = {}
    for d in range(4):
        g = 24 * d - 1
        st.put(g, V(f"s_waitcnt vmcnt({nvm[0]-qidx[(2*d+1,3)]})"))
        k = 0; gg = g + 2
        while items and k < per:
            it = items.pop(0)
            st.put(min(gg, 95), V(it[1])); nvm[0] += it[0]; k += it[0]; gg += 2
            if len(it) > 2: pos[it[2]] = nvm[0]
            if it[1] == dm(3)[1] and 1 not in pos: pos[1] = nvm[0]
    o += em.emit(st.seq())
    T(6)
    R4 = range(4)
    M = [RA + i for i in R4]; ET = [RA + 4 + i for i in R4]
    s0, s1 = dst[0], dst[1]
    A("s_nop 3")
    for qb in R4: A(f"v_max3_f32 v{M[qb]}, v{s0(qb)}, v{s0(qb)+1}, v{s0(qb)+2}")
    for qb in R4: A(f"v_max3_f32 v{M[qb]}, v{M[qb]}, v{s0(qb)+3}, v{s1(qb)}")
    for qb in R4: A(f"v_max3_f32 v{M[qb]}, v{M[qb]}, v{s1(qb)+1}, v{s1(qb)+2}")
    for qb in R4: A(f"v_max_f32 v{M[qb]}, v{M[qb]}, v{s1(qb)+3}")
    rest = [it for it in items]
    for it in rest:
        A(it[1]); nvm[0] += it[0]
        if len(it) > 2: pos[it[2]] = nvm[0]
    for sw in ("v_permlane32_swap_b32", "v_permlane16_swap_b32"):
        for qb in R4: A(f"v_mov_b32 v{ET[qb]}, v{M[qb]}")
        for qb in R4: A(f"{sw} v{M[qb]}, v{ET[qb]}")
        for qb in R4: A(f"v_max_f32 v{M[qb]}, v{M[qb]}, v{ET[qb]}")
    A(f"s_waitcnt vmcnt({nvm[0]-pos[2]})")
    A("s_barrier")
    MM = [PS(1, qb) + 3 for qb in R4]
    gr = kblock(1, 16384, lambda qb: S(1, qb)) + kblock(0, 32768, lambda qb: S(0, qb))
    ring = [RB, RC] + [RA, RB, RC] * 2 + [RA, RB]
    st, em = build(gr, ring, vfirst(0), opt, inflight=0)
    pre = []
    for qb in R4: pre.append(f"v_cvt_pk_bf16_f32 v{ET[qb]}, -v{M[qb]}, -v{M[qb]}")
    pre.append(f"v_lshlrev_b32 v{VT0}, 2, v{VL16}")
    for qb in R4: pre.append(f"v_lshlrev_b32 v{MM[qb]}, 16, v{ET[qb]}")
    pre.append("s_mov_b64 exec, 0xffff")
    for qb in R4: pre.append(f"v_bfi_b32 v{Q(qb,0)}, s{S_T}, v{ET[qb]}, v{Q(qb,0)}")
    for qb in R4: pre.append(f"v_xor_b32 v{M[qb]}, 0x80000000, v{MM[qb]}")
    for qb in R4: pre.append(f"buffer_store_dword v{M[qb]}, v{VT0}, s[{SRD_ML}:{SRD_ML+3}], s{S_ML} offen offset:{qb*1024}{opt.get('st','')}")
    pre.append("s_mov_b64 exec, -1")
    st.pre = st.pre[:-1] + [V(x) for x in pre] + st.pre[-1:]
    pc = opt.get('pcap', 4)
    mm = lambda qb: MM[qb]
    g, e0 = place_sm(st, dst[2], lambda qb: PS(1, qb), 0, 0, dead=lambda qb: 31 + 2 * qb, cap=pc, add=mm)
    g, _ = place_sm(st, dst[0], lambda qb: PS(0, qb), 0, g, cap=pc, add=mm)
    g, _ = place_sm(st, dst[1], lambda qb: PS(0, qb), 1, g, cap=pc, add=mm)
    g, _ = place_sm(st, lambda qb: S(1, qb), lambda qb: PS(1, qb), 1, g, ready=lambda qb: 28 + 2 * qb, cap=pc)
    if opt.get('verbose'): print("prologue sm ends", e0, g, st.stats(pc))
    o += em.emit(st.seq())
    T(7)


def gen_k2(opt=None):
    opt = opt or {}
    o = []
    A = o.append
    def T(i):
        if opt.get('timing'): A(f"s_memtime s[{74+2*i}:{75+2*i}]")
    A("s_load_dwordx2 s[4:5], s[0:1], %d" % KA_WS)
    if opt.get('timing'):
        A("s_load_dwordx2 s[60:61], s[0:1], %d" % KA_OUT)
        A("s_memtime s[62:63]")
        A("s_memrealtime s[64:65]")
    A("s_and_b32 s35, s2, 7")
    A("s_lshr_b32 s37, s2, 3")
    A("s_cmp_ge_u32 s37, 30")
    A("s_cbranch_scc1 LE_start")
    A("s_mul_i32 s38, s37, 52")
    A("s_lshr_b32 s38, s38, 8")
    A("s_mul_i32 s39, s38, 5")
    A("s_sub_u32 s39, s37, s39")
    A("s_mov_b32 s37, s38")
    A("s_mul_i32 s38, s35, 5")
    A("s_add_u32 s38, s38, s39")
    A("v_lshrrev_b32 v1, 6, v0")
    A(f"v_and_b32 v{VL16}, 63, v0")
    A(f"v_lshlrev_b32 v{VL16}, 4, v{VL16}")
    A(f"v_readfirstlane_b32 s{S_WAVE}, v1")
    cnts = opt.get('cnts', [52, 52, 52, 52, 52, 53])
    Ts = opt.get('Ts', [4 + (c & 1) for c in cnts])
    assert sum(cnts) == NT and len(cnts) == NSPLIT and all((c - t) % 2 == 0 for c, t in zip(cnts, Ts))
    stt = [sum(cnts[:i]) for i in range(NSPLIT + 1)]
    pk = sum(x << (9 * i) for i, x in enumerate(stt))
    A(f"s_mov_b32 s50, 0x{pk & 0xffffffff:x}")
    A(f"s_mov_b32 s51, 0x{pk >> 32:x}")
    A(f"s_mul_i32 s39, s{S_SPL}, 9")
    A(f"s_lshr_b64 s[50:51], s[50:51], s39")
    A(f"s_and_b32 s{S_FIRST}, s50, 0x1ff")
    A(f"s_bfe_u32 s{S_END}, s50, 0x90009")
    A(f"s_sub_u32 s{S_NT}, s{S_END}, s{S_FIRST}")
    A(f"s_lshl_b32 s50, s{S_SPL}, 2")
    A(f"s_lshr_b32 s59, 0x{sum(t << (4 * i) for i, t in enumerate(Ts)):x}, s50")
    A(f"s_and_b32 s59, s59, 15")
    A(f"s_sub_u32 s{S_CNT}, s{S_NT}, s59")
    A(f"s_lshr_b32 s{S_CNT}, s{S_CNT}, 1")
    A(f"s_sub_u32 s{S_CNT}, s{S_CNT}, 1")
    A(f"s_lshl_b32 s{S_FIRST}, s{S_FIRST}, 14")
    A(f"s_lshl_b32 s{S_END}, s{S_END}, 14")
    A(f"s_add_u32 s{S_OFF}, s{S_FIRST}, 0x4000")
    A(f"s_cmp_eq_u32 s{S_SPL}, {NSPLIT-1}")
    A(f"s_cselect_b32 s{S_MASK}, 0xff800000, 0")
    A(f"s_mov_b32 s{S_T}, 0xffff")
    A("v_and_b32 v2, 63, v0")
    A("v_bfe_u32 v3, v2, 3, 2")
    A("v_bfe_u32 v4, v2, 2, 1")
    A(f"v_lshlrev_b32 v{VDMA}, 12, v3")
    A(f"v_lshl_or_b32 v{VDMA}, v4, 9, v{VDMA}")
    A(f"v_lshl_or_b32 v{VDMA}, v1, 7, v{VDMA}")
    A("v_lshrrev_b32 v4, 5, v2")
    A(f"v_lshl_or_b32 v{VDMA}, v4, 6, v{VDMA}")
    A("v_and_b32 v3, 2, v3")
    A("v_and_b32 v4, 3, v2")
    A("v_xor_b32 v3, v3, v4")
    A(f"v_lshl_or_b32 v{VDMA}, v3, 4, v{VDMA}")
    A(f"s_cmp_eq_u32 s{S_QT}, 39")
    A("s_cbranch_scc1 LT_disp")
    A(f"s_lshl_b32 s{S_H}, s{S_WAVE}, 12")
    A(f"s_mov_b32 m0, s{S_H}")
    def srds():
        srd_from(o, SRD_Q, 4, QF_OFF, QF_BYTES)
        A(f"s_mul_i32 s35, s{S_SPL}, 0x{OP_STRIDE:x}")
        srd_from(o, SRD_OP, 4, OP_OFF, QF_BYTES, 35)
        srd_from(o, SRD_ML, 4, ML_OFF, NB16 * 1024)
        A(f"s_lshl_b32 s35, s{S_QT}, 4")
        A(f"s_lshl_b32 s41, s{S_WAVE}, 2")
        A(f"s_add_u32 s35, s35, s41")
        A(f"s_lshl_b32 s{S_QO}, s35, 13")
        A(f"s_lshl_b32 s{S_ML}, s35, 10")
        A(f"s_lshl_b32 s35, s{S_SPL}, 3")
        A(f"s_add_u32 s{S_ML}, s{S_ML}, s35")
    A("s_waitcnt lgkmcnt(0)")
    T(0)
    srd_from(o, SRD_K, 4, H_OFF, f"s{S_END}")
    for k in range(4):
        A(f"buffer_load_dwordx4 v{VDMA}, s[{SRD_K}:{SRD_K+3}], s{S_FIRST} offen offset:{k*1024} lds")
    A(f"s_add_u32 m0, s{S_H}, 0x4000")
    A("s_nop 0")
    for k in range(2): A(dma(k, {}).t)
    srds()
    for qb in range(1, 4): A(f"s_add_u32 s{S_QO+qb}, s{S_QO}, {qb*8192}")
    for qb in range(4): A(f"s_add_u32 s{S_QO+4+qb}, s{S_QO+qb}, 4096")
    A("s_mov_b32 s52, 0x71800000")
    A("s_mov_b32 s53, 0x0d800000")
    prologue(o, opt, T)
    if opt.get('timing'):
        A("s_memtime s[66:67]")
    need = sorted({((c - t) // 2 % 2, t) for c, t in zip(cnts, Ts)})
    A(".p2align 6")
    A("L2_loop:")
    o += body(0, opt)
    if any(p == 1 for p, _ in need): A("s_cbranch_scc1 L2_tail_1")
    o += body(1, opt)
    A("s_cbranch_scc0 L2_loop")
    for p in (0, 1):
        ts = [t for pp, t in need if pp == p]
        if not ts: continue
        A(f"L2_tail_{p}:")
        if opt.get('timing'): A("s_memtime s[68:69]")
        for t in ts[1:]:
            A(f"s_cmp_eq_u32 s59, {t}")
            A(f"s_cbranch_scc1 L2_tail_{p}_{t}")
        for t in ts:
            A(f"L2_tail_{p}_{t}:")
            o += tail(p, t, opt)
            T(9)
            A("s_branch L2_chk")
    A("L2_chk:")
    A("s_or_b64 vcc, vcc, s[50:51]")
    A("s_barrier")
    if opt.get('fslow'): A("s_mov_b64 vcc, -1")
    A("s_cbranch_vccz L2_fin")
    A("s_waitcnt vmcnt(0)")
    lds_addrs(A)
    A(f"v_and_b32 v{VDMA}, 0xfffffe7f, v{VDMA}")
    A(f"s_mul_i32 s36, s{S_WAVE}, 0xa000")
    light(o, opt, "LS", "s36", 2, 4)
    A("LT_disp:")
    A(f"s_cmp_eq_u32 s{S_WAVE}, 0")
    A("s_cbranch_scc1 LT_start")
    A(f"s_mov_b32 s{gen_eg.S_W}, s{S_WAVE}")
    A(f"s_mul_i32 s{gen_eg.S_B}, s{S_WAVE}, 6")
    A(f"s_add_u32 s{gen_eg.S_B}, s{gen_eg.S_B}, s{S_SPL}")
    A(f"s_add_u32 s{gen_eg.S_B}, s{gen_eg.S_B}, 42")
    A(f"s_cmp_lt_u32 s{gen_eg.S_B}, {NBU}")
    A("s_cbranch_scc1 LE_common")
    A("s_branch L2_end")
    A("LT_start:")
    if opt.get('lprio'): A(f"s_setprio {opt['lprio']}")
    A("s_waitcnt lgkmcnt(0)")
    srd_from(o, SRD_K, 4, H_OFF, f"s{S_END}")
    srds()
    lds_addrs(A)
    light(o, opt, "LT", 0x16000, 4, 1)
    gen_eg.gen_edge(o, dict(opt, light=1))
    A("L2_fin:")
    if opt.get('timing'):
        A("s_mov_b64 exec, -1")
        A("s_waitcnt vmcnt(0)")
        A("s_memtime s[70:71]")
        A("s_memrealtime s[72:73]")
        A("s_waitcnt lgkmcnt(0)")
        A("s_sub_u32 s66, s66, s62")
        A("s_sub_u32 s68, s68, s62")
        A("s_sub_u32 s70, s70, s62")
        for i in range(10):
            A(f"s_sub_u32 s{74+2*i}, s{74+2*i}, s62\nv_mov_b32 v{4+i}, s{74+2*i}")
        A("v_mov_b32 v14, s64\nv_mov_b32 v15, s72")
        A("s_sub_u32 s72, s72, s64")
        A("v_mov_b32 v0, s66\nv_mov_b32 v1, s68\nv_mov_b32 v2, s70\nv_mov_b32 v3, s72")
        A("s_mov_b32 s62, 0x100000\ns_mov_b32 s63, 0x00020000")
        A(f"s_lshl_b32 s35, s2, 2")
        A(f"s_add_u32 s35, s35, s{S_WAVE}")
        A(f"s_lshl_b32 s35, s35, 10")
        A(f"buffer_store_dwordx4 v[0:3], v{VL16}, s[60:63], s35 offen")
        A("s_add_u32 s35, s35, 0x200000\ns_mov_b32 s62, 0x800000")
        for k in range(3):
            A(f"buffer_store_dwordx4 v[{4+4*k}:{7+4*k}], v{VL16}, s[60:63], s35 offen")
            A("s_add_u32 s35, s35, 0x100000")
    A("L2_end:")
    return "\n".join(o)


def kernel_desc(opt=None):
    return dict(name="k2_kernel", body=gen_k2(opt), vgpr=512, accum=256, grid=256, block=256, lds=163840)

if __name__ == "__main__":
    import sys, json, hazard
    t = gen_k2(dict(json.loads(sys.argv[1]) if len(sys.argv) > 1 else {}, verbose=1, new=32, st=" sc1"))
    e = hazard.check(t, "k2")
    print("\n".join(e[:30])); print(len(e), "hazards;", len(t.split("\n")), "lines")
    open('k2f.s', 'w').write(t)
```

```python
N = 10000
D = 256
E = 160000
NB16 = 626
NT = 313
FRAGBLK = 8192
QF_OFF = 0
KF_OFF = 8 << 20
VF_OFF = 16 << 20
ME_OFF = 104 << 20
H_OFF = ME_OFF
WF_OFF = 16 << 20
OP_OFF = 32 << 20
OP_STRIDE = 6 << 20
ML_OFF = 96 << 20
ML_STRIDE = 1 << 20
HL_OFF = 112 << 20
ECNT_OFF = 120 << 20
EDGE_OFF = 128 << 20
QF_BYTES = NB16 * FRAGBLK
KF_BYTES = NB16 * FRAGBLK
VF_BYTES = NT * 16384
ME_BYTES = N * 512
HL_BYTES = N * 512
NSPLIT = 6
NQT = 40
K1_WGS = 256
EPW = E // K1_WGS
NBK = 64
import os
NBU = int(os.environ.get('NBU', 60))
BN, BMAGIC, BSHIFT = (157, 6679, 20) if NBU == 64 else (167, 6279, 20)
NEW = 16
ECAP = 10240
ECNT_BYTES = NBK * NEW * 4
EDGE_BYTES = NBK * NEW * ECAP * 4
assert all((d * BMAGIC) >> BSHIFT == d // BN for d in range(N)) and NBU * BN >= N
KA_X, KA_SRC, KA_DST, KA_DEG, KA_WMSG, KA_WQ, KA_WK, KA_WV, KA_WOUT, KA_OUT, KA_DBG, KA_WS = [8 * i for i in range(12)]


def vr(b, n=4): return f"v[{b}:{b+n-1}]"
def ar(b, n=4): return f"a[{b}:{b+n-1}]"
def sr(b, n=4): return f"s[{b}:{b+n-1}]"


class Seg:
    def __init__(self):
        self.mf = []
        self.gap = []
        self.pre = []

    def add_mfma(self, t):
        self.mf.append(t)
        self.gap.append([])

    def used(self, g):
        return sum(c for c, _ in self.gap[g])

    def put(self, g, text, cost=1):
        if g < 0:
            self.pre.append((cost, text))
        else:
            self.gap[g].append((cost, text))

    def fill(self, queue, g0, g1, cap=2):
        g = g0
        for cost, text in queue:
            while g < g1 and self.used(g) + cost > cap:
                g += 1
            self.gap[g].append((cost, text))
        return g

    def text(self):
        o = [t for _, t in self.pre]
        for m, gp in zip(self.mf, self.gap):
            o.append(m)
            o += [t for _, t in gp]
        return o


def srd_from(o, d, plo, off, nbytes, extra_sgpr=None):
    o.append(f"s_add_u32 s{d}, s{plo}, 0x{off & 0xffffffff:x}")
    o.append(f"s_addc_u32 s{d+1}, s{plo+1}, 0")
    if extra_sgpr is not None:
        o.append(f"s_add_u32 s{d}, s{d}, s{extra_sgpr}")
        o.append(f"s_addc_u32 s{d+1}, s{d+1}, 0")
    if isinstance(nbytes, str):
        o.append(f"s_mov_b32 s{d+2}, {nbytes}")
    else:
        o.append(f"s_mov_b32 s{d+2}, 0x{nbytes:x}")
    o.append(f"s_mov_b32 s{d+3}, 0x00020000")
```

```python
import sys, os
sys.path.insert(0, os.path.dirname(os.path.abspath(__file__)))
from layout import *

HEADER = open(os.path.join(os.path.dirname(os.path.abspath(__file__)), "..", "standalone__hybrid_graph_tf_graphgps__graph.s.ref")).read().split("; Override launch geometry")[0]

NOTES = """; Design (generated by dev/buildn.py):
"""

def kernel_text(name, body, vgpr, accum, sgpr=102):
    code = f""".globl {name}
.p2align 8
.type {name},@function
{name}:
{body}
s_endpgm
"""
    desc = f""".p2align 6
.amdhsa_kernel {name}
  .amdhsa_next_free_vgpr {vgpr}
  .amdhsa_next_free_sgpr {sgpr}
  .amdhsa_accum_offset {accum}
  .amdhsa_group_segment_fixed_size 0
  .amdhsa_kernarg_size 96
  .amdhsa_user_sgpr_count 2
  .amdhsa_user_sgpr_kernarg_segment_ptr 1
  .amdhsa_system_sgpr_workgroup_id_x 1
.end_amdhsa_kernel
"""
    return code, desc

def build_file(kernels):
    s = HEADER
    for k in kernels:
        s += f"; @launch kernel={k['name']} grid=({k['grid']},1,1) block=({k['block']},1,1) lds={k['lds']}\n"
    s += NOTES
    s += '.amdgcn_target "amdgcn-amd-amdhsa--gfx950"\n.text\n'
    descs = []
    for k in kernels:
        c, d = kernel_text(k['name'], k['body'], k['vgpr'], k['accum'])
        s += c
        descs.append(d)
    s += '.section .rodata,"a"\n' + "".join(descs)
    return s
```

```python
from layout import *

L_W0 = 4096
LIST_B = 20480
L_WS = LIST_B + 1024
PADV = 0xffff
assert ((4096 + 3 * BN) // 4 + BN // 4 + 31) // 32 * 32 + 40 <= LIST_B // 16

VL = 1; VN16 = 2; VG = 3
CNT = 4; CP = 5
VOFF = 6
VCB = 7
VONE = 16; VFOUR = 17
MINV = [18, 19, 20, 21]
CB = 24
GS = 28
VS = 32; VT = 33; VT2 = 34; VCA = 35
VLB = 36
VFL = 37
VRD = 38
VST = 39
SELA = 40; SELB = 44
ACC = 48
IDXA = [52, 56]
AD = 60
PK = 64
PV = 66
VFILL = 68
VPAD = 72
DG0, DGC = 76, 80
IDX = 128
E = 192

S_B, S_W, S_PASS, S_LIM, S_NIT, S_IT, S_F, S_SO, S_T, S_512, S_EO, S_ND, S_DG, S_B0, S_BN = 40, 41, 42, 43, 44, 45, 46, 47, 48, 49, 50, 51, 57, 58, 59
SRD_C, SRD_E, SRD_G, SRD_H = 8, 12, 16, 20


def wave_reduce(A, v, t, op):
    for m in ("row_shr:1", "row_shr:2", "row_shr:4", "row_shr:8", "row_bcast:15 row_mask:0xa", "row_bcast:31 row_mask:0xc"):
        A("s_nop 1")
        A(f"{op}_dpp v{v}, v{v}, v{v} {m}" + (" row_mask:0xf" if "mask" not in m else "") + " bank_mask:0xf")


def gen_edge(o, opt):
    A = o.append
    timing = opt.get('timing')
    NEW = opt.get('new', 16); ECAP = 163840 // NEW; LPS = 64 // NEW; LS = LPS.bit_length() - 1; PER = 4096 // NEW
    nst = [0]
    def stamp():
        if timing:
            A("s_memtime s[98:99]")
            A("s_waitcnt lgkmcnt(0)")
            A(f"v_writelane_b32 v126, s98, {nst[0]}")
            nst[0] += 1
    A("LE_start:")
    A("s_cmp_ge_u32 s37, 32")
    A("s_cbranch_scc1 L2_end")
    A("v_lshrrev_b32 v1, 6, v0")
    A("s_sub_u32 s37, s37, 30")
    A("s_lshl_b32 s35, s35, 1")
    A(f"v_readfirstlane_b32 s{S_W}, v1")
    A("s_add_u32 s35, s35, s37")
    A("s_mul_i32 s35, s35, %d" % (3 if opt.get('light') else 4))
    A(f"s_add_u32 s{S_B}, s35, s{S_W}")
    if opt.get('light'):
        A(f"s_cmp_ge_u32 s{S_W}, 3")
        A("s_cbranch_scc1 LC_help" if opt.get('help') else "s_cbranch_scc1 L2_end")
    A("LE_common:")
    A(f"v_and_b32 v{VL}, 63, v0")
    A(f"s_mul_i32 s{S_B0}, s{S_B}, {BN}")
    A(f"s_mov_b32 s{S_BN}, {BN}")
    if BN2:
        A(f"s_mul_i32 s{S_T}, s{S_B}, {BN2}")
        A(f"s_add_u32 s{S_T}, s{S_T}, {BOFF}")
        A(f"s_min_u32 s{S_B0}, s{S_B0}, s{S_T}")
        A(f"s_cmp_lt_u32 s{S_B}, 48")
        A(f"s_cselect_b32 s{S_BN}, {BN}, {BN2}") if 0 else (A(f"s_cselect_b32 s{S_BN}, s{S_BN}, {BN2}"))
    if opt.get('wexit'):
        A(f"s_cmp_ge_u32 s{S_W}, {opt['wexit']}")
        A("s_cbranch_scc1 L2_end")
    A(f"s_mov_b32 s{S_PASS}, 0")
    A(f"s_mov_b32 s{S_512}, 512")
    A(f"v_lshrrev_b32 v{VT}, {LS}, v{VL}")
    A(f"v_and_b32 v{VT2}, {LPS-1}, v{VL}")
    A(f"v_mul_u32_u24 v{VOFF}, 0x{ECAP*4:x}, v{VT}")
    A(f"v_lshl_add_u32 v{VOFF}, v{VT2}, 4, v{VOFF}")
    A(f"v_lshlrev_b32 v{VT}, 2, v{VT}")
    A(f"s_mul_i32 s{S_EO}, s{S_B}, {NEW*ECAP*4}")
    A(f"s_mul_i32 s{S_T}, s{S_B}, {NEW*4}")
    A("s_waitcnt lgkmcnt(0)")
    if timing:
        A("s_mov_b32 s100, s62")
    srd_from(o, SRD_C, 4, ECNT_OFF, NBK * NEW * 4)
    srd_from(o, SRD_E, 4, EDGE_OFF, EDGE_BYTES)
    A(f"buffer_load_dword v{CNT}, v{VT}, {sr(SRD_C)}, s{S_T} offen")
    def eloads():
        for k in range(16):
            A(f"buffer_load_dwordx4 {vr(E + k*4)}, v{VOFF}, {sr(SRD_E)}, s{S_EO} offen offset:{k*16*LPS}")
    eloads()
    DEG = opt.get('deg')
    if DEG:
        srd_from(o, SRD_G, 16, 0, N * 2)
        A(f"v_lshlrev_b32 v{VT2+1}, 1, v{VL}")
        A(f"s_lshl_b32 s{S_T}, s{S_B0}, 1")
        for k in range(3): A(f"buffer_load_ushort v{DG0+k}, v{VT2+1}, {sr(SRD_G)}, s{S_T} offen offset:{128*k}")
    srd_from(o, SRD_G, 4, ME_OFF, ME_BYTES)
    srd_from(o, SRD_H, 4, HL_OFF, HL_BYTES)
    A(f"v_lshlrev_b32 v{CP}, 2, v{VT2}")
    A(f"v_and_b32 v{VN16}, 15, v{VL}")
    A(f"v_lshrrev_b32 v{VG}, 4, v{VL}")
    A(f"v_mov_b32 v{VONE}, 1")
    A(f"v_mov_b32 v{VFOUR}, 4")
    A(f"v_and_b32 v{VT}, 1, v{VN16}")
    A(f"v_lshlrev_b32 v{VT}, 4, v{VT}")
    A(f"v_lshlrev_b32 v{VT}, v{VT}, v{VONE}")
    A(f"v_mul_u32_u24 v{VT}, 0x3f80, v{VT}")
    A(f"v_lshrrev_b32 v{VT2}, 1, v{VN16}")
    for k in range(8):
        A(f"v_cmp_eq_u32 vcc, {k}, v{VT2}")
        A("s_nop 1")
        A(f"v_cndmask_b32 v{SELA + k}, 0, v{VT}, vcc")
    A(f"v_lshlrev_b32 v{VST}, 5, v{VN16}")
    A(f"v_lshl_add_u32 v{VST}, v{VG}, 3, v{VST}")
    A(f"v_lshlrev_b32 v{VN16}, 4, v{VN16}")
    A(f"s_mul_i32 s{S_T}, s{S_W}, {L_WS}")
    A(f"s_add_u32 s{S_T}, s{S_T}, {L_W0}")
    A(f"v_mov_b32 v{VLB}, s{S_T}")
    A(f"v_lshl_add_u32 v{VRD}, v{VG}, 2, v{VLB}")
    A(f"s_lshl_b32 s36, s{S_W}, 10")
    A(f"v_mov_b32 v{VCB}, s36")
    A(f"v_lshlrev_b32 v{VCA}, 4, v{VL}")
    A(f"v_add_u32 v{VFILL}, s{S_T}, v{VCA}")
    A(f"v_add_u32 v{VCA}, s36, v{VCA}")
    A(f"v_lshlrev_b32 v{VT}, 2, v{VL}")
    for k in range(4):
        A(f"v_mov_b32 v{VPAD+k}, 0x{PADV:x}")
    for k in range(4):
        A(f"s_sub_u32 s36, s{S_BN}, {k}")
        A(f"v_cmp_gt_u32 vcc, s36, v{VT}")
        A(f"v_mov_b32 v{ACC+k}, 0")
        A("s_nop 0")
        A(f"v_cndmask_b32 v{MINV[k]}, 0, v{VONE}, vcc")
    A("LE_pass:")
    A(f"ds_write_b128 v{VCA}, {vr(ACC)}")
    for k in range(LIST_B // 1024):
        A(f"ds_write_b128 v{VFILL}, {vr(VPAD)} offset:{k*1024}")
    A(f"v_lshl_add_u32 v{VS}, v{VL}, 2, v{VLB}")
    A(f"ds_write_b32 v{VS}, v{ACC} offset:{LIST_B}")
    stamp()
    A(f"s_waitcnt vmcnt({16 + 3 * bool(DEG)})")
    stamp()
    A(f"v_sub_u32 v{VS}, v{CNT}, v{CP}")
    def slots(lab, fn, wait=False):
        for k in range(16):
            if wait: A(f"s_waitcnt vmcnt({15-k})" if not DEG else f"s_waitcnt vmcnt({min(15-k, 15)})")
            for j in range(4):
                A(f"v_cmpx_lt_i32 vcc, {4*LPS*k+j}, v{VS}")
                if j == 0: A(f"s_cbranch_execz {lab}")
                fn(4 * k + j)
        A(f"{lab}:")
        A("s_mov_b64 exec, -1")
    def f_count(s):
        A(f"v_mad_u32_u16 v{IDX+s}, v{E+s}, 1, v{VCB} op_sel:[1,0,0,0]")
        A(f"ds_add_u32 v{IDX+s}, v{VONE}")
    slots("LE_c", f_count, True)
    stamp()
    A(f"ds_read_b128 {vr(CB)}, v{VCA}")
    A("s_waitcnt lgkmcnt(0)")
    for k in range(4):
        A(f"v_add_u32 v{CB+k}, 3, v{CB+k}")
        A(f"v_lshrrev_b32 v{CB+k}, 2, v{CB+k}")
        A(f"v_max_u32 v{CB+k}, v{CB+k}, v{MINV[k]}")
    A(f"v_add_u32 v{VT}, v{CB}, v{CB+1}")
    A(f"v_add3_u32 v{VT}, v{VT}, v{CB+2}, v{CB+3}")
    A(f"v_mov_b32 v{PK}, v{VT}")
    wave_reduce(A, PK, None, "v_add_u32")
    A("s_nop 1")
    A(f"v_readlane_b32 s{S_NIT}, v{PK}, 63")
    A(f"v_sub_u32 v{GS}, v{PK}, v{VT}")
    for k in range(1, 4):
        A(f"v_add_u32 v{GS+k}, v{GS+k-1}, v{CB+k-1}")
    for k in range(4):
        A(f"v_add3_u32 v{VT}, v{GS+k}, v{CB+k}, -1")
        A(f"v_lshlrev_b32 v{VT2}, v{VT}, v{MINV[k]}")
        A(f"v_lshrrev_b32 v{VT}, 5, v{VT}")
        A(f"v_lshl_add_u32 v{VT}, v{VT}, 2, v{VLB}")
        A(f"ds_or_b32 v{VT}, v{VT2} offset:{LIST_B}")
        A(f"v_lshl_add_u32 v{GS+k}, v{GS+k}, 4, v{VLB}")
    A(f"ds_write_b128 v{VCA}, {vr(GS)}")
    A(f"s_add_u32 s{S_NIT}, s{S_NIT}, 31")
    A(f"s_lshr_b32 s{S_NIT}, s{S_NIT}, 5")
    stamp()
    slots("LE_p", lambda s: A(f"ds_add_rtn_u32 v{IDX+s}, v{IDX+s}, v{VFOUR}"))
    A(f"v_lshl_add_u32 v{VT}, v{VL}, 2, v{VLB}")
    A(f"ds_read_b32 v{VFL}, v{VT} offset:{LIST_B}")
    A("s_waitcnt lgkmcnt(0)")
    slots("LE_w", lambda s: A(f"ds_write_b32 v{IDX+s}, v{E+s}"))
    stamp()
    if DEG: A("s_waitcnt vmcnt(0)")
    if DEG:
        A(f"s_mov_b32 s{S_ND}, 0")
        A(f"v_lshlrev_b32 v{DGC}, 16, v{DG0}"); A(f"v_lshlrev_b32 v{DGC+1}, 16, v{DG0+1}"); A(f"v_lshlrev_b32 v{DGC+2}, 16, v{DG0+2}")
    A(f"v_mov_b32 v{VT2}, v{VRD}")
    NBT = 8
    def idx_read(b, par):
        i = IDXA[par]
        A(f"ds_read2_b32 v[{i}:{i+1}], v{VT2} offset0:{b*16} offset1:{b*16+4}")
        A(f"ds_read2_b32 v[{i+2}:{i+3}], v{VT2} offset0:{b*16+8} offset1:{b*16+12}")
    gl = opt.get('gl', '')
    def issue(b):
        par = b % 2
        A("s_waitcnt lgkmcnt(0)")
        idx_read(b + 1, 1 - par)
        for i in range(4):
            A(f"v_mad_u32_u16 v{AD+i}, v{IDXA[par]+i}, s{S_512}, v{VN16}")
        for i in range(4):
            r = (b * 4 + i) * 8
            A(f"buffer_load_dwordx4 {ar(r)}, v{AD+i}, {sr(SRD_G)}, 0 offen{gl}")
            A(f"buffer_load_dwordx4 {ar(r+4)}, v{AD+i}, {sr(SRD_G)}, 0 offen offset:256{gl}")
    idx_read(0, 0)
    for b in range(NBT):
        issue(b)
    A(f"v_add_u32 v{VT2}, {NBT*64}, v{VT2}")
    A(f"s_mov_b32 s{S_IT}, 0")
    A(f"s_lshl_b32 s{S_SO}, s{S_B0}, 9")
    if opt.get('eal') is not None:
        A(".p2align 6")
        for k in range(opt['eal']): A("s_nop 0")
    A("LE_loop:")
    A(f"v_readlane_b32 s{S_F}, v{VFL}, s{S_IT}")
    A(f"s_add_u32 s{S_IT}, s{S_IT}, 1")
    for b in range(NBT):
        A(f"s_waitcnt vmcnt({(NBT-1)*8})")
        for i in range(4):
            g = b * 4 + i
            r = g * 8
            A(f"v_mfma_f32_16x16x32_bf16 {vr(ACC)}, {ar(r)}, {vr(SELA)}, {vr(ACC)}")
            A(f"v_mfma_f32_16x16x32_bf16 {vr(ACC)}, {ar(r+4)}, {vr(SELB)}, {vr(ACC)}")
            A(f"s_bitcmp1_b32 s{S_F}, {g}")
            A(f"s_cbranch_scc0 LE_nf{g}")
            if DEG:
                A(f"v_readlane_b32 s{S_DG}, v{DGC}, s{S_ND}")
                A(f"s_add_u32 s{S_ND}, s{S_ND}, 1")
                A(f"s_and_b32 s{S_ND}, s{S_ND}, 63")
                A(f"s_cbranch_scc1 LE_dg{g}")
                A(f"v_mov_b32 v{DGC}, v{DGC+1}"); A(f"v_mov_b32 v{DGC+1}, v{DGC+2}")
                A(f"LE_dg{g}:")
                A("s_nop 3")
                for k in range(4): A(f"v_mul_f32 v{ACC+k}, s{S_DG}, v{ACC+k}")
            A(f"s_cmp_eq_u32 s{S_PASS}, 0")
            A(f"s_cbranch_scc1 LE_fl{g}")
            A(f"buffer_load_dwordx2 v[{PV}:{PV+1}], v{VST}, {sr(SRD_H)}, s{S_SO} offen sc1")
            A("s_waitcnt vmcnt(0)")
            for k in range(2):
                A(f"v_lshlrev_b32 v{PK}, 16, v{PV+k}")
                A(f"v_and_b32 v{PK+1}, 0xffff0000, v{PV+k}")
                A(f"v_add_f32 v{ACC+2*k}, v{ACC+2*k}, v{PK}")
                A(f"v_add_f32 v{ACC+2*k+1}, v{ACC+2*k+1}, v{PK+1}")
            A(f"LE_fl{g}:")
            if not DEG: A("s_nop 3")
            A(f"v_cvt_pk_bf16_f32 v{PK}, v{ACC}, v{ACC+1}")
            A(f"v_cvt_pk_bf16_f32 v{PK+1}, v{ACC+2}, v{ACC+3}")
            for k in range(4):
                A(f"v_mov_b32 v{ACC+k}, 0")
            A(f"buffer_store_dwordx2 v[{PK}:{PK+1}], v{VST}, {sr(SRD_H)}, s{S_SO} offen{opt.get('ste', '')}")
            A(f"s_add_u32 s{S_SO}, s{S_SO}, 512")
            A(f"LE_nf{g}:")
        issue(b)
    A(f"v_add_u32 v{VT2}, {NBT*64}, v{VT2}")
    A(f"s_cmp_lt_u32 s{S_IT}, s{S_NIT}")
    A("s_cbranch_scc1 LE_loop")
    stamp()
    A(f"s_add_u32 s{S_PASS}, s{S_PASS}, 1")
    A(f"s_mul_i32 s{S_LIM}, s{S_PASS}, {PER}")
    A(f"v_cmp_lt_u32 vcc, s{S_LIM}, v{CNT}")
    A("s_cbranch_vccz LE_done")
    A(f"s_cmp_ge_u32 s{S_PASS}, {ECAP // PER}")
    A("s_cbranch_scc1 LE_done")
    A("s_waitcnt vmcnt(0) lgkmcnt(0)")
    A(f"s_add_u32 s{S_EO}, s{S_EO}, {PER*4}")
    A(f"v_add_u32 v{CP}, 0x{PER:x}, v{CP}")
    eloads()
    A("s_branch LE_pass")
    A("LE_done:")
    if opt.get('eend'): opt['eend'](o)
    if opt.get('tpf'):
        l0, l1 = opt.get('tpl', ("L2_tail_0", "L2_rare_site0"))
        A("s_getpc_b64 s[52:53]")
        A("LE_pc:")
        A(f"s_sub_u32 s52, s52, LE_pc-{l0}")
        A("s_subb_u32 s53, s53, 0")
        A(f"s_mov_b32 s54, {l1}-{l0}")
        A("s_mov_b32 s55, 0x00020000")
        A("s_mov_b64 exec, -1")
        A(f"v_lshlrev_b32 v30, 7, v{VL}")
        for k in range(opt['tpf']):
            A(f"s_mov_b32 s56, 0x{k*8192:x}")
            A(f"buffer_load_dword v{32+k}, v30, s[52:55], s56 offen")
    if timing:
        A("s_waitcnt vmcnt(0)")
        stamp()
        A(f"v_subrev_u32 v0, s100, v126")
        A("s_memrealtime s[98:99]")
        A("s_waitcnt lgkmcnt(0)")
        A("v_writelane_b32 v0, s98, 7")
        if opt.get('cnts'): srd_from(o, 60, 4, 224 << 20, 0x200000)
        else: A("s_mov_b32 s62, 0x200000\ns_mov_b32 s63, 0x00020000")
        A(f"s_lshl_b32 s35, s{S_B}, 8")
        A(f"s_add_u32 s35, s35, 0x100000")
        A(f"v_lshlrev_b32 v1, 2, v{VL}")
        A(f"buffer_store_dword v0, v1, s[60:63], s35 offen")
    if opt.get('help'):
        A("s_cmp_ge_u32 s2, 240")
        A("s_cbranch_scc1 LC_help")
    A("s_branch L2_end")
```

```python
from layout import *
from sched import *
import hazard

MF32 = "v_mfma_f32_16x16x32_bf16"
HLIMG, ZIMG, WREC, OTR, VOTE = 0, 24576, 49152, 57344, 0x20000
SX, SW, SP, SM, SH, SO, SD = 8, 56, 20, 24, 28, 40, 44
SF = SW; FLO = FL_OFF - WF_OFF; SW_BYTES = FLO + FL_BYTES; NSIDE = NBU + NSPLIT
S_RO, S_T, S_MASK, S_WB, S_ML0, S_FO, S_SPIN, S_SIDE, S_VOTE = 52, 55, 12, 13, 14, 15, 36, 99, 98
TMPS = [32, 33, 35, 39]
VHL, VML, VDG, VX, VOP, VBH, VWW, VWR, VTW, VTR, VZ, DG, VFL, VFA, VFT, VV = [5, 6], 7, 8, 9, 10, 11, 13, 14, 15, 17, 18, 19, 22, 23, 24, 25
ACC, XR, WT, ZA, T, BF, POOL = 28, 76, 80, 88, 96, 104, 128
P_X, P_DEG, P_OUT = 6, 16, 18
WA = lambda m, j, t, b: (((m * 2 + j) * 8 + t) * 2 + b) * 4


def wload(m, j, t, b, s, VL16):
    return (f"s_add_u32 s{s}, s{S_WB}, 0x{m*131072 + j*16384 + (t >> 1)*4096:x}",
            f"buffer_load_dwordx4 {ar(WA(m, j, t, b))}, v{VL16}, {sr(SW)}, s{s} offen offset:{(t & 1)*2048 + b*1024}")


def tail_entry(S_WAVE, VL16, va, vb):
    o = []
    srd_from(o, SW, 4, WF_OFF, SW_BYTES)
    o = [o[0] + "\n" + o[1]] + o[2:]
    o += ["s_lshr_b32 s35, s2, 1", "s_and_b32 s35, s35, 28", f"s_add_u32 s35, s35, s{S_WAVE}", "s_lshl_b32 s35, s35, 13",
          f"v_lshlrev_b32 v{va}, 3, v{VL16}", f"buffer_load_dword v{va}, v{va}, {sr(SW)}, s35 offen",
          f"s_mov_b32 s35, 0x{FLO + 40*128:x}", f"buffer_load_dword v{vb}, off, {sr(SW)}, s35 sc1"]
    return o


ORD = {
    'e': "mmm" + "0" * 12 + "|" + "1" * 12 + "|" + "2" * 12 + "|",
    'a': "mmmhhhhhh0|00000" + "0b0b0b0b0b0b|" + "1bb" * 12 + "|" + "2b2b" + "2" * 10 + "|",
    'b': "mmmhhhhhh0|00000000000|" + "1bbb" * 10 + "1bb1|" + "2" * 12 + "|",
    'c': "mmm000000hhhhhh|000000|" + "1bbb" * 10 + "1bb1|" + "2" * 12 + "|",
}


def flag_add(o, idx, sgpr_idx=None, v=(1, 2), srd=60):
    A = o.append
    srd_from(o, srd, 4, FL_OFF, FL_BYTES)
    A(f"v_mov_b32 v{v[0]}, {idx * 128}")
    A(f"v_mov_b32 v{v[1]}, 1")
    A("s_mov_b64 exec, 1")
    A("s_waitcnt vmcnt(0)")
    A(f"buffer_atomic_add v{v[1]}, v{v[0]}, {sr(srd)}, 0 offen")
    A("s_mov_b64 exec, -1")


def phase_c(o, opt, S_WAVE, S_SPL, S_QT, VL16, slow):
    q = []
    A = lambda t, **k: q.append(V(t, **k))
    nst = [0]
    def stamp():
        if opt.get('timing') == 2 and nst[0] < 9:
            A(f"s_memtime s[{74+2*nst[0]}:{75+2*nst[0]}]"); nst[0] += 1
    ld = opt.get('cld', ' sc1')
    tn = [0]
    def stmp():
        tn[0] += 1; return TMPS[tn[0] % 4]
    free = list(range(POOL, 249, 4)); reg = {}; low = [99]
    def issue(e):
        ch, k = e
        if ch in 'md012':
            reg[e] = free.pop(0); low[0] = min(low[0], len(free))
        r = reg.get(e)
        if ch == 'h':
            rb, u = k // 2, k % 2
            s = stmp()
            A(f"s_lshl_b32 s{s}, s{S_WAVE}, 10")
            A(f"s_add_u32 m0, s{s}, {HLIMG + rb*8192 + u*4096}")
            q.append(VM(f"buffer_load_dwordx4 v{VHL[u]}, {sr(SH)}, s{S_RO+rb} offen{ld} lds", tag=e))
        elif ch == 'x':
            rb, u = k // 2, k % 2
            s = stmp()
            A(f"s_add_u32 m0, s{S_T}, {k*1024}")
            A(f"s_add_u32 s{s}, s{S_RO+rb}, {u*4096}")
            q.append(VM(f"buffer_load_dwordx4 v{VX}, {sr(SX)}, s{s} offen lds", tag=e))
        elif ch == 'm':
            A("s_mov_b32 exec_hi, 0xffff")
            q.append(VM(f"buffer_load_dwordx4 {vr(r)}, v{VML}, {sr(SM)}, s{S_ML0} offen offset:{16*k}{ld}", tag=e))
            A("s_mov_b32 exec_hi, -1")
        elif ch == 'd':
            s = stmp()
            A(f"s_lshr_b32 s{s}, s{S_RO}, 8")
            q.append(VM(f"buffer_load_ushort v{r}, v{VDG}, {sr(SD)}, s{s} offen", tag=e))
        elif ch in '012':
            rb = int(ch); c, sp = k // 6, k % 6
            s = stmp()
            A(f"s_add_u32 s{s}, s{S_RO+rb}, 0x{sp*OP_STRIDE:x}")
            q.append(VM(f"buffer_load_dwordx4 {vr(r)}, v{VOP}, {sr(SP)}, s{s} offen offset:{c*1024}{ld}", tag=e))
        else:
            m = 'ab'.index(ch); j, t, b = k // 16, (k >> 1) & 7, k & 1
            new = k % 4 == 0 or reg.get('wn') != tn[0]
            if new: reg['ws'] = stmp(); reg['wn'] = tn[0]
            x, y = wload(m, j, t, b, reg['ws'], VL16)
            if new: A(x)
            q.append(VM(y, tag=e))
    cnt = {}
    def issue_str(x):
        for ch in x:
            issue((ch, cnt.get(ch, 0))); cnt[ch] = cnt.get(ch, 0) + 1
    tw = opt.get('tw', 3)
    cnt['a'] = min(tw, 2) * 16; cnt['b'] = max(tw - 2, 0) * 16; w0 = dict(cnt)
    A("LC_start:")
    stamp()
    q.append(VM("s_nop 0", tag='st'))
    A(f"s_lshl_b32 s{S_WB}, s{S_WAVE}, 15")
    issue_str(opt.get('cpre0', "b" * 8))
    A("s_cmp_lg_u64 vcc, 0")
    A(f"s_cselect_b32 s{S_VOTE}, 1, 0")
    A(f"s_lshl_b32 s{S_T}, s{S_WAVE}, 13")
    A(f"s_add_u32 s{S_T}, s{S_T}, 0x{VOTE:x}")
    A(f"v_mov_b32 v{VV}, s{S_T}")
    A(f"v_mov_b32 v{VV+1}, s{S_VOTE}")
    q.append(LD(f"ds_write_b32 v{VV}, v{VV+1}"))
    A(f"v_lshrrev_b32 v0, 4, v{VL16}")
    A("v_and_b32 v2, 15, v0")
    A("v_lshrrev_b32 v3, 4, v0")
    A(f"s_mul_i32 s32, s{S_SPL}, 3")
    A(f"s_lshl_b32 s33, s{S_SPL}, 1")
    A("s_add_u32 s33, s33, 4")
    A("s_min_u32 s32, s32, s33")
    A(f"s_lshl_b32 s33, s{S_QT}, 4")
    A("s_add_u32 s32, s32, s33")
    A(f"s_lshl_b32 s{S_RO}, s32, 13")
    A(f"s_add_u32 s{S_RO+1}, s{S_RO}, 8192")
    A(f"s_add_u32 s{S_RO+2}, s{S_RO}, 16384")
    A(f"s_lshl_b32 s{S_ML0}, s32, 10")
    A(f"s_cmp_eq_u32 s32, {NB16 - 4}")
    A(f"s_cselect_b32 s33, 0, s{S_SPL}")
    A("s_cmp_lt_u32 s33, 4")
    A(f"s_cselect_b32 s{S_RO+2}, s{S_RO+2}, 0x7fff0000")
    t = []
    srd_from(t, SX, P_X, 0, N * 512); srd_from(t, SP, 4, OP_OFF, (NSPLIT - 1) * OP_STRIDE + QF_BYTES)
    srd_from(t, SH, 4, HL_OFF, HL_BYTES); srd_from(t, SO, P_OUT, 0, N * 512); srd_from(t, SD, P_DEG, 0, N * 2)
    for x in t: A(x)
    A(f"s_cmp_eq_u32 s{S_WAVE}, 0")
    A(f"s_cselect_b32 s{S_FO}, 0x{FLO:x}, s{S_RO+2}")
    A(f"s_cselect_b32 s{S_FO}, s{S_FO}, 0x7fff0000")
    A(f"s_mov_b32 s{S_MASK}, 0xffff0000")
    A(f"s_mul_i32 s{S_T}, s{S_WAVE}, 6144")
    A(f"s_add_u32 s{S_T}, s{S_T}, {OTR}")
    A(f"s_lshl_b32 s33, s{S_WAVE}, 7")
    A("v_and_b32 v1, 7, v0")
    A(f"v_xor_b32 v{VHL[0]}, v1, v3")
    A("v_lshrrev_b32 v4, 3, v0")
    A(f"v_xor_b32 v{VX}, v1, v4")
    A("v_lshl_add_u32 v4, v4, 9, s33")
    A(f"v_lshl_add_u32 v{VHL[0]}, v{VHL[0]}, 4, v4")
    A(f"v_xor_b32 v{VHL[1]}, 64, v{VHL[0]}")
    A(f"v_add_u32 v{VHL[1]}, 0x1000, v{VHL[1]}")
    A(f"v_lshl_add_u32 v{VX}, v{VX}, 4, v4")
    A(f"v_lshlrev_b32 v{VML}, 6, v0")
    A(f"v_lshlrev_b32 v{VDG}, 1, v0")
    A(f"s_lshl_b32 s33, s{S_WAVE}, 11")
    A(f"v_add_u32 v{VOP}, s33, v{VL16}")
    A(f"v_add_u32 v{VZ}, 0x{ZIMG:x}, v{VOP}")
    A("v_lshrrev_b32 v1, 1, v2")
    A("v_xor_b32 v1, v1, v3")
    A(f"v_lshrrev_b32 v{VBH}, 3, v2")
    A(f"v_lshlrev_b32 v{VBH}, 12, v{VBH}")
    A(f"v_lshl_add_u32 v{VBH}, v1, 4, v{VBH}")
    A("v_and_b32 v1, 7, v2")
    A(f"v_lshl_add_u32 v{VBH}, v1, 7, v{VBH}")
    A(f"v_xor_b32 v{VBH+1}, 64, v{VBH}")
    A(f"s_add_u32 s33, s33, {WREC}")
    A(f"v_lshl_add_u32 v{VWW}, v0, 5, s33")
    A(f"v_lshl_add_u32 v{VWR}, v2, 5, s33")
    A("v_xor_b32 v1, v1, v3")
    A(f"v_lshl_add_u32 v{VTW}, v2, 7, s{S_T}")
    A(f"v_lshl_add_u32 v{VTW}, v1, 4, v{VTW}")
    A(f"v_xor_b32 v{VTW+1}, 64, v{VTW}")
    A(f"v_add_u32 v{VTR}, s{S_T}, v{VL16}")
    A(f"s_lshl_b32 s33, s{S_QT}, 7")
    A(f"v_mov_b32 v{VFL}, s33")
    A(f"v_mov_b32 v{VFA}, 1")
    A(f"v_and_b32 v{VV}, 3, v0")
    A(f"v_lshlrev_b32 v{VV}, 13, v{VV}")
    A(f"v_add_u32 v{VV}, 0x{VOTE:x}, v{VV}")
    stamp()
    A(f"s_cmp_ge_u32 s{S_SIDE}, {NSIDE}")
    A("s_cbranch_scc0 LC_side")
    A("LC_sideok:")
    A("s_waitcnt lgkmcnt(0)", needs=['st'])
    stamp()
    A("s_barrier")
    q.append(LD(f"ds_read_b32 v{VV+1}, v{VV}", tag='vote'))
    A(f"v_cmp_ne_u32 vcc, 0, v{VV+1}", needs=['vote'])
    A("s_cbranch_vccnz LC_slow")
    A("s_mov_b64 exec, 1")
    q.append(VM(f"buffer_atomic_add v{VFA}, v{VFL}, {sr(SF)}, s{S_FO} offen sc0", tag='fl'))
    A("s_mov_b64 exec, -1")
    issue_str(opt.get('cpre', "b" * 8 + "d" + "h" * 6 + "x" * 6))
    arrived = {(ch, k) for ch in cnt for k in range(cnt[ch])}
    stamp()
    A(f"s_cmp_lg_u32 s{S_WAVE}, 0")
    A("s_cbranch_scc1 LC_go")
    A(f"s_mov_b32 s{S_SPIN}, 0")
    A("s_mov_b64 exec, 1", needs=['fl'])
    A(f"v_add_u32 v{VFA}, 1, v{VFA}")
    A("LC_poll:")
    A(f"v_cmp_gt_u32 vcc, {NSPLIT}, v{VFA}")
    A("s_cbranch_vccz LC_got")
    A(f"s_add_u32 s{S_SPIN}, s{S_SPIN}, 1")
    A(f"s_cmp_gt_u32 s{S_SPIN}, 0x40000")
    A("s_cbranch_scc1 LC_got")
    A(f"s_sleep {opt.get('psleep', 1)}")
    A(f"buffer_load_dword v{VFA}, v{VFL}, {sr(SF)}, s{S_FO} offen sc1")
    A("s_waitcnt vmcnt(0)")
    A("s_branch LC_poll")
    A("LC_got:")
    A("s_mov_b64 exec, -1")
    A("LC_go:")
    hok = [False]
    if ('h', 5) in arrived: q.append(W(('h', 5))); hok[0] = True
    A("s_barrier"); q.append(('BAR', len(q))); barpos = [len(q) - 1]
    stamp()
    order = ORD.get(opt.get('cord', 'e'), opt.get('cord', 'e'))
    L = []; bar = set()
    for ch in order:
        if ch == '|': bar.add(len(L) - 1); continue
        L.append((ch, cnt.get(ch, 0))); cnt[ch] = cnt.get(ch, 0) + 1
    assert cnt == dict(h=6, m=3, d=1, x=6, a=32, b=32, **{'0': 12, '1': 12, '2': 12}), cnt
    def rel(e): free.append(reg[e])
    tv = [0]
    def tmp():
        tv[0] += 1; return T + (tv[0] % 4) * 2
    def wt_read(rb):
        q.append(LD(f"ds_read_b128 {vr(WT)}, v{VWR} offset:{rb*512}"))
        q.append(LD(f"ds_read_b128 {vr(WT+4)}, v{VWR} offset:{rb*512+16}", tag=('wt', rb)))
    rbseq = [int(c) for c, k in L if c in '012' and k == 0]
    def weights():
        m = lambda s: reg[('m', s // 2)] + 2 * (s % 2)
        l = lambda s: m(s) + 1
        A(f"v_max3_f32 v1, v{m(0)}, v{m(1)}, v{m(2)}")
        A(f"v_max3_f32 v{T+1}, v{m(3)}, v{m(4)}, v{m(5)}")
        A(f"v_max_f32 v1, v1, v{T+1}")
        for s in range(NSPLIT): A(f"v_sub_f32 v{m(s)}, v{m(s)}, v1")
        for s in range(NSPLIT): A(f"v_exp_f32 v{m(s)}, v{m(s)}")
        A(f"v_lshlrev_b32 v{ZA+3}, 16, v{reg[('d', 0)]}", needs=[('d', 0)])
        A(f"v_mul_f32 v1, v{m(0)}, v{l(0)}")
        for s in range(1, NSPLIT): A(f"v_fmac_f32 v1, v{m(s)}, v{l(s)}")
        A("v_rcp_f32 v1, v1")
        A(f"v_mov_b32 v{ZA+7}, v{ZA+3}")
        for s in range(NSPLIT): A(f"v_mul_f32 v{ZA + s + s // 3}, v{m(s)}, v1")
        q.append(LD(f"ds_write_b128 v{VWW}, {vr(ZA)}"))
        q.append(LD(f"ds_write_b128 v{VWW}, {vr(ZA+4)} offset:16"))
        for rb in range(3): q.append(LD(f"ds_read_b32 v{DG+rb}, v{VWR} offset:{rb*512+12}", tag='dg'))
        wt_read(rbseq[0])
        for k in range(3): rel(('m', k))
        rel(('d', 0))
    zw = set(); zok = set()
    def cstep(rb, k0):
        c, s = k0 // 6, k0 % 6
        r = reg[(str(rb), k0)]
        wi = s + s // 3
        for k in range(4):
            t = tmp(); a = ZA + 2 * k
            A(f"v_lshlrev_b32 v{t}, 16, v{r+k}", needs=[('wt', rb)])
            A(f"v_and_b32 v{t+1}, s{S_MASK}, v{r+k}")
            for u in range(2): A(f"{'v_mul_f32' if s == 0 else 'v_fmac_f32'} v{a+u}, v{t+u}, v{WT+wi}")
        rel((str(rb), k0))
        if s == 5:
            if c == 1:
                n = rbseq.index(rb)
                if n < 2: wt_read(rbseq[n + 1])
            for k in range(4): A(f"v_cvt_pk_bf16_f32 v{T+k}, v{ZA+2*k}, v{ZA+2*k+1}")
            q.append(LD(f"ds_write_b128 v{VZ}, {vr(T)} offset:{rb*8192 + c*1024}", tag='z'))
            if c == 1: zw.add(rb)
    acc = lambda rb, j, b: ACC + ((rb * 2 + j) * 2 + b) * 4
    nxt = {(m, rb): 0 for m in range(2) for rb in range(3)}
    groups = []
    XL = opt.get('xlate', 1)
    def xadd(rb, j, mul):
        q.append(LD(f"ds_read_b128 {vr(XR)}, v{VTW+j} offset:{rb*2048}", tag='xr', needs=[('x', 2 * rb), ('x', 2 * rb + 1)]))
        for k in range(4):
            t = tmp(); a = acc(rb, j, 0) + 2 * k
            A(f"v_lshlrev_b32 v{t}, 16, v{XR+k}", needs=['xr', 'dg'])
            A(f"v_and_b32 v{t+1}, s{S_MASK}, v{XR+k}")
            for u in range(2): A(f"v_fma_f32 v{a+u}, v{a+u}, v{DG+rb}, v{t+u}" if mul else f"v_add_f32 v{a+u}, v{a+u}, v{t+u}")
    def fma_x(rb):
        for j in range(2):
            if not XL: xadd(rb, j, 1)
            else:
                for k in range(8): A(f"v_mul_f32 v{acc(rb, j, 0)+k}, v{acc(rb, j, 0)+k}, v{DG+rb}", needs=['dg'])
    stores = []
    def ep(rb):
        for j in range(2):
            a = acc(rb, j, 0)
            if XL: xadd(rb, j, 0)
            for k in range(4): A(f"v_cvt_pk_bf16_f32 v{a+k}, v{a+2*k}, v{a+2*k+1}")
            q.append(LD(f"ds_write_b128 v{VTW+j}, {vr(a)} offset:{rb*2048}"))
        for j in range(2): q.append(LD(f"ds_read_b128 {vr(acc(rb, j, 1))}, v{VTR} offset:{rb*2048 + j*1024}", tag=('y', rb, j)))
        stores.append(rb)
    def do_stores():
        for rb in stores:
            for j in range(2):
                s = stmp()
                A(f"s_add_u32 s{s}, s{S_RO+rb}, {j*4096}")
                q.append(VM(f"buffer_store_dwordx4 {vr(acc(rb, j, 1))}, v{VX}, {sr(SO)}, s{s} offen{opt.get('cst', '')}", needs=[('y', rb, j)]))
        stores.clear()
    pend = []; wdone = []
    def run(p): fma_x(p[1]) if p[0] == 'fma' else ep(p[1])
    def mf_step(cap):
        n = 0
        while n < cap:
            cand = []
            for (m, rb), t in nxt.items():
                if t == 8: continue
                if m == 0 and not hok[0]: continue
                if m == 1 and (rb not in zok or nxt[(0, rb)] < 8): continue
                if ('ab'[m], 16 + 2 * t + 1) not in arrived: continue
                cand.append((m, t, rb) if m == 0 else (m, rbseq.index(rb), t, rb))
            if not cand: break
            c = min(cand); m, t, rb = c[0], c[-2], c[-1]
            if ('fma', rb) in pend: pend.remove(('fma', rb)); fma_x(rb)
            q.append(('G', len(groups))); groups.append((m, t, rb, barpos[0] if m == 1 or not groups else groups[-1][3]))
            nxt[(m, rb)] += 1; n += 1
            for p in [p for p in pend if p[1] != rb and wdone]:
                pend.remove(p); run(p)
            if t == 7: pend.append(('fma' if m == 0 else 'ep', rb))
    D = opt.get('cd', 12)
    for k in range(min(D, len(L))): issue(L[k])
    mf_step(opt.get('hfirst', 24))
    for k, e in enumerate(L):
        q.append(W(e)); arrived.add(e)
        if k + D < len(L): issue(L[k + D])
        elif stores: do_stores()
        for p in list(pend) if wdone else []:
            pend.remove(p); run(p)
        if e == ('m', 2): weights(); wdone.append(1)
        if e[0] in '012': cstep(int(e[0]), e[1])
        if k in bar:
            if zw - zok: q.append(W('z'))
            A("s_barrier"); q.append(('BAR', len(q))); barpos[0] = len(q) - 1
            stamp()
            zok |= zw
            if ('h', 5) in arrived: hok[0] = True
        mf_step(opt.get('ccap2', 2) if k + D < len(L) else 99)
    mf_step(99)
    for p in list(pend): run(p)
    do_stores()
    assert all(t == 8 for t in nxt.values()), nxt
    NR = 6
    F = lambda n: BF + (n % NR) * 4
    def rd(n):
        m, t, rb = groups[n][:3]
        if m == 0: s = f"ds_read_b128 {vr(F(n))}, v{VBH + (t & 1)} offset:{HLIMG + rb*8192 + (t >> 1)*1024}"
        else: s = f"ds_read_b128 {vr(F(n))}, v{VL16} offset:{ZIMG + rb*8192 + t*1024}"
        return LD(s, tag=('f', n))
    out = []; nr = 0; done = -1
    for pos, it in enumerate(q):
        if isinstance(it, tuple) and it[0] == 'G':
            n = it[1]; m, t, rb, _ = groups[n]
            assert nr > n
            for jb in range(4):
                j, b = jb >> 1, jb & 1
                c = "0" if m == 0 and t == 0 else vr(acc(rb, j, b))
                out.append(Ins(f"{MF32} {vr(acc(rb,j,b))}, {ar(WA(m,j,t,b))}, {vr(F(n))}, {c}", 0, needs=[('f', n)] + [x for x in [('ab'[m], 16 * j + 2 * t + b)] if x[1] >= w0['ab'[m]]]))
                if jb == 0:
                    done = n - 1
                    if nr < len(groups) and nr <= done + NR and groups[nr][3] <= pos: out.append(rd(nr)); nr += 1
            done = n
        elif isinstance(it, tuple): pass
        else: out.append(it); continue
        if it[0] == 'BAR':
            while nr < len(groups) and nr <= done + NR - 1 and groups[nr][3] <= pos: out.append(rd(nr)); nr += 1
    if opt.get('verbose'): print("phase C", order, "min free", low[0], "len", len(out))
    o += hazard.fix(Emitter().emit(out))
    o.append("s_branch L2_fin")
    o.append("LC_side:")
    o += [f"s_mov_b32 s{S_SPIN}, 0", f"s_mov_b32 s33, 0x{FLO + 40*128:x}", "LC_side2:", f"buffer_load_dword v1, off, {sr(SW)}, s33 sc1", "s_waitcnt vmcnt(0)",
          f"v_readfirstlane_b32 s{S_SIDE}, v1", f"s_add_u32 s{S_SPIN}, s{S_SPIN}, 1", f"s_cmp_gt_u32 s{S_SPIN}, 0x40000", "s_cbranch_scc1 LC_sideok", "s_sleep 4",
          f"s_cmp_ge_u32 s{S_SIDE}, {NSIDE}", "s_cbranch_scc0 LC_side2", "s_branch LC_sideok"]
    o.append("LC_slow:")
    o.append("s_waitcnt vmcnt(0)")
    o.append("s_barrier")
    o.append(f"s_cmp_eq_u32 s{S_VOTE}, 0")
    o.append("s_cbranch_scc1 LC_slowend")
    slow(o)
    o.append("LC_slowend:")
    o.append("s_barrier")
    srd_from(o, SW, 4, WF_OFF, SW_BYTES)
    o.append(f"s_lshl_b32 s{S_WB}, s{S_WAVE}, 15")
    for k in range(16 * tw):
        o += wload(k // 32, (k >> 4) & 1, (k >> 1) & 7, k & 1, 35, VL16)
    o.append("s_mov_b64 vcc, 0")
    o.append("s_branch LC_start")
```

```python
from layout import *
from sched import *
import hazard

MF32 = "v_mfma_f32_16x16x32_bf16"
HLIMG, ZIMG, WREC, OTR, VOTE = 0, 0x8000, 0xe000, 0x18000, 0x20000
SX, SW, SP, SM, SH, SO, SD = 8, 56, 20, 24, 28, 40, 44
FLO = FL_OFF - WF_OFF; SW_BYTES = FLO + FL_BYTES; NSIDE = NBU
S_RO, S_T, S_MASK, S_WB, S_EXIT, S_FO, S_SPIN, S_SIDE, S_VOTE, S_FL, S_HB = 52, 55, 12, 13, 14, 15, 36, 99, 98, 48, 100
TMPS = [32, 33, 35, 39]; S_POFF, S_ROT, S_HW = 51, 3, 101
VHL, VML, VDG, VX, VOP, VBH, VWW, VWR, VTW, VTR, VZ, DG, VFL, VFA, VV = [5, 6], 7, 8, 9, 10, 11, 13, 14, 15, 17, 18, 19, 22, 23, 24
VZ2 = 26; VTW2, VTR2, VDEG = 244, 246, 255
S_FB, S_PV, S_T2 = 60, 70, 73
ACC, XR, WT, ZA, T, T2, BF, POOL = 28, 76, 80, 88, 96, 104, 112, 136
P_X, P_DEG, P_OUT = 6, 16, 18
OOB = 0x7fff0000
WA = lambda m, j, t, b: (((m * 2 + j) * 8 + t) * 2 + b) * 4


def wload(m, j, t, b, s, VL16):
    return (f"s_xor_b32 s{s}, s{S_WB}, 0x{m*131072 + j*16384 + t*2048:x}",
            f"buffer_load_dwordx4 {ar(WA(m, j, t, b))}, v{VL16}, {sr(SW)}, s{s} offen offset:{b*1024}")


def tail_entry(S_WAVE, VL16, va, vb):
    o = []
    srd_from(o, SW, 4, WF_OFF, SW_BYTES)
    o = [o[0] + "\n" + o[1]] + o[2:]
    o += ["s_lshr_b32 s35, s2, 1", "s_and_b32 s35, s35, 28", f"s_add_u32 s35, s35, s{S_WAVE}", "s_lshl_b32 s35, s35, 13",
          f"v_lshlrev_b32 v{va}, 3, v{VL16}", f"buffer_load_dword v{va}, v{va}, {sr(SW)}, s35 offen",
          ]
    return o


def side_poll(vb): return [f"s_mov_b32 s33, 0x{FLO + 40*128:x}", f"buffer_load_dword v{vb}, off, {sr(SW)}, s33 sc1"]


def hl_addr(S_WAVE, VL16, va, vb, s):
    return [f"s_lshl_b32 s{s}, s{S_WAVE}, 7", f"v_bfe_u32 v{va}, v{VL16}, 4, 3", f"v_lshrrev_b32 v{vb}, 8, v{VL16}", f"v_xor_b32 v{va}, v{va}, v{vb}",
            f"v_lshrrev_b32 v{vb}, 7, v{VL16}", f"v_lshl_add_u32 v{vb}, v{vb}, 9, s{s}", f"v_lshl_add_u32 v{va}, v{va}, 4, v{vb}",
            f"v_xor_b32 v{vb}, 64, v{va}", f"v_add_u32 v{vb}, 0x1000, v{vb}"]


def hl_tail(S_WAVE, S_SPL, S_QT, S_H, VL16, va, vb, srd):
    o = []
    srd_from(o, srd, 4, HL_OFF, HL_BYTES)
    o = [o[0] + "\n" + o[1]] + o[2:]
    o += [f"s_mul_i32 s35, s{S_SPL}, 3", f"s_lshl_b32 s36, s{S_QT}, 4", "s_add_u32 s35, s35, s36", "s_lshl_b32 s35, s35, 13",
          f"s_cmp_eq_u32 s{S_SPL}, {NSPLIT-1}\ns_cselect_b32 s35, 0x{OOB:x}, s35",
          f"s_lshl_b32 s36, s{S_WAVE}, 10", f"s_add_u32 s36, s36, s{S_HB}"]
    h = hl_addr(S_WAVE, VL16, va, vb, 39)
    early = o + h[:1]
    o = h[1:] + [f"s_cmp_ge_u32 s{S_SIDE}, {NSIDE}\ns_cselect_b32 s35, s35, 0x{OOB:x}"]
    for k in range(6):
        o += [f"s_add_u32 m0, s36, {k * 4096}", 1, f"buffer_load_dwordx4 v{(va, vb)[k % 2]}, {sr(srd)}, s35 offen sc1 lds"]
        if k % 2 and k < 5: o.append("s_add_u32 s35, s35, 8192")
    return early, o


def x_addr(S_WAVE, VL16, va, vb, s):
    return [f"s_lshl_b32 s{s}, s{S_WAVE}, 7", f"v_bfe_u32 v{va}, v{VL16}, 4, 3", f"v_lshrrev_b32 v{vb}, 7, v{VL16}", f"v_xor_b32 v{va}, v{va}, v{vb}",
            f"v_lshl_add_u32 v{vb}, v{vb}, 9, s{s}", f"v_lshl_add_u32 v{va}, v{va}, 4, v{vb}"]


def stage_bases(S_WAVE):
    return [f"s_lshl_b32 s{S_T}, s{S_WAVE}, 13", f"s_add_u32 s{S_T}, s{S_T}, 0x{VOTE + 4096:x}", f"s_lshl_b32 s{S_T2}, s{S_WAVE}, 11",
            f"s_add_u32 s{S_T2}, s{S_T2}, s{S_HB}", f"s_add_u32 s{S_T2}, s{S_T2}, 0x6000"]


def x_tail(S_WAVE, S_SPL, S_QT, VL16, va, vb):
    o = []
    srd_from(o, SX, P_X, 0, N * 512)
    o = [o[0] + "\n" + o[1]] + o[2:]
    o += [f"s_mul_i32 s35, s{S_SPL}, 3", f"s_lshl_b32 s36, s{S_QT}, 4", "s_add_u32 s35, s35, s36", "s_lshl_b32 s35, s35, 13"]
    o += stage_bases(S_WAVE) + x_addr(S_WAVE, VL16, va, vb, 36)
    for k in range(6):
        o += [f"s_add_u32 m0, s{S_T if k < 4 else S_T2}, {(k % 4) * 1024}", 1, f"buffer_load_dwordx4 v{va}, {sr(SX)}, s35 offen lds"]
        if k < 5: o.append("s_add_u32 s35, s35, 4096")
    return o


def d_tail(S_SPL, S_QT, VL16, va):
    o = []
    srd_from(o, SX, P_DEG, 0, N * 2)
    o = [o[0] + "\n" + o[1]] + o[2:]
    o += [f"s_mul_i32 s35, s{S_SPL}, 3", f"s_lshl_b32 s36, s{S_QT}, 4", "s_add_u32 s35, s35, s36", "s_lshl_b32 s35, s35, 5", f"v_lshrrev_b32 v{va}, 3, v{VL16}",
          f"buffer_load_ushort v{VDEG}, v{va}, {sr(SX)}, s35 offen"]
    return o


def flag_add(o, idx, v=(1, 2), srd=60, pre=None):
    A = o.append
    srd_from(o, srd, 4, FL_OFF, FL_BYTES)
    A(f"v_mov_b32 v{v[0]}, {idx * 128}")
    A(f"v_mov_b32 v{v[1]}, 1")
    if pre: o += pre
    A("s_mov_b64 exec, 1")
    A("s_waitcnt vmcnt(0)")
    A(f"buffer_atomic_add v{v[1]}, v{v[0]}, {sr(srd)}, 0 offen")
    A("s_mov_b64 exec, -1")


def helper_entry(o, S_WAVE, VL16, s_w):
    A = o.append
    A("LC_help:")
    A("s_waitcnt vmcnt(0)")
    A(f"s_mov_b32 s{S_HB}, 0")
    for p_, ka in ((P_X, KA_X), (P_DEG, KA_DEG), (P_OUT, KA_OUT)): A(f"s_load_dwordx2 s[{p_}:{p_+1}], s[0:1], {ka}")
    A(f"s_mov_b32 s{S_WAVE}, s{s_w}")
    A(f"v_mbcnt_lo_u32_b32 v{VL16}, -1, 0")
    A(f"v_mbcnt_hi_u32_b32 v{VL16}, -1, v{VL16}")
    A(f"v_lshlrev_b32 v{VL16}, 4, v{VL16}")
    A("s_and_b32 s32, s2, 7")
    A("s_mul_i32 s32, s32, 5")
    A("s_bfe_u32 s33, s2, 0x10003")
    A("s_mul_i32 s35, s33, 3")
    A("s_add_u32 s32, s32, s35")
    for k in range(3):
        A(f"s_add_u32 s35, s32, {k}")
        A(f"s_lshl_b32 s{S_FL+k}, s35, 7")
        A(f"s_lshl_b32 s{S_RO+k}, s35, 17")
        A(f"s_add_u32 s{S_RO+k}, s{S_RO+k}, {15 * 8192}")
    A(f"s_cmp_eq_u32 s{S_FL+1}, {39 * 128}")
    A(f"s_cselect_b32 s{S_RO+1}, {624 * 8192}, s{S_RO+1}")
    A("s_cmp_eq_u32 s33, 1")
    A(f"s_cselect_b32 s{S_RO+2}, 0x{OOB:x}, s{S_RO+2}")
    A(f"s_cselect_b32 s{S_FL+2}, s{S_FL}, s{S_FL+2}")
    A(f"s_mov_b32 s{S_FO}, 0x{OOB:x}")
    A(f"s_mov_b32 s{S_EXIT}, 0")
    A(f"s_mov_b32 s{S_SIDE}, 0")
    A("s_mov_b64 vcc, 0")
    A("s_waitcnt lgkmcnt(0)")
    srd_from(o, SM, 4, ML_OFF, NB16 * 1024)
    srd_from(o, SW, 4, WF_OFF, SW_BYTES)
    A("s_branch LC_common")


def phase_c(o, opt, S_WAVE, S_SPL, S_QT, VL16, slow):
    q = []
    cur = [q]
    A = lambda t, **k: cur[0].append(V(t, **k))
    P = lambda x: cur[0].append(x)
    nst = [0]
    def stamp():
        if opt.get('timing') == 2 and nst[0] < 9:
            A(f"s_memtime s[{74+2*nst[0]}:{75+2*nst[0]}]"); nst[0] += 1
    ld = opt.get('cld', ' sc1')
    tn = [0]
    def stmp():
        tn[0] += 1; return TMPS[tn[0] % 4]
    free = list(range(POOL, 241, 4)); reg = {}; low = [99]
    def issue(e):
        ch, k = e
        if ch == 'd': reg[e] = VDEG
        elif ch in 'm012':
            reg[e] = free.pop(0); low[0] = min(low[0], len(free))
        r = reg.get(e)
        if ch == 'h':
            rb, u = k // 2, k % 2
            A(f"s_add_u32 m0, s{S_HW}, {HLIMG + rb*8192 + u*4096}")
            P(VM(f"buffer_load_dwordx4 v{VHL[u]}, {sr(SH)}, s{S_RO+rb} offen{ld} lds", tag=e))
        elif ch == 'x':
            rb, u = k // 2, k % 2
            s = stmp()
            A(f"s_add_u32 m0, s{S_T if k < 4 else S_T2}, {(k % 4)*1024}")
            A(f"s_add_u32 s{s}, s{S_RO+rb}, {u*4096}")
            P(VM(f"buffer_load_dwordx4 v{VX}, {sr(SX)}, s{s} offen lds", tag=e))
        elif ch == 'm':
            P(VM(f"buffer_load_dwordx4 {vr(r)}, v{VML}, {sr(SM)}, 0 offen offset:{16*k}{ld}", tag=e))
        elif ch == 'd':
            P(VM(f"buffer_load_ushort v{r}, v{VDG}, {sr(SD)}, 0 offen", tag=e))
        elif ch == 'q':
            A(f"s_mov_b32 s{S_PV}, 0")
            A(f"s_atomic_add s{S_PV}, s[{S_FB}:{S_FB+1}], s{S_FL} glc")
        elif ch == 'p':
            A("s_mov_b64 exec, 7")
            A(f"s_mov_b32 s{S_POFF}, 0x{FLO:x}")
            P(VM(f"buffer_load_dword v{VFA}, v{VFL}, {sr(SW)}, s{S_POFF} offen sc1", tag=e))
            A("s_mov_b64 exec, -1")
        elif ch in '012':
            rb = int(ch); c, sp = k // 6, k % 6
            s = stmp()
            A(f"s_add_u32 s{s}, s{S_RO+rb}, 0x{sp*OP_STRIDE:x}")
            P(VM(f"buffer_load_dwordx4 {vr(r)}, v{VOP}, {sr(SP)}, s{s} offen offset:{c*1024}{ld}", tag=e))
        else:
            m = 'ab'.index(ch); t, j, b = k // 4, (k >> 1) & 1, k & 1
            new = b == 0 or reg.get('wn') != tn[0]
            if new: reg['ws'] = stmp(); reg['wn'] = tn[0]
            x, y = wload(m, j, t, b, reg['ws'], VL16)
            if new: A(x)
            P(VM(y, tag=e))
    cnt = {}
    def parse(order):
        L = []; bar = set()
        for ch in order:
            if ch == '|': bar.add(len(L) - 1); continue
            L.append((ch, cnt.get(ch, 0))); cnt[ch] = cnt.get(ch, 0) + 1
        return L, bar
    A("LC_start:")
    stamp()
    A(f"s_mul_i32 s32, s{S_SPL}, 3")
    A(f"s_lshl_b32 s33, s{S_QT}, 4")
    A("s_add_u32 s32, s32, s33")
    A(f"s_lshl_b32 s{S_RO}, s32, 13")
    A(f"s_add_u32 s{S_RO+1}, s{S_RO}, 8192")
    A(f"s_add_u32 s{S_RO+2}, s{S_RO}, 16384")
    for k in range(3): A(f"s_lshl_b32 s{S_FL+k}, s{S_QT}, 7")
    A(f"s_cmp_eq_u32 s{S_SPL}, {NSPLIT-1}")
    A(f"s_cselect_b32 s{S_EXIT}, 1, 0")
    for k in range(3): A(f"s_cselect_b32 s{S_RO+k}, 0x{OOB:x}, s{S_RO+k}")
    A(f"s_cmp_eq_u32 s{S_WAVE}, 0")
    A(f"s_cselect_b32 s{S_FO}, 0x{FLO:x}, s{S_RO}")
    A(f"s_cselect_b32 s{S_FO}, s{S_FO}, 0x{OOB:x}")
    A("LC_common:")
    P(VM("s_nop 0", tag='st'))
    A(f"s_bfe_u32 s{S_ROT}, s2, 0x30003")
    A(f"s_and_b32 s{S_ROT}, s{S_ROT}, {opt.get('crot', 7)}")
    A(f"s_lshl_b32 s{S_WB}, s{S_WAVE}, 4")
    A(f"s_or_b32 s{S_WB}, s{S_WB}, s{S_ROT}")
    A(f"s_lshl_b32 s{S_WB}, s{S_WB}, 11")
    A(f"s_lshr_b32 s{S_HW}, s{S_ROT}, 1")
    A(f"s_xor_b32 s{S_HW}, s{S_HW}, s{S_WAVE}")
    A(f"s_lshl_b32 s{S_HW}, s{S_HW}, 10")
    A(f"s_add_u32 s{S_HW}, s{S_HW}, s{S_HB}")
    A(f"s_cmp_eq_u32 s{S_EXIT}, 1")
    A(f"s_cselect_b32 s{S_WB}, 0x{OOB:x}, s{S_WB}")
    HP = 2
    A("s_cmp_lg_u64 vcc, 0")
    A(f"s_cselect_b32 s{S_VOTE}, 1, 0")
    t = []; srd_from(t, SH, 4, HL_OFF, HL_BYTES)
    for x in t + hl_addr(S_WAVE, VL16, VHL[0], VHL[1], 33): A(x)
    A(f"s_cmp_ge_u32 s{S_SIDE}, {NSIDE}")
    A("s_cbranch_scc0 LC_side")
    A("LC_sideok:")
    Lp0 = parse(opt.get('cpre0', "hhhhhh" + "a" * 8))[0]
    for e in Lp0: issue(e)
    def lanes():
        A(f"v_lshrrev_b32 v0, 4, v{VL16}")
        A("v_and_b32 v2, 15, v0")
        A("v_lshrrev_b32 v3, 4, v0")
        for x in stage_bases(S_WAVE) + x_addr(S_WAVE, VL16, VX, 1, 33): A(x)
        A(f"v_mov_b32 v4, 0x{OOB:x}")
        for k in range(3):
            A(f"v_cmp_eq_u32 vcc, {k}, v3")
            A(f"v_mov_b32 v1, s{S_RO+k}")
            A("v_cndmask_b32 v4, v4, v1, vcc")
        A("v_lshl_add_u32 v4, v2, 9, v4")
        A(f"v_lshrrev_b32 v{VML}, 3, v4")
        A(f"v_lshrrev_b32 v{VDG}, 8, v4")
    A(f"s_lshl_b32 s32, s{S_WAVE}, 13")
    A(f"s_add_u32 s32, s32, 0x{VOTE:x}")
    A(f"v_mov_b32 v{VV}, s32")
    A(f"v_mov_b32 v{VV+1}, s{S_VOTE}")
    P(LD(f"ds_write_b32 v{VV}, v{VV+1}"))
    lanes()
    t = []
    srd_from(t, SP, 4, OP_OFF, (NSPLIT - 1) * OP_STRIDE + QF_BYTES)
    srd_from(t, SO, P_OUT, 0, N * 512)
    for x in t: A(x)
    A(f"s_add_u32 s{S_FB}, s4, 0x{FL_OFF:x}")
    A(f"s_addc_u32 s{S_FB+1}, s5, 0")
    A(f"s_mov_b32 s{S_MASK}, 0xffff0000")
    A(f"v_mov_b32 v{VFL}, s{S_FL}")
    for k in (1, 2): A(f"v_writelane_b32 v{VFL}, s{S_FL+k}, {k}")
    A(f"s_lshl_b32 s33, s{S_WAVE}, 11")
    A(f"v_add_u32 v{VOP}, s33, v{VL16}")
    A(f"s_lshl_b32 s32, s{S_ROT}, 10")
    A(f"v_xor_b32 v{VZ}, s32, v{VOP}")
    A(f"v_add_u32 v{VZ}, 0x{ZIMG:x}, v{VZ}")
    A(f"v_xor_b32 v{VZ2}, 0x400, v{VZ}")
    A("v_lshrrev_b32 v1, 1, v2")
    A("v_xor_b32 v1, v1, v3")
    A(f"v_lshrrev_b32 v{VBH}, 3, v2")
    A(f"v_lshlrev_b32 v{VBH}, 12, v{VBH}")
    A(f"v_lshl_add_u32 v{VBH}, v1, 4, v{VBH}")
    A("v_and_b32 v1, 7, v2")
    A(f"v_lshl_add_u32 v{VBH}, v1, 7, v{VBH}")
    A(f"s_and_b32 s32, s{S_ROT}, 1")
    A("s_lshl_b32 s32, s32, 6")
    A(f"v_xor_b32 v{VBH}, s32, v{VBH}")
    A(f"v_add_u32 v{VBH}, s{S_HB}, v{VBH}")
    A(f"v_xor_b32 v{VBH+1}, 64, v{VBH}")
    A(f"s_add_u32 s33, s33, {WREC}")
    A(f"v_lshl_add_u32 v{VWW}, v0, 5, s33")
    A(f"v_lshl_add_u32 v{VWR}, v2, 5, s33")
    A("v_xor_b32 v1, v1, v3")
    A("v_lshlrev_b32 v1, 4, v1")
    A("v_lshl_add_u32 v1, v2, 7, v1")
    A(f"v_add_u32 v{VTW}, s{S_T}, v1")
    A(f"v_xor_b32 v{VTW+1}, 64, v{VTW}")
    A(f"v_add_u32 v{VTW2}, s{S_T2}, v1")
    A(f"v_xor_b32 v{VTW2+1}, 64, v{VTW2}")
    A(f"v_add_u32 v{VTR}, s{S_T}, v{VL16}")
    A(f"v_add_u32 v{VTR2}, s{S_T2}, v{VL16}")
    A(f"v_mov_b32 v{VFA}, 1")
    A(f"v_and_b32 v{VV}, 3, v0")
    A(f"v_lshlrev_b32 v{VV}, 13, v{VV}")
    A(f"v_add_u32 v{VV}, 0x{VOTE:x}, v{VV}")
    if HP == 1:
        A(f"s_cmp_ge_u32 s{S_SIDE}, {NSIDE}")
        A("s_cbranch_scc0 LC_side")
        A("LC_sideok:")
    stamp()
    A("s_waitcnt lgkmcnt(0)", needs=['st'])
    stamp()
    A("s_barrier")
    if HP == 1: P(('BAR',))
    P(LD(f"ds_read_b32 v{VV+1}, v{VV}", tag='vote'))
    A(f"v_cmp_ne_u32 vcc, 0, v{VV+1}", needs=['vote'])
    A("s_cbranch_vccnz LC_slow")
    A("s_mov_b64 exec, 1")
    P(VM(f"buffer_atomic_add v{VFA}, v{VFL}, {sr(SW)}, s{S_FO} offen"))
    A("s_mov_b64 exec, -1")
    A(f"s_cmp_eq_u32 s{S_EXIT}, 1")
    A("s_cbranch_scc1 L2_fin")
    if not HP:
        A(f"s_cmp_ge_u32 s{S_SIDE}, {NSIDE}")
        A("s_cbranch_scc0 LC_side")
        A("LC_sideok:")
    cnt['x'] = 6; cnt['d'] = 1; reg[('d', 0)] = VDEG
    arrived = {(ch, k) for ch in cnt for k in range(cnt[ch])}
    def rel(e): free.append(reg[e])
    tv = [0, 0]
    def tmp(k=0):
        tv[k] += 1; return (T, T2)[k] + (tv[k] % 4) * 2
    def wt_read(rb):
        P(LD(f"ds_read_b128 {vr(WT)}, v{VWR} offset:{rb*512}"))
        P(LD(f"ds_read_b128 {vr(WT+4)}, v{VWR} offset:{rb*512+16}", tag=('wt', rb)))
    def degs():
        A(f"v_lshlrev_b32 v1, 16, v{reg[('d', 0)]}")
        P(LD(f"ds_write_b32 v{VWW}, v1 offset:12"))
        for rb in range(3): P(LD(f"ds_read_b32 v{DG+rb}, v{VWR} offset:{rb*512+12}", tag='dg'))
        dgok.append(1)
    def weights():
        m = lambda s: reg[('m', s // 2)] + 2 * (s % 2)
        l = lambda s: m(s) + 1
        A(f"v_max3_f32 v1, v{m(0)}, v{m(1)}, v{m(2)}")
        A(f"v_max3_f32 v{T+1}, v{m(3)}, v{m(4)}, v{m(5)}")
        A(f"v_max_f32 v1, v1, v{T+1}")
        for s in range(NSPLIT): A(f"v_sub_f32 v{m(s)}, v{m(s)}, v1")
        for s in range(NSPLIT): A(f"v_exp_f32 v{m(s)}, v{m(s)}")
        A("s_nop 0")
        A(f"v_mul_f32 v1, v{m(0)}, v{l(0)}")
        for s in range(1, NSPLIT): A(f"v_fmac_f32 v1, v{m(s)}, v{l(s)}")
        A("v_rcp_f32 v1, v1", needs=['dg'])
        for s in range(NSPLIT): A(f"v_mul_f32 v{ZA + s + s // 3}, v{m(s)}, v1")
        P(LD(f"ds_write_b128 v{VWW}, {vr(ZA)}"))
        P(LD(f"ds_write_b128 v{VWW}, {vr(ZA+4)} offset:16"))
        wt_read(rbseq[0])
        for k in range(3): rel(('m', k))
    zw = set(); zok = set(); hok = [HP == 1]; dgok = []
    def cstep(rb, k0):
        c, s = k0 // 6, k0 % 6
        r = reg[(str(rb), k0)]
        wi = s + s // 3
        for k in range(4):
            t = tmp(); a = ZA + 2 * k
            A(f"v_lshlrev_b32 v{t}, 16, v{r+k}", needs=[('wt', rb)])
            A(f"v_and_b32 v{t+1}, s{S_MASK}, v{r+k}")
            for u in range(2): A(f"{'v_mul_f32' if s == 0 else 'v_fmac_f32'} v{a+u}, v{t+u}, v{WT+wi}")
        rel((str(rb), k0))
        if s == 5:
            if c == 1:
                n = rbseq.index(rb)
                if n < 2: wt_read(rbseq[n + 1])
            for k in range(4): A(f"v_cvt_pk_bf16_f32 v{T+k}, v{ZA+2*k}, v{ZA+2*k+1}")
            P(LD(f"ds_write_b128 v{VZ2 if c else VZ}, {vr(T)} offset:{rb*8192}", tag='z'))
            if c == 1: zw.add(rb)
    acc = lambda rb, j, b: ACC + ((rb * 2 + j) * 2 + b) * 4
    nxt = {(m, rb): 0 for m in range(2) for rb in range(3)}
    groups = []; barpos = [int(HP == 1)]
    XL = opt.get('xlate', 0)
    def xadd(rb, j, mul):
        P(LD(f"ds_read_b128 {vr(XR)}, v{(VTW2 if rb == 2 else VTW)+j} offset:{rb % 2 * 2048 * (rb < 2)}", tag='xr'))
        for k in range(4):
            t = tmp(1); a = acc(rb, j, 0) + 2 * k
            A(f"v_lshlrev_b32 v{t}, 16, v{XR+k}", needs=['xr', 'dg'])
            A(f"v_and_b32 v{t+1}, s{S_MASK}, v{XR+k}")
            for u in range(2): A(f"v_fma_f32 v{a+u}, v{a+u}, v{DG+rb}, v{t+u}" if mul else f"v_add_f32 v{a+u}, v{a+u}, v{t+u}")
    def fma_x(rb):
        for j in range(2):
            if not XL: xadd(rb, j, 1)
            else:
                for k in range(8): A(f"v_mul_f32 v{acc(rb, j, 0)+k}, v{acc(rb, j, 0)+k}, v{DG+rb}", needs=['dg'])
    stores = []
    def ep(rb):
        for j in range(2):
            a = acc(rb, j, 0)
            if XL: xadd(rb, j, 0)
            for k in range(4): A(f"v_cvt_pk_bf16_f32 v{a+k}, v{a+2*k}, v{a+2*k+1}")
            P(LD(f"ds_write_b128 v{(VTW2 if rb == 2 else VTW)+j}, {vr(a)} offset:{rb % 2 * 2048}"))
        for j in range(2): P(LD(f"ds_read_b128 {vr(acc(rb, j, 1))}, v{VTR2 if rb == 2 else VTR} offset:{rb % 2 * 2048 + j*1024}", tag=('y', rb, j)))
        stores.append(rb)
    def do_stores():
        for rb in stores:
            for j in range(2):
                s = stmp()
                A(f"s_add_u32 s{s}, s{S_RO+rb}, {j*4096}")
                P(VM(f"buffer_store_dwordx4 {vr(acc(rb, j, 1))}, v{VX}, {sr(SO)}, s{s} offen{opt.get('cst', '')}", needs=[('y', rb, j)]))
        stores.clear()
    pend = []
    def can(p): return p[0] == 'ep' or (dgok and (XL or ('x', 2 * p[1] + 1) in arrived))
    def run(p): fma_x(p[1]) if p[0] == 'fma' else ep(p[1])
    def flush(skip=None):
        for p in [p for p in pend if p[1] != skip and can(p)]:
            pend.remove(p); run(p)
    def mf_step(cap):
        n = 0
        while n < cap:
            cand = []
            for (m, rb), t in nxt.items():
                if t == 8: continue
                if m == 0 and not hok[0]: continue
                if m == 1 and (rb not in zok or nxt[(0, rb)] < 8): continue
                if ('ab'[m], 4 * t + 3) not in arrived: continue
                cand.append((m, t, rb) if m == 0 else (m, rbseq.index(rb), t, rb))
            if not cand: break
            c = min(cand); m, t, rb = c[0], c[-2], c[-1]
            if ('fma', rb) in pend: pend.remove(('fma', rb)); fma_x(rb)
            P(('G', len(groups))); groups.append((m, t, rb, 0, barpos[0] if m == 1 or not groups else groups[-1][4]))
            nxt[(m, rb)] += 1; n += 1
            flush(rb)
            if t == 7: pend.append(('fma' if m == 0 else 'ep', rb))
    def barrier():
        if zw - zok: P(W('z'))
        A("s_barrier"); P(('BAR',)); barpos[0] += 1
        stamp()
        zok.update(zw)
        if ('h', 5) in arrived: hok[0] = True
    def stream(L, bar, D, cap, first, left=0):
        if D < 0: D = -D
        else:
            for k in range(min(D, len(L))): issue(L[k])
        mf_step(first)
        for k, e in enumerate(L):
            if k >= len(L) - left:
                late.append(e); continue
            if e[0] != 'q': P(W(e))
            arrived.add(e)
            if k + D < len(L): issue(L[k + D])
            elif stores: do_stores()
            vl = []; cur[0] = vl
            if e == ('m', 2): weights()
            if e == ('d', 0): degs()
            if e[0] in '012': cstep(int(e[0]), e[1])
            cur[0] = q
            if k in bar:
                q.extend(vl); barrier(); vl = []
            n0 = len(q)
            flush()
            mf_step(cap if k + D < len(L) or e[0] in '012' else 99)
            q.insert(n0, ('V', vl))
    rbseq = [0, 1, 2]; late = []; afterD = []; pollx = []
    degs()
    L1, b1 = parse(opt.get('cpre', "a" * 16 + "q" + "a" * 8))
    stream(L1, b1, opt.get('cd1', 12), opt.get('ccap1', 3), 99, opt.get('cleft', 12))
    mf_step(99); flush()
    stamp()
    if 'q' in cnt:
        del cnt['q']
        if ('q', 0) in late: late.remove(('q', 0))
        A("s_waitcnt lgkmcnt(0)")
        A(f"s_cmp_lt_u32 s{S_PV}, {NSPLIT}")
        A("s_cbranch_scc1 LC_poll")
        A("s_cmp_ge_u32 s2, 240")
        A("s_cbranch_scc1 LC_poll")
        A("LC_got:")
        stamp()
        afterD = [lambda: (P(W(('h', 5))), barrier())]
        pollx = ["LC_poll:", f"s_mov_b32 s{S_SPIN}, 0", "LC_poll2:"]
        for k in range(3): pollx += [f"s_mov_b32 s{S_PV+k}, 0", f"s_atomic_add s{S_PV+k}, s[{S_FB}:{S_FB+1}], s{S_FL+k} glc"] + (["s_cmp_lt_u32 s2, 240", "s_cbranch_scc1 LC_poll3"] if k == 0 else [])
        pollx += ["s_waitcnt lgkmcnt(0)", f"s_min_u32 s{S_PV}, s{S_PV}, s{S_PV+1}", f"s_min_u32 s{S_PV}, s{S_PV}, s{S_PV+2}", "LC_poll3:", "s_waitcnt lgkmcnt(0)",
                  f"s_cmp_ge_u32 s{S_PV}, {NSPLIT}", "s_cbranch_scc1 LC_got", f"s_sleep {opt.get('psleep', 2)}", f"s_add_u32 s{S_SPIN}, s{S_SPIN}, 1",
                  f"s_cmp_gt_u32 s{S_SPIN}, 0x40000", "s_cbranch_scc0 LC_poll2", "s_branch LC_got"]
    elif 'p' in cnt:
        del cnt['p']
        if ('p', 0) in late: late.remove(('p', 0))
        A("s_mov_b64 exec, 7", needs=[('p', 0)])
        A(f"v_cmp_gt_u32 vcc, {NSPLIT}, v{VFA}")
        A("s_cbranch_vccnz LC_poll")
        A("LC_got:")
        A("s_mov_b64 exec, -1")
        stamp()
        if ('h', 5) in arrived and not hok[0]:
            afterD = [lambda: (P(W(('h', 5))), barrier())]
        pollx = ["LC_poll:", f"s_mov_b32 s{S_SPIN}, 0", "LC_poll2:", f"s_sleep {opt.get('psleep', 2)}", f"buffer_load_dword v{VFA}, v{VFL}, {sr(SW)}, s{S_POFF} offen sc1",
                 "s_waitcnt vmcnt(0)", f"v_cmp_gt_u32 vcc, {NSPLIT}, v{VFA}", "s_cbranch_vccz LC_got", f"s_add_u32 s{S_SPIN}, s{S_SPIN}, 1",
                 f"s_cmp_gt_u32 s{S_SPIN}, 0x40000", "s_cbranch_scc0 LC_poll2", "s_branch LC_got"]
    else:
        A(f"s_cmp_lg_u32 s{S_WAVE}, 0")
        A("s_cbranch_scc1 LC_go")
        A(f"s_mov_b32 s{S_SPIN}, 0")
        A(f"s_mov_b32 s32, 0x{FLO:x}")
        A("s_mov_b64 exec, 7")
        A("LC_poll:")
        A(f"buffer_load_dword v{VFA}, v{VFL}, {sr(SW)}, s32 offen sc1")
        A("s_waitcnt vmcnt(0)")
        A(f"v_cmp_gt_u32 vcc, {NSPLIT}, v{VFA}")
        A("s_cbranch_vccz LC_got")
        A(f"s_add_u32 s{S_SPIN}, s{S_SPIN}, 1")
        A(f"s_cmp_gt_u32 s{S_SPIN}, 0x40000")
        A("s_cbranch_scc1 LC_got")
        A(f"s_sleep {opt.get('psleep', 2)}")
        A("s_branch LC_poll")
        A("LC_got:")
        A("s_mov_b64 exec, -1")
        A("LC_go:")
        barrier()
    L2, b2 = parse(opt.get('cord', "mmm" + "0b" * 12 + "|" + "1bb" * 10 + "11|" + "2" * 12 + "|"))
    assert cnt == dict(h=6, m=3, d=1, x=6, a=32, b=32, **{'0': 12, '1': 12, '2': 12}), cnt
    D2 = opt.get('cd', 12)
    for k in range(D2): issue(L2[k])
    for f in afterD: f()
    for e in late:
        P(W(e)); arrived.add(e)
        if e == ('d', 0): degs()
        flush()
    stream(L2, b2, -D2, opt.get('ccap2', 1), 99)
    mf_step(99); flush()
    do_stores()
    assert all(t == 8 for t in nxt.values()) and not pend, (nxt, pend)
    NR = 6
    F = lambda n: BF + (n % NR) * 4
    def rd(n):
        m, t, rb = groups[n][:3]
        if m == 0: s = f"ds_read_b128 {vr(F(n))}, v{VBH + (t & 1)} offset:{HLIMG + rb*8192 + (t >> 1)*1024}"
        else: s = f"ds_read_b128 {vr(F(n))}, v{VL16} offset:{ZIMG + rb*8192 + t*1024}"
        return LD(s, tag=('f', n))
    out = []; nr = 0; done = -1; vq = []; nb = 0
    IL = opt.get('cil', 3)
    def avail(n): return groups[n][4] <= nb
    for it in q:
        if isinstance(it, tuple) and it[0] == 'V':
            out += vq; vq = list(it[1]); continue
        if isinstance(it, tuple) and it[0] == 'G':
            n = it[1]; m, t, rb = groups[n][:3]
            assert nr > n
            for jb in range(4):
                j, b = jb >> 1, jb & 1
                c = "0" if m == 0 and t == 0 else vr(acc(rb, j, b))
                out.append(Ins(f"{MF32} {vr(acc(rb,j,b))}, {ar(WA(m,j,t,b))}, {vr(F(n))}, {c}", 0, needs=[('f', n), ('ab'[m], 4 * t + jb)]))
                if jb == 0:
                    done = n - 1
                    if nr < len(groups) and nr <= done + NR and avail(nr): out.append(rd(nr)); nr += 1
                out += vq[:IL]; vq = vq[IL:]
            done = n
        elif isinstance(it, tuple):
            nb += 1
            while nr < len(groups) and nr <= done + NR - 1 and avail(nr): out.append(rd(nr)); nr += 1
        else:
            if it.t is None or not it.t.startswith(('v_', 'ds_')): out += vq; vq = []
            out.append(it)
    out += vq
    if opt.get('verbose'): print("phase C min free", low[0], "len", len(out))
    o += hazard.fix(Emitter().emit(out))
    o.append("s_branch L2_fin")
    o += pollx
    o.append("LC_side:")
    if HP: o += [f"s_cmp_eq_u32 s{S_EXIT}, 1", "s_cbranch_scc1 LC_sideok", f"s_cmp_lt_u32 s2, 240", "s_cbranch_scc1 LC_side1", "s_barrier", "LC_side1:"]
    o += [f"s_mov_b32 s{S_SPIN}, 0", f"s_mov_b32 s33, 0x{FLO + 40*128:x}", "LC_side2:", f"buffer_load_dword v1, off, {sr(SW)}, s33 sc1", "s_waitcnt vmcnt(0)",
          f"v_readfirstlane_b32 s{S_SIDE}, v1", f"s_add_u32 s{S_SPIN}, s{S_SPIN}, 1", f"s_cmp_gt_u32 s{S_SPIN}, 0x40000", "s_cbranch_scc1 LC_side3",
          f"s_cmp_ge_u32 s{S_SIDE}, {NSIDE}", "s_cbranch_scc1 LC_side3", "s_sleep 8", "s_branch LC_side2", "LC_side3:"]
    x = []; cur[0] = x
    lanes()
    t = []; srd_from(t, SX, P_X, 0, N * 512); srd_from(t, SD, P_DEG, 0, N * 2)
    for y in t: A(y)
    for k in range(6): issue(('x', k))
    issue(('d', 0))
    o += hazard.fix([i.t for i in x]) + ["s_waitcnt vmcnt(0)"]
    o.append("s_branch LC_sideok")
    o.append("LC_slow:")
    o.append("s_waitcnt vmcnt(0)")
    o.append("s_barrier")
    o.append(f"s_cmp_eq_u32 s{S_VOTE}, 0")
    o.append("s_cbranch_scc1 LC_slowend")
    slow(o)
    o.append("LC_slowend:")
    o.append("s_barrier")
    srd_from(o, SW, 4, WF_OFF, SW_BYTES)
    o.append(f"s_mov_b32 s{S_SIDE}, 0")
    o.append("s_mov_b64 vcc, 0")
    o.append("s_branch LC_start")
```

```python
from layout import *
from sched import *
import hazard
from gen_fin2 import wload, tail_entry, side_poll, hl_addr, x_addr, flag_add, WA, FLO, SW_BYTES, NSIDE, OOB, P_X, P_OUT
from gen_fin2 import SX, SW, SP, SM, SH, SO, S_RO, S_T, S_MASK, S_WB, S_EXIT, S_FO, S_SPIN, S_SIDE, S_VOTE, S_FL, S_HB, S_ROT, S_HW, S_FB, S_PV

MF32 = "v_mfma_f32_16x16x32_bf16"
ZIMG, X2, WREC, OWN2, SPILL, VOTEO = 0x8000, 0xe000, 0x18000, 0x1c000, 0x20000, 0x6000
TMPS = [32, 33, 35, 39]; SPO = [44, 45, 46, 47, S_FO]; S_T2, S_OS, S_FLIP = 73, 51, 72
VZR = 15
VHL, VML, VX, VOP, VBH, VWW, VWR = [5, 6], 7, 9, 10, 11, 13, 14
KEEP = 16
VTW, VTR, VTW2, VTR2, VZ, VZ2, VFL, VFA, VV, VOW = 32, 34, 35, 37, 38, 39, 40, 41, 42, 44
ACC, XR, WT, ZA, T, T2, BF, POOL = 48, 96, 100, 108, 116, 124, 132, 156


def rows(S_SPL, S_QT):
    o = [f"s_mul_i32 s35, s{S_SPL}, 3"]
    for k in range(3):
        o += [f"s_and_b32 s36, s35, 3", f"s_lshl_b32 s36, s36, 2", f"s_lshr_b32 s{S_RO+k}, s35, 2", f"s_add_u32 s36, s36, s{S_RO+k}",
              f"s_lshl_b32 s{S_RO+k}, s{S_QT}, 4", f"s_add_u32 s{S_RO+k}, s{S_RO+k}, s36", f"s_lshl_b32 s{S_RO+k}, s{S_RO+k}, 13", "s_add_u32 s35, s35, 1"]
    return o[:-1]


def x_tail(S_WAVE, VL16, va, vb):
    o = []
    srd_from(o, SX, P_X, 0, N * 512)
    o = [o[0] + "\n" + o[1]] + o[2:]
    o += [f"s_lshl_b32 s{S_T}, s{S_WAVE}, 13", f"s_add_u32 s{S_T}, s{S_T}, 0x{SPILL + 4096:x}"] + x_addr(S_WAVE, VL16, va, vb, 36)
    for k in range(4):
        o += [f"s_add_u32 m0, s{S_T}, {k * 1024}", f"s_add_u32 s35, s{S_RO + k // 2}, {(k % 2) * 4096}", f"buffer_load_dwordx4 v{va}, {sr(SX)}, s35 offen lds"]
    return o


def hw_setup(S_WAVE):
    return [f"s_bfe_u32 s{S_ROT}, s2, 0x30003", f"s_lshr_b32 s{S_HW}, s{S_ROT}, 1", f"s_xor_b32 s{S_HW}, s{S_HW}, s{S_WAVE}",
            f"s_lshl_b32 s{S_HW}, s{S_HW}, 10", f"s_add_u32 s{S_HW}, s{S_HW}, s{S_HB}"]


def hl_tail(S_WAVE, VL16, va, vb):
    o = []
    srd_from(o, SX, 4, HL_OFF, HL_BYTES)
    early = [o[0] + "\n" + o[1]] + o[2:] + hw_setup(S_WAVE)
    late = hl_addr(S_WAVE, VL16, va, vb, 36)
    for k in range(6):
        if k % 2 == 0: late.append(f"s_cmp_ge_u32 s{S_SIDE}, {NSIDE}\ns_cselect_b32 s35, s{S_RO + k // 2}, 0x{OOB:x}")
        late += [f"s_add_u32 m0, s{S_HW}, {k * 4096}", 1, f"buffer_load_dwordx4 v{(va, vb)[k % 2]}, {sr(SX)}, s35 offen sc1 lds"]
    return early, late


def helper_entry(o, S_WAVE, VL16, s_w):
    A = o.append
    A("LC_help:")
    A("s_waitcnt vmcnt(0)")
    A(f"s_mov_b32 s{S_HB}, 0")
    for p_, ka in ((P_X, KA_X), (P_OUT, KA_OUT)): A(f"s_load_dwordx2 s[{p_}:{p_+1}], s[0:1], {ka}")
    A(f"s_mov_b32 s{S_WAVE}, s{s_w}")
    A(f"v_mbcnt_lo_u32_b32 v{VL16}, -1, 0")
    A(f"v_mbcnt_hi_u32_b32 v{VL16}, -1, v{VL16}")
    A(f"v_lshlrev_b32 v{VL16}, 4, v{VL16}")
    A("s_and_b32 s32, s2, 7")
    A("s_mul_i32 s32, s32, 5")
    A("s_bfe_u32 s33, s2, 0x10003")
    A("s_mul_i32 s35, s33, 3")
    A("s_add_u32 s32, s32, s35")
    for k in range(3):
        A(f"s_add_u32 s35, s32, {k}")
        A(f"s_lshl_b32 s{S_FL+k}, s35, 7")
        A(f"s_lshl_b32 s{S_RO+k}, s35, 17")
        A(f"s_add_u32 s{S_RO+k}, s{S_RO+k}, {15 * 8192}")
    A(f"s_cmp_eq_u32 s{S_FL+1}, {39 * 128}")
    A(f"s_cselect_b32 s{S_RO+1}, {624 * 8192}, s{S_RO+1}")
    A("s_cmp_eq_u32 s33, 1")
    A(f"s_cselect_b32 s{S_RO+2}, 0x{OOB:x}, s{S_RO+2}")
    A(f"s_cselect_b32 s{S_FL+2}, s{S_FL}, s{S_FL+2}")
    A(f"s_mov_b32 s{S_FO}, 0x{OOB:x}")
    A(f"s_mov_b32 s{S_EXIT}, 0")
    A(f"s_mov_b32 s{S_SIDE}, 0")
    A(f"s_mov_b32 s{S_OS}, 0")
    A(f"s_mov_b32 s{S_VOTE}, 2")
    A("s_waitcnt lgkmcnt(0)")
    srd_from(o, SM, 4, ML_OFF, NB16 * 1024)
    srd_from(o, SW, 4, WF_OFF, SW_BYTES)
    A("s_branch LC_common")


def phase_c(o, opt, S_WAVE, S_SPL, S_QT, VL16, slow):
    q = []
    cur = [q]
    A = lambda t, **k: cur[0].append(V(t, **k))
    P = lambda x: cur[0].append(x)
    nst = [0]
    def stamp():
        if opt.get('timing') == 2 and nst[0] < 9:
            A(f"s_memtime s[{74+2*nst[0]}:{75+2*nst[0]}]"); nst[0] += 1
    ld = opt.get('cld', ' sc1')
    E2 = opt.get('e2', 0)
    NS1 = NSPLIT - 1 if E2 else NSPLIT
    tn = [0]
    def stmp():
        tn[0] += 1; return TMPS[tn[0] % 4]
    ZB = POOL
    free = list(range(POOL + 8 * bool(opt.get('e2')), 245, 4)); reg = {}; low = [99]
    def issue(e):
        ch, k = e
        if ch in 'mn012':
            reg[e] = free.pop(0); low[0] = min(low[0], len(free))
        r = reg.get(e)
        if ch == 'h':
            A(f"s_add_u32 m0, s{S_HW}, {k*4096}")
            P(VM(f"buffer_load_dwordx4 v{VHL[k % 2]}, {sr(SH)}, s{S_RO + k // 2} offen{ld} lds", tag=e))
        elif ch == 'x':
            s = stmp()
            A(f"s_add_u32 m0, s{S_T if k < 4 else S_T2}, {(k % 4)*1024}")
            A(f"s_add_u32 s{s}, s{S_RO + k // 2}, {(k % 2)*4096}")
            P(VM(f"buffer_load_dwordx4 v{VX}, {sr(SX)}, s{s} offen lds", tag=e))
        elif ch == 'm':
            P(VM(f"buffer_load_dwordx4 {vr(r)}, v{VML}, {sr(SM)}, 0 offen offset:{16*k}{ld}", tag=e))
        elif ch == 'n':
            P(VM(f"buffer_load_dwordx2 {vr(r, 2)}, v{VML}, {sr(SM)}, 0 offen offset:40{ld}", tag=e))
        elif ch == 'Q':
            A(f"s_mov_b32 s{S_PV+1}, 0")
            A(f"s_atomic_add s{S_PV+1}, s[{S_FB}:{S_FB+1}], s{S_FL} glc")
        elif ch == 'F':
            A("s_waitcnt lgkmcnt(0)")
            A(f"s_cmp_lt_u32 s{S_PV+1}, 0x100")
            A("s_cbranch_scc1 LC_pollf")
            A("LC_gotf:")
        elif ch == 'q':
            A(f"s_mov_b32 s{S_PV}, 0")
            A(f"s_atomic_add s{S_PV}, s[{S_FB}:{S_FB+1}], s{S_FL} glc")
        elif ch in '012':
            rb = int(ch); c, i = k // 5, k % 5
            if E2: c, i = (k // 4, k % 4) if k < 8 else (k - 8, 4)
            s = stmp()
            A(f"s_add_u32 s{s}, s{S_RO+rb}, s{SPO[i]}")
            P(VM(f"buffer_load_dwordx4 {vr(r)}, v{VOP}, {sr(SP)}, s{s} offen offset:{c*1024}{opt.get('old', ld)}", tag=e))
        else:
            m = 'ab'.index(ch); t, j, b = k // 4, (k >> 1) & 1, k & 1
            new = b == 0 or reg.get('wn') != tn[0]
            if new: reg['ws'] = stmp(); reg['wn'] = tn[0]
            x, y = wload(m, j, t, b, reg['ws'], VL16)
            if new: A(x)
            P(VM(y, tag=e))
    cnt = {'x': 4}
    def parse(order):
        L = []; bar = set()
        for ch in order:
            if ch == '|': bar.add(len(L) - 1); continue
            L.append((ch, cnt.get(ch, 0))); cnt[ch] = cnt.get(ch, 0) + 1
        return L, bar
    A("LC_start:")
    stamp()
    A("s_cmp_lg_u64 vcc, 0")
    A(f"s_cselect_b32 s{S_VOTE}, 1, 0")
    A("LC_again:")
    for k in range(3): A(f"s_lshl_b32 s{S_FL+k}, s{S_QT}, 7")
    A(f"s_mov_b32 s{S_OS}, s{S_SPL}")
    A(f"s_cmp_eq_u32 s{S_SPL}, {NSPLIT-1}")
    A(f"s_cselect_b32 s{S_EXIT}, 1, 0")
    for k in range(3): A(f"s_cselect_b32 s{S_RO+k}, 0x{OOB:x}, s{S_RO+k}")
    A(f"s_cmp_eq_u32 s{S_WAVE}, 0")
    A(f"s_cselect_b32 s{S_FO}, 0x{FLO:x}, s{S_RO}")
    A(f"s_cselect_b32 s{S_FO}, s{S_FO}, 0x{OOB:x}")
    A("LC_common:")
    P(VM("s_nop 0", tag='st'))
    A(f"s_bfe_u32 s{S_ROT}, s2, 0x30003")
    A(f"s_lshl_b32 s{S_WB}, s{S_WAVE}, 4")
    A(f"s_or_b32 s{S_WB}, s{S_WB}, s{S_ROT}")
    A(f"s_lshl_b32 s{S_WB}, s{S_WB}, 11")
    A(f"s_lshr_b32 s{S_HW}, s{S_ROT}, 1")
    A(f"s_xor_b32 s{S_HW}, s{S_HW}, s{S_WAVE}")
    A(f"s_lshl_b32 s{S_HW}, s{S_HW}, 10")
    A(f"s_add_u32 s{S_HW}, s{S_HW}, s{S_HB}")
    A(f"s_cmp_eq_u32 s{S_EXIT}, 1")
    A(f"s_cselect_b32 s{S_WB}, 0x{OOB:x}, s{S_WB}")
    HT = opt.get('ht', 0)
    def hsetup():
        t = []; srd_from(t, SH, 4, HL_OFF, HL_BYTES)
        for x in t + hl_addr(S_WAVE, VL16, VHL[0], VHL[1], 33): A(x)
    if not HT: hsetup()
    A(f"s_cmp_ge_u32 s{S_SIDE}, {NSIDE}")
    A("s_cbranch_scc0 LC_side")
    A("LC_sideok:")
    if HT: cnt['h'] = 6
    for e in parse(opt.get('cpre0', "hhhhhh" * (not HT) + "a" * 8))[0]: issue(e)
    def xsetup():
        t = []; srd_from(t, SX, P_X, 0, N * 512)
        for x in t + [f"s_lshl_b32 s{S_T}, s{S_WAVE}, 13", f"s_add_u32 s{S_T}, s{S_T}, 0x{SPILL + 4096:x}"] + x_addr(S_WAVE, VL16, VX, 1, 33): A(x)
    A(f"s_lshl_b32 s32, s{S_WAVE}, 2")
    A(f"s_add_u32 s32, s32, s{S_HB}")
    A(f"s_and_b32 s33, s{S_VOTE}, 1")
    A(f"v_mov_b32 v{VV}, s32")
    A(f"v_mov_b32 v{VV+1}, s33")
    P(LD(f"ds_write_b32 v{VV}, v{VV+1} offset:{VOTEO}"))
    A(f"v_lshrrev_b32 v0, 4, v{VL16}")
    A("v_and_b32 v2, 15, v0")
    A("v_lshrrev_b32 v3, 4, v0")
    xsetup()
    A(f"s_and_b32 s{S_FLIP}, s{S_HB}, 0x8000")
    A(f"s_lshl_b32 s{S_T2}, s{S_WAVE}, 11")
    A(f"s_add_u32 s{S_T2}, s{S_T2}, 0x{X2:x}")
    A(f"s_xor_b32 s{S_T2}, s{S_T2}, s{S_FLIP}")
    A(f"v_mov_b32 v4, 0x{OOB:x}")
    for k in range(3):
        A(f"v_cmp_eq_u32 vcc, {k}, v3")
        A(f"v_mov_b32 v1, s{S_RO+k}")
        A("v_cndmask_b32 v4, v4, v1, vcc")
    A("v_lshl_add_u32 v4, v2, 9, v4")
    A(f"v_lshrrev_b32 v{VML}, 3, v4")
    t = []
    srd_from(t, SP, 4, OP_OFF, (NSPLIT - 1) * OP_STRIDE + QF_BYTES)
    srd_from(t, SO, P_OUT, 0, N * 512)
    for x in t: A(x)
    A(f"s_add_u32 s{S_FB}, s4, 0x{FL_OFF:x}")
    A(f"s_addc_u32 s{S_FB+1}, s5, 0")
    A(f"s_mov_b32 s{S_MASK}, 0xffff0000")
    A(f"v_mov_b32 v{VFL}, s{S_FL}")
    A(f"s_lshl_b32 s33, s{S_WAVE}, 11")
    A(f"v_add_u32 v{VOP}, s33, v{VL16}")
    A(f"s_lshl_b32 s32, s{S_ROT}, 10")
    A(f"v_xor_b32 v{VZ}, s32, v{VOP}")
    A(f"s_xor_b32 s32, s{S_FLIP}, 0x{ZIMG:x}")
    A(f"v_add_u32 v{VZ}, s32, v{VZ}")
    A(f"v_add_u32 v{VZR}, s32, v{VL16}")
    A(f"v_xor_b32 v{VZ2}, 0x400, v{VZ}")
    A("v_lshrrev_b32 v1, 1, v2")
    A("v_xor_b32 v1, v1, v3")
    A(f"v_lshrrev_b32 v{VBH}, 3, v2")
    A(f"v_lshlrev_b32 v{VBH}, 12, v{VBH}")
    A(f"v_lshl_add_u32 v{VBH}, v1, 4, v{VBH}")
    A("v_and_b32 v1, 7, v2")
    A(f"v_lshl_add_u32 v{VBH}, v1, 7, v{VBH}")
    A(f"s_and_b32 s32, s{S_ROT}, 1")
    A("s_lshl_b32 s32, s32, 6")
    A(f"v_xor_b32 v{VBH}, s32, v{VBH}")
    A(f"v_add_u32 v{VBH}, s{S_HB}, v{VBH}")
    A(f"v_xor_b32 v{VBH+1}, 64, v{VBH}")
    A(f"s_lshl_b32 s33, s{S_WAVE}, 12")
    A(f"s_add_u32 s33, s33, 0x{WREC:x}")
    A(f"s_xor_b32 s33, s33, s{S_FLIP}")
    RS = opt.get('rs', 64); assert RS == 64 or not E2
    A(f"v_mul_u32_u24 v{VWW}, {RS}, v0") if RS > 64 else A(f"v_lshlrev_b32 v{VWW}, 6, v0")
    A(f"v_add_u32 v{VWW}, s33, v{VWW}")
    if RS > 64:
        A("v_cmp_eq_u32 vcc, 3, v3")
        A("v_mov_b32 v4, 0x100000")
        A(f"v_cndmask_b32 v{VWW}, v{VWW}, v4, vcc")
    A(f"s_lshl_b32 s32, s{S_OS}, 2")
    A("s_add_u32 s33, s33, s32")
    A(f"v_mul_u32_u24 v{VWR}, {RS}, v2") if RS > 64 else A(f"v_lshlrev_b32 v{VWR}, 6, v2")
    A(f"v_add_u32 v{VWR}, s33, v{VWR}")
    if E2: A(f"v_subrev_u32 v47, s32, v{VWR}")
    A("v_xor_b32 v1, v1, v3")
    A("v_lshlrev_b32 v1, 4, v1")
    A("v_lshl_add_u32 v1, v2, 7, v1")
    A(f"v_add_u32 v{VTW}, s{S_T}, v1")
    A(f"v_xor_b32 v{VTW+1}, 64, v{VTW}")
    A(f"v_add_u32 v{VTW2}, s{S_T2}, v1")
    A(f"v_xor_b32 v{VTW2+1}, 64, v{VTW2}")
    A(f"v_add_u32 v{VTR}, s{S_T}, v{VL16}")
    A(f"v_add_u32 v{VTR2}, s{S_T2}, v{VL16}")
    A(f"s_lshl_b32 s32, s{S_WAVE}, 11")
    A(f"s_xor_b32 s33, s{S_FLIP}, 0x{OWN2 - 4096:x}")
    A(f"s_cmp_lt_u32 s{S_WAVE}, 2")
    A(f"s_cselect_b32 s33, 0x{SPILL:x}, s33")
    A("s_cselect_b32 s35, 13, 12")
    A("s_add_u32 s32, s32, s33")
    A(f"s_mul_i32 s33, s{S_OS}, 3")
    for k in range(3):
        A(f"s_add_u32 s39, s33, {k}")
        A("s_and_b32 s39, s39, 3")
        A("s_lshl_b32 s39, s39, s35")
        A("s_add_u32 s39, s39, s32")
        A(f"v_add_u32 v{VOW+k}, s39, v{VL16}")
    for i in range(4):
        A(f"s_add_u32 s32, s{S_OS}, {i + 1}")
        A(f"s_sub_u32 s33, s32, {NS1}")
        A("s_cselect_b32 s32, s32, s33")
        A(f"s_mul_i32 s{SPO[i]}, s32, 0x{OP_STRIDE:x}")
    if E2:
        A(f"s_lshl_b32 s32, s{S_EXIT}, 3")
        A(f"v_lshlrev_b32 v{VFA}, s32, 1")
    else: A(f"v_mov_b32 v{VFA}, 1")
    A(f"v_and_b32 v{VV}, 3, v0")
    A(f"v_lshl_add_u32 v{VV}, v{VV}, 2, s{S_HB}")
    A(f"s_lshl_b32 s33, s{S_WAVE}, 12")
    A(f"s_sub_u32 s33, s33, s{S_FLIP}")
    A(f"s_cmp_lt_u32 s{S_VOTE}, 2")
    A(f"s_cselect_b32 s33, s33, 0x100000")
    A(f"v_add_u32 v1, s33, v{VL16}")
    A(f"v_add_u32 v1, 0x{OWN2:x}, v1")
    stamp()
    A("s_waitcnt lgkmcnt(0)", needs=['st'])
    stamp()
    A("s_barrier")
    P(LD(f"ds_read_b32 v{VV+1}, v{VV} offset:{VOTEO}", tag='vote'))
    if HT: P(('BAR',))
    for k in range(4): P(LD(f"ds_write_b128 v1, {vr(KEEP + 4 * k)} offset:{k*1024}"))
    A(f"v_cmp_ne_u32 vcc, 0, v{VV+1}", needs=['vote'])
    A("s_cbranch_vccnz LC_slow")
    A("s_mov_b64 exec, 1")
    P(VM(f"buffer_atomic_add v{VFA}, v{VFL}, {sr(SW)}, s{S_FO} offen"))
    A("s_mov_b64 exec, -1")
    if opt.get('wb') == 1:
        A(f"s_cmp_lg_u32 s{S_FO}, 0x{FLO:x}"); A("s_cbranch_scc1 LC_nowb"); A("buffer_wbl2 sc1"); A("LC_nowb:")
    A(f"s_cmp_eq_u32 s{S_EXIT}, 1")
    if opt.get('wb') == 2:
        A("s_cbranch_scc0 LC_nowb"); A(f"s_cmp_lg_u32 s{S_WAVE}, 0"); A("s_cbranch_scc1 L2_fin"); A("buffer_wbl2 sc1"); A("s_branch L2_fin"); A("LC_nowb:")
    else: A("s_cbranch_scc1 L2_fin")
    if E2: A(f"s_mov_b32 s{SPO[4]}, 0x{5 * OP_STRIDE:x}")
    else:
        A(f"s_add_u32 s32, s{S_OS}, 5")
        A(f"s_sub_u32 s33, s32, {NSPLIT}")
        A("s_cselect_b32 s32, s32, s33")
        A(f"s_mul_i32 s{SPO[4]}, s32, 0x{OP_STRIDE:x}")
    arrived = {(ch, k) for ch in cnt for k in range(cnt[ch])}
    def rel(e): free.append(reg[e])
    tv = [0, 0]
    def tmp(k=0):
        tv[k] += 1; return (T, T2)[k] + (tv[k] % 4) * 2
    PK = opt.get('pk', 0); WP = 16
    def wt_read(rb):
        if PK:
            for k in range(6): P(LD(f"ds_read2_b32 {vr(WP + 2 * k, 2)}, v{VWR} offset0:{1 + k} offset1:{1 + k}", tag=('wt', rb)))
        for k in range(3 * (not PK)): P(LD(f"ds_read2_b32 {vr(WT + 2 * k, 2)}, v{VWR} offset0:{1 + 2*k} offset1:{2 + 2*k}", tag=('wt', rb)))
        if rb < 2: A(f"v_add_u32 v{VWR}, 0x{16 * RS:x}, v{VWR}")
    def weights():
        m = lambda s: reg[('m', s // 2)] + 2 * (s % 2)
        l = lambda s: m(s) + 1
        A(f"v_max3_f32 v1, v{m(0)}, v{m(1)}, v{m(2)}")
        A(f"v_max3_f32 v{T+1}, v{m(3)}, v{m(4)}, v{m(5)}")
        A(f"v_max_f32 v1, v1, v{T+1}")
        for s in range(NSPLIT): A(f"v_sub_f32 v{m(s)}, v{m(s)}, v1")
        for s in range(NSPLIT): A(f"v_exp_f32 v{m(s)}, v{m(s)}")
        A("s_nop 0")
        A(f"v_mul_f32 v1, v{m(0)}, v{l(0)}")
        for s in range(1, NSPLIT): A(f"v_fmac_f32 v1, v{m(s)}, v{l(s)}")
        A("v_rcp_f32 v1, v1")
        A("s_nop 0")
        for s in range(NSPLIT + 2): A(f"v_mul_f32 v{ZA + s}, v{m(s % NSPLIT)}, v1")
        P(LD(f"ds_write_b128 v{VWW}, {vr(ZA)}"))
        P(LD(f"ds_write_b128 v{VWW}, {vr(ZA+4)} offset:16"))
        P(LD(f"ds_write_b64 v{VWW}, {vr(ZA+2, 2)} offset:32"))
        P(LD(f"ds_write_b64 v{VWW}, {vr(ZA+4, 2)} offset:40"))
        wt_read(0)
        for k in range(3): rel(('m', k))
    MR, SE, VW2 = 8, 4, 47
    def wt_read2(rb):
        P(LD(f"ds_read2_b32 {vr(WT, 2)}, v{VWR} offset0:1 offset1:2"))
        P(LD(f"ds_read2_b32 {vr(WT + 2, 2)}, v{VWR} offset0:3 offset1:4"))
        P(LD(f"ds_read_b32 v{WT + 4}, v{VWR} offset:20", tag=('wt', rb)))
        if rb < 2: A(f"v_add_u32 v{VWR}, 0x400, v{VWR}")
        if ab: ab_read(rb)
    ab = []
    def ab_read(rb): P(LD(f"ds_read_b64 {vr(WT + 6, 2)}, v{VW2} offset:{rb*1024 + 48}", tag=('ab', rb)))
    def weights1():
        m = lambda s: reg[('m', s // 2)] + 2 * (s % 2)
        l = lambda s: m(s) + 1
        A(f"v_max3_f32 v{MR}, v{m(0)}, v{m(1)}, v{m(2)}")
        A(f"v_max3_f32 v{MR}, v{MR}, v{m(3)}, v{m(4)}")
        for s in range(5): A(f"v_sub_f32 v{m(s)}, v{m(s)}, v{MR}")
        for s in range(8): A(f"v_exp_f32 v{ZA + s}, v{m(s % 5)}")
        A(f"v_mul_f32 v{SE}, v{ZA}, v{l(0)}")
        for s in range(1, 5): A(f"v_fmac_f32 v{SE}, v{ZA + s}, v{l(s)}")
        A(f"v_mov_b32 v{T}, v{ZA + 3}"); A(f"v_mov_b32 v{T + 1}, v{ZA + 4}")
        P(LD(f"ds_write_b128 v{VWW}, {vr(ZA)}"))
        P(LD(f"ds_write_b128 v{VWW}, {vr(ZA+4)} offset:16"))
        P(LD(f"ds_write_b64 v{VWW}, {vr(T, 2)} offset:32"))
        wt_read2(0)
        for k in range(3): rel(('m', k))
    def weights2(rb):
        r = reg[('n', 0)]; t = T2
        A(f"v_max_f32 v1, v{MR}, v{r}")
        A(f"v_sub_f32 v{t}, v{MR}, v1"); A(f"v_sub_f32 v{t+1}, v{r}, v1")
        A(f"v_exp_f32 v{t}, v{t}"); A(f"v_exp_f32 v{t+1}, v{t+1}")
        A("s_nop 0")
        A(f"v_mul_f32 v1, v{t}, v{SE}")
        A(f"v_fmac_f32 v1, v{t+1}, v{r+1}")
        A("v_rcp_f32 v1, v1")
        A("s_nop 0")
        A(f"v_mul_f32 v{t}, v{t}, v1"); A(f"v_mul_f32 v{t+1}, v{t+1}, v1")
        P(LD(f"ds_write_b64 v{VWW}, {vr(t, 2)} offset:48"))
        ab.append(1); ab_read(rb)
        rel(('n', 0))
    zw = set(); zok = set(); hok = [bool(HT)]; xin = set()
    nopk = [False]
    def acc8(r, wi, first, needs):
        if PK and nopk[0]:
            for k in range(4): A(f"v_lshlrev_b32 v{T+2*k}, 16, v{r+k}", needs=needs); A(f"v_and_b32 v{T+2*k+1}, s{S_MASK}, v{r+k}")
            for k in range(8): A(f"{'v_mul_f32' if first else 'v_fmac_f32'} v{ZA+k}, v{T+k}, v{WP+2*wi}")
            return
        if PK:
            for k in range(4): A(f"v_lshlrev_b32 v{T+2*k}, 16, v{r+k}", needs=needs); A(f"v_and_b32 v{T+2*k+1}, s{S_MASK}, v{r+k}")
            for k in range(4):
                a = vr(ZA + 2 * k, 2)
                A(f"v_pk_mul_f32 {a}, {vr(T+2*k, 2)}, {vr(WP+2*wi, 2)}" if first else f"v_pk_fma_f32 {a}, {vr(T+2*k, 2)}, {vr(WP+2*wi, 2)}, {a}")
            return
        if opt.get('u8'):
            sh = opt.get('ush', 1)
            for k in range(4): A(f"v_lshlrev_b32 v{T + (k + sh) % 4}, 16, v{r+k}", needs=needs)
            for k in range(4): A(f"v_and_b32 v{r+k}, s{S_MASK}, v{r+k}")
            for k in range(4): A(f"{'v_mul_f32' if first else 'v_fmac_f32'} v{ZA+2*k}, v{T + (k + sh) % 4}, v{WT+wi}")
            for k in range(4): A(f"{'v_mul_f32' if first else 'v_fmac_f32'} v{ZA+2*k+1}, v{r+k}, v{WT+wi}")
            return
        for k in range(4):
            t = tmp(); a = ZA + 2 * k
            A(f"v_lshlrev_b32 v{t}, 16, v{r+k}", needs=needs)
            A(f"v_and_b32 v{t+1}, s{S_MASK}, v{r+k}")
            for u in range(2): A(f"{'v_mul_f32' if first else 'v_fmac_f32'} v{a+u}, v{t+u}, v{WT+wi}")
    def cstep2(rb, k0):
        c, i = (k0 // 4, k0 % 4) if k0 < 8 else (k0 - 8, 4)
        Z = ZA if c == 0 else ZB
        def acc8(r, wi, first, needs):
            for k in range(4):
                t = tmp(); a = Z + 2 * k
                A(f"v_lshlrev_b32 v{t}, 16, v{r+k}", needs=needs)
                A(f"v_and_b32 v{t+1}, s{S_MASK}, v{r+k}")
                for u in range(2): A(f"{'v_mul_f32' if first else 'v_fmac_f32'} v{a+u}, v{t+u}, v{WT+wi}")
        if i == 0: P(LD(f"ds_read_b128 {vr(XR)}, v{VOW+rb} offset:{c*1024}", tag='own'))
        if i == 4:
            for k in range(8): A(f"v_mul_f32 v{Z+k}, v{Z+k}, v{WT+6}", needs=[('ab', rb)])
        acc8(reg[(str(rb), k0)], 7 if i == 4 else i, i == 0, [('wt', rb)])
        rel((str(rb), k0))
        if i == 1: acc8(XR, 4, False, ['own'])
        if i == 4:
            if c == 1 and rb < 2: wt_read2(rb + 1)
            for k in range(4): A(f"v_cvt_pk_bf16_f32 v{T+k}, v{Z+2*k}, v{Z+2*k+1}")
            P(LD(f"ds_write_b128 v{VZ2 if c else VZ}, {vr(T)} offset:{rb*8192}", tag='z'))
            if c == 1: zw.add(rb)
    def cstep(rb, k0):
        if E2: return cstep2(rb, k0)
        c, i = k0 // 5, k0 % 5
        if i == 0: P(LD(f"ds_read_b128 {vr(XR)}, v{VOW+rb} offset:{c*1024}", tag='own'))
        acc8(reg[(str(rb), k0)], i, i == 0, [('wt', rb)])
        rel((str(rb), k0))
        if i == opt.get('oi', 1): acc8(XR, 5, False, ['own'])
        if i == 4:
            if c == 1 and rb < 2: wt_read(rb + 1)
            for k in range(4): A(f"v_cvt_pk_bf16_f32 v{T+k}, v{ZA+2*k}, v{ZA+2*k+1}")
            P(LD(f"ds_write_b128 v{VZ2 if c else VZ}, {vr(T)} offset:{rb*8192}", tag='z'))
            if c == 1: zw.add(rb)
    acc = lambda rb, j, b: ACC + ((rb * 2 + j) * 2 + b) * 4
    nxt = {(m, rb): 0 for m in range(2) for rb in range(3)}
    groups = []; barpos = [int(bool(HT))]
    def xinit(rb):
        for j in range(2):
            a = acc(rb, j, 0)
            P(LD(f"ds_read_b128 {vr(a + 4)}, v{(VTW2 if rb == 2 else VTW)+j} offset:{rb % 2 * 2048}", tag=('xr', j), needs=[('x', 5)] if rb == 2 else []))
        for j in range(2):
            a = acc(rb, j, 0)
            for k in range(4):
                A(f"v_lshlrev_b32 v{a+2*k}, 16, v{a+4+k}", needs=[('xr', j)])
                A(f"v_and_b32 v{a+2*k+1}, s{S_MASK}, v{a+4+k}")
        xin.add(rb)
    stores = []
    def ep(rb):
        for j in range(2):
            a = acc(rb, j, 0)
            for k in range(4): A(f"v_cvt_pk_bf16_f32 v{a+k}, v{a+2*k}, v{a+2*k+1}")
            P(LD(f"ds_write_b128 v{(VTW2 if rb == 2 else VTW)+j}, {vr(a)} offset:{rb % 2 * 2048}"))
        for j in range(2): P(LD(f"ds_read_b128 {vr(acc(rb, j, 1))}, v{VTR2 if rb == 2 else VTR} offset:{rb % 2 * 2048 + j*1024}", tag=('y', rb, j)))
        stores.append(rb)
    def do_stores():
        for rb in stores:
            for j in range(2):
                s = stmp()
                A(f"s_add_u32 s{s}, s{S_RO+rb}, {j*4096}")
                P(VM(f"buffer_store_dwordx4 {vr(acc(rb, j, 1))}, v{VX}, {sr(SO)}, s{s} offen{opt.get('cst', '')}", needs=[('y', rb, j)]))
        stores.clear()
    pend = []
    def flush(skip=None):
        for rb in [r for r in pend if r != skip]:
            pend.remove(rb); ep(rb)
    def mf_step(cap):
        n = 0
        while n < cap:
            cand = []
            for (m, rb), t in nxt.items():
                if rb == 2 and ('x', 5) not in arrived: continue
                if t == 8 or (m == 0 and not hok[0]) or (m == 1 and rb not in zok) or ('ab'[m], 4 * t + 3) not in arrived: continue
                cand.append((m, t, rb) if m == 0 else (m, rb, t, rb))
            if not cand: break
            c = min(cand); m, t, rb = c[0], c[-2], c[-1]
            if rb not in xin: xinit(rb)
            P(('G', len(groups))); groups.append((m, t, rb, barpos[0] if m == 1 or not groups else groups[-1][3]))
            nxt[(m, rb)] += 1; n += 1
            flush(rb)
            if nxt[(0, rb)] == 8 and nxt[(1, rb)] == 8: pend.append(rb)
    def barrier():
        if zw - zok: P(W('z'))
        A("s_barrier"); P(('BAR',)); barpos[0] += 1
        stamp()
        zok.update(zw)
        if ('h', 5) in arrived: hok[0] = True
    late = []; old = set()
    def stream(L, bar, D, cap, left=0):
        for k, e in enumerate(L):
            if k >= len(L) - left:
                late.append(e); continue
            if e[0] not in 'qQF' and e not in old: P(W(e))
            arrived.add(e)
            if k + D < len(L): issue(L[k + D])
            elif stores: do_stores()
            if opt.get('mix') and k not in bar and (e[0] in '012' or e == ('m', 2)):
                n0 = len(q); g0 = len(groups)
                flush()
                mf_step(opt['mix'] + (e[0] == 'm' or e[1] % 5 == opt.get('oi', 1)) * opt['mix'])
                ng = len(groups) - g0
                vl = []; cur[0] = vl; nopk[0] = ng > 0
                weights() if e[0] == 'm' else cstep(int(e[0]), e[1])
                cur[0] = q; nopk[0] = False
                q.insert(n0, ('V', vl, -(-len(vl) // (4 * ng)) if ng else 0))
                continue
            if opt.get('mix') and k not in bar and any(x[0] in '012' for x in L[k + 1:]):
                flush(); continue
            vl = []; cur[0] = vl
            if e == ('m', 2): weights1() if E2 else weights()
            if e == ('n', 0): weights2(0)
            if e[0] in '012': cstep(int(e[0]), e[1])
            cur[0] = q
            if k in bar:
                q.extend(vl); barrier(); vl = []
            n0 = len(q)
            flush()
            more = any(x[0] in '012' for x in L[k + 1:])
            if 'hsplit' in opt and e[0] == 'm':
                mf_step(99 if e[1] == 2 else 0); q.insert(n0, ('V', vl, 3)); continue
            mf_step(opt.get('hburst', 99) if e == ('h', 5) else cap if (more if opt.get('u8') else k + D < len(L) or e[0] in '012') else 99)
            q.insert(n0, ('V', vl))
    L1, b1 = parse(opt.get('cpre', "xx" + "a" * 24 + "b" * 8 + "q" + "b" * 8))
    D1 = min(opt.get('cd1', 12), len(L1)); assert min(opt.get('cleft', 12), len(L1)) <= D1
    for k in range(D1): issue(L1[k])
    xinit(0); xinit(1)
    stream(L1, b1, D1, opt.get('ccap1', 0), min(opt.get('cleft', 12), len(L1)))
    if opt.get('x2e') and ('x', 5) in arrived: xinit(2)
    stamp()
    del cnt['q']
    if ('q', 0) in late: late.remove(('q', 0))
    A("s_waitcnt lgkmcnt(0)")
    if E2: A(f"s_and_b32 s{S_PV}, s{S_PV}, 0xff")
    A(f"s_cmp_lt_u32 s{S_PV}, {NS1}")
    A("s_cbranch_scc1 LC_poll")
    A(f"s_cmp_ge_u32 s{S_VOTE}, 2")
    A("s_cbranch_scc1 LC_poll")
    A("LC_got:")
    stamp()
    L2, b2 = parse(opt.get('cord', "mmm" + "0" * 10 + "|" + "1bb" * 8 + "11|" + "2" * 10 + "|"))
    for ch in 'nQF': cnt.pop(ch, None)
    HL2 = ('h', 5) in L2
    assert cnt == dict(h=6, m=3, x=6, a=32, b=32, **{'0': 10, '1': 10, '2': 10}), cnt
    D2 = opt.get('cd', 12)
    for k in range(D2): issue(L2[k])
    if not HT and not HL2: P(W(('h', 5))); arrived.add(('h', 5))
    barrier()
    for e in late:
        P(W(e)); arrived.add(e)
    mf_step(opt.get('hsplit', 99))
    stream(L2, b2, D2, opt.get('ccap2', 1))
    mf_step(99); flush()
    do_stores()
    assert all(t == 8 for t in nxt.values()) and not pend, (nxt, pend)
    NR = 6
    F = lambda n: BF + (n % NR) * 4
    def rd(n):
        m, t, rb = groups[n][:3]
        if m == 0: s = f"ds_read_b128 {vr(F(n))}, v{VBH + (t & 1)} offset:{rb*8192 + (t >> 1)*1024}"
        else: s = f"ds_read_b128 {vr(F(n))}, v{VZR} offset:{rb*8192 + t*1024}"
        return LD(s, tag=('f', n))
    out = []; nr = 0; done = -1; vq = []; nb = 0
    IL = opt.get('cil', 3)
    def avail(n): return groups[n][3] <= nb
    for it in q:
        if isinstance(it, tuple) and it[0] == 'V':
            out += vq; vq = list(it[1]); IL = it[2] if len(it) > 2 else opt.get('cil', 3); continue
        if isinstance(it, tuple) and it[0] == 'G':
            n = it[1]; m, t, rb = groups[n][:3]
            assert nr > n
            for jb in range(4):
                j, b = jb >> 1, jb & 1
                out.append(Ins(f"{MF32} {vr(acc(rb,j,b))}, {ar(WA(m,j,t,b))}, {vr(F(n))}, {vr(acc(rb,j,b))}", 0, needs=[('f', n), ('ab'[m], 4 * t + jb)]))
                if jb == 0:
                    done = n - 1
                    if nr < len(groups) and nr <= done + NR and avail(nr): out.append(rd(nr)); nr += 1
                out += vq[:IL]; vq = vq[IL:]
            done = n
        elif isinstance(it, tuple):
            nb += 1
            while nr < len(groups) and nr <= done + NR - 1 and avail(nr): out.append(rd(nr)); nr += 1
        else:
            if it.t is None or not it.t.startswith(('v_', 'ds_')): out += vq; vq = []
            out.append(it)
    out += vq
    if opt.get('verbose'): print("phase C min free", low[0], "len", len(out))
    o += hazard.fix(Emitter().emit(out))
    o.append("s_branch L2_fin")
    full = 0x105 if E2 else NSPLIT
    o += ["LC_poll:", f"s_mov_b32 s{S_SPIN}, 0", f"s_cmp_lt_u32 s{S_VOTE}, 2", f"s_cselect_b32 s33, 0x{0xff if E2 else 0xfff:x}, -1", f"s_cselect_b32 s35, {NS1}, 0x{full:x}", "LC_poll2:"]
    for k in range(3): o += [f"s_mov_b32 s{S_PV+k}, 0", f"s_atomic_add s{S_PV+k}, s[{S_FB}:{S_FB+1}], s{S_FL+k} glc"] + (["s_cmp_lt_u32 s2, 240", "s_cbranch_scc1 LC_poll3"] if k == 0 else [])
    o += ["s_waitcnt lgkmcnt(0)", f"s_min_u32 s{S_PV}, s{S_PV}, s{S_PV+1}", f"s_min_u32 s{S_PV}, s{S_PV}, s{S_PV+2}", "LC_poll3:", "s_waitcnt lgkmcnt(0)",
          f"s_and_b32 s{S_PV}, s{S_PV}, s33", f"s_cmp_ge_u32 s{S_PV}, s35", "s_cbranch_scc1 LC_poll4", f"s_sleep {opt.get('psleep', 2)}", f"s_add_u32 s{S_SPIN}, s{S_SPIN}, 1",
          f"s_cmp_gt_u32 s{S_SPIN}, 0x40000", "s_cbranch_scc0 LC_poll2", "LC_poll4:", f"s_cmp_lt_u32 s{S_VOTE}, 2", "s_cbranch_scc1 LC_got",
          f"s_mul_i32 s33, s{S_OS}, 0x{OP_STRIDE:x}"]
    for rb in range(3):
        o += [f"v_readfirstlane_b32 s32, v{VOW+rb}", f"s_add_u32 s35, s33, s{S_RO+rb}", "s_mov_b32 m0, s32", "s_nop 0"]
        o += [f"buffer_load_dwordx4 v{VOP}, {sr(SP)}, s35 offen offset:{c*1024} sc1 lds" for c in range(2)]
    o += ["s_waitcnt vmcnt(0)", "s_branch LC_got"]
    if E2:
        o += ["LC_pollf:", f"s_mov_b32 s{S_SPIN}, 0", "LC_pollf2:", f"s_mov_b32 s{S_PV+1}, 0", f"s_atomic_add s{S_PV+1}, s[{S_FB}:{S_FB+1}], s{S_FL} glc", "s_waitcnt lgkmcnt(0)",
              f"s_cmp_ge_u32 s{S_PV+1}, 0x100", "s_cbranch_scc1 LC_gotf", f"s_sleep {opt.get('psleep', 2)}", f"s_add_u32 s{S_SPIN}, s{S_SPIN}, 1",
              f"s_cmp_gt_u32 s{S_SPIN}, 0x40000", "s_cbranch_scc0 LC_pollf2", "s_branch LC_gotf"]
    o.append("LC_side:")
    o += [f"s_cmp_eq_u32 s{S_EXIT}, 1", "s_cbranch_scc1 LC_sideok", f"s_cmp_lt_u32 s2, 240", "s_cbranch_scc1 LC_side1", "s_barrier", "LC_side1:"]
    o += [f"s_mov_b32 s{S_SPIN}, 0", f"s_mov_b32 s33, 0x{FLO + 40*128:x}", "LC_side2:", f"buffer_load_dword v1, off, {sr(SW)}, s33 sc1", "s_waitcnt vmcnt(0)",
          f"v_readfirstlane_b32 s{S_SIDE}, v1", f"s_add_u32 s{S_SPIN}, s{S_SPIN}, 1", f"s_cmp_gt_u32 s{S_SPIN}, 0x40000", "s_cbranch_scc1 LC_side3",
          f"s_cmp_ge_u32 s{S_SIDE}, {NSIDE}", "s_cbranch_scc1 LC_side3", "s_sleep 8", "s_branch LC_side2", "LC_side3:"]
    if HT:
        x = []; cur[0] = x
        hsetup()
        for k in range(6): issue(('h', k))
        o += hazard.fix([i.t for i in x]) + ["s_waitcnt vmcnt(0)"]
    o += [f"s_cmp_lt_u32 s{S_VOTE}, 2", "s_cbranch_scc1 LC_sideok"]
    x = []; cur[0] = x
    xsetup()
    for k in range(4): issue(('x', k))
    o += hazard.fix([i.t for i in x]) + ["s_waitcnt vmcnt(0)", "s_branch LC_sideok"]
    o.append("LC_slow:")
    o.append("s_waitcnt vmcnt(0) lgkmcnt(0)")
    o.append("s_barrier")
    slow(o)
    o.append("s_barrier")
    srd_from(o, SW, 4, WF_OFF, SW_BYTES)
    o += rows(S_SPL, S_QT)
    o.append(f"s_mov_b32 s{S_SIDE}, 0")
    o.append(f"s_mov_b32 s{S_VOTE}, 2")
    o.append("s_branch LC_again")
```

```python
from layout import *
from sched import *
import hazard
import struct, math

K1_LDS = 163840
SRD_X, SRD_W1, SRD_W2, SRD_O, SRD_H = 40, 44, 48, 52, 56
S_W, S_ROLE, S_ROT, S_M0, S_XO = 60, 61, 62, 63, 64
SK1, SK2, SO, S_SC, S_EPS, S_R256, S_MASK = 66, 74, 82, 86, 88, 89, 90
VL16, VWQ, VWK, VTR, VK, VH, VQW, VQ, VHW = 16, 17, 21, 25, 29, 31, 33, 35, 36
MF32 = "v_mfma_f32_16x16x32_bf16"
DPP = " row_mask:0xf bank_mask:0x%x"


def ln_block(pre, opt, NL, HP, LN0, more, stamp):
    A = lambda t: pre.append(V(t)); F0 = opt.get('f0', 0)
    U = lambda j: LN0 + 8 * j
    SQ = LN0 + 8 * NL
    for j in range(NL):
        x, u, s = HP + 4 * j, U(j), SQ + 4 * j
        pre.append(W(('x', j)))
        if j == 0: pre += stamp()
        for k in range(4):
            A(f"v_lshlrev_b32 v{u+2*k}, 16, v{x+k}")
            A(f"v_and_b32 v{u+2*k+1}, s{S_MASK}, v{x+k}")
        if opt.get('nopk', 0) >= 3:
            A(f"v_add_f32 v{s}, v{u}, v{u+1}"); A(f"v_mul_f32 v{s+2}, v{u}, v{u}")
            A(f"v_add_f32 v{s+1}, v{u+2}, v{u+3}"); A(f"v_mul_f32 v{s+3}, v{u+1}, v{u+1}")
            for k in range(2, 8):
                if k >= 4: A(f"v_add_f32 v{s+(k&1)}, v{s+(k&1)}, v{u+k}")
                A(f"v_fmac_f32 v{s+2+(k&1)}, v{u+k}, v{u+k}")
            A(f"v_add_f32 v{s}, v{s}, v{s+1}"); A(f"v_add_f32 v{s+2}, v{s+2}, v{s+3}")
        else:
            A(f"v_pk_add_f32 {vr(s,2)}, {vr(u,2)}, {vr(u+2,2)}")
            A(f"v_pk_mul_f32 {vr(s+2,2)}, {vr(u,2)}, {vr(u,2)}")
            A(f"v_pk_add_f32 {vr(x,2)}, {vr(u+4,2)}, {vr(u+6,2)}")
            A(f"v_pk_fma_f32 {vr(s+2,2)}, {vr(u+2,2)}, {vr(u+2,2)}, {vr(s+2,2)}")
            A(f"v_pk_add_f32 {vr(s,2)}, {vr(s,2)}, {vr(x,2)}")
            A(f"v_pk_fma_f32 {vr(s+2,2)}, {vr(u+4,2)}, {vr(u+4,2)}, {vr(s+2,2)}")
            A(f"v_add_f32 v{s}, v{s}, v{s+1}")
            A(f"v_pk_fma_f32 {vr(s+2,2)}, {vr(u+6,2)}, {vr(u+6,2)}, {vr(s+2,2)}")
            A(f"v_add_f32 v{s+2}, v{s+2}, v{s+3}")
        more()
    for j in range(NL): A(f"v_permlane16_swap_b32 v{SQ+4*j}, v{SQ+4*j+2}")
    for j in range(NL): A(f"v_add_f32 v{SQ+4*j}, v{SQ+4*j}, v{SQ+4*j+2}")
    def merge(regs, mode, m0, m1, off):
        out = []
        for a in range(0, len(regs), 2):
            (ra, la) = regs[a]
            d = ra + off
            if a + 1 < len(regs):
                rb_, lb = regs[a + 1]
                A(f"v_add_f32_dpp v{d}, v{ra}, v{ra} {mode}" + DPP % m0)
                A(f"v_add_f32_dpp v{d}, v{rb_}, v{rb_} {mode}" + DPP % m1)
                sh = 8 if m1 == 0xc else 4
                out.append((d, {**la, **{k: v + sh for k, v in lb.items()}}))
            else:
                A(f"v_add_f32_dpp v{d}, v{ra}, v{ra} {mode}" + DPP % 0xf)
                out.append((d, la))
        return out
    regs = [(SQ + 4 * j, {j: 0}) for j in range(NL)]
    regs = merge(regs, "row_ror:8", 0x3, 0xc, 1)
    regs = merge(regs, "row_half_mirror", 0x5, 0xa, 1)
    for qp in ("[1,0,3,2]", "[2,3,0,1]"):
        for r, _ in regs: A(f"v_add_f32_dpp v{r}, v{r}, v{r} quad_perm:{qp}" + DPP % 0xf)
    for r, _ in regs: A(f"v_mov_b32 v{r+1}, v{r}")
    for r, _ in regs: A(f"v_permlane16_swap_b32 v{r+1}, v{r}")
    ops = lambda r: [f"v_mul_f32 v{r+1}, s{S_R256}, v{r+1}", f"v_mul_f32 v{r}, s{S_R256}, v{r}",
                     f"v_fma_f32 v{r}, -v{r+1}, v{r+1}, v{r}", f"v_cvt_pk_bf16_f32 v{r+1}, v{r+1}, v{r+1}", f"v_max_f32 v{r}, 0, v{r}",
                     f"v_cvt_pk_bf16_f32 v{r}, v{r}, v{r}", f"v_and_b32 v{r}, s{S_MASK}, v{r}", f"v_add_f32 v{r}, s{S_EPS}, v{r}",
                     f"v_cvt_pk_bf16_f32 v{r}, v{r}, v{r}", f"v_and_b32 v{r}, s{S_MASK}, v{r}", f"v_sqrt_f32 v{r}, v{r}",
                     f"v_and_b32 v{r+1}, s{S_MASK}, v{r+1}",
                     f"v_cvt_pk_bf16_f32 v{r}, v{r}, v{r}", f"v_and_b32 v{r}, s{S_MASK}, v{r}", f"v_rcp_f32 v{r}, v{r}",
                     f"v_mul_f32 v{r+1}, -v{r+1}, v{r}"]
    if F0:
        ops0 = ops
        ops = lambda r: [t for t in ops0(r) if t not in (f"v_cvt_pk_bf16_f32 v{r+1}, v{r+1}, v{r+1}", f"v_and_b32 v{r+1}, s{S_MASK}, v{r+1}")]
    for tt in zip(*[ops(r) for r, _ in regs]):
        for t in tt: A(t)
    for r, lm in regs:
        for j, ln in lm.items():
            A(f"v_mov_b64_dpp {vr(SQ+4*j,2)}, {vr(r,2)} row_newbcast:{ln} row_mask:0xf bank_mask:0xf")
    for j in range(NL):
        x, u, s = HP + 4 * j, U(j), SQ + 4 * j
        for k in range(4):
            if opt.get('nopk', 0) >= 1:
                for z in range(2): A(f"v_fma_f32 v{u+2*k+z}, v{u+2*k+z}, v{s}, v{s+1}")
            else: A(f"v_pk_fma_f32 {vr(u+2*k,2)}, {vr(u+2*k,2)}, {vr(s,2)}, {vr(s,2)} op_sel:[0,0,1] op_sel_hi:[1,0,1]")
        for k in range(4):
            A(f"v_cvt_pk_bf16_f32 v{x+k}, v{u+2*k}, v{u+2*k+1}")
        pre.append(LD(f"ds_write_b128 v{VHW+j}, {vr(x)}", tag='hw'))
        more()


def gemm_prog(role, opt):
    NW = opt.get('nw', 8); NF = 16 // NW; CW = 16 * NF; NPC = NF; CH = NPC * 1024; RS = 32 * NF
    main = role == 'q'
    NRB = opt.get('nrb', 3) if main else 4
    RPW = 16 * NRB // NW; NL = RPW // 2
    IMG = NRB * 8192
    RC = (K1_LDS - (2 if main else 1) * IMG) // NW // CH
    RC = min(RC, opt.get('rc', 8))
    WSZ = RC * CH
    HIMG = NW * WSZ; QIMG = HIMG + IMG
    assert QIMG + (IMG if main else 0) <= K1_LDS
    stx = opt.get('st', '')
    p = VHW + NL; p = (p + 3) // 4 * 4
    HP = p; p += NL * 4
    ACC1 = p; p += NF * NRB * 4
    LN0 = p
    ACC2 = p; p += NF * NRB * 4 if main else 0
    RW, RB = opt.get('rw', 6 if NW == 8 else 10), opt.get('rb', 4 if NW == 8 else 3) * NRB
    WR = p; p += RW * 4
    BR = p; p += RB * 4
    F0 = opt.get('f0', 0)
    W0A = main and NW == 4
    W0 = p; p += (0 if W0A else 32 if main else 12) * F0
    w0r = (lambda t: ar(4 * t)) if W0A else (lambda t: vr(W0 + 4 * t))
    AC0 = p; p += NRB * 4 * F0 * main
    assert p <= 255, p
    nst = [0]
    def stamp(kind=0):
        if not opt.get('timing') or kind != opt.get('skind', 0) or (kind and not main): return []
        nst[0] += 1
        assert nst[0] <= 8
        return [V(f"s_memtime s[{14+2*nst[0]}:{15+2*nst[0]}]", cost=0)]
    pre = []
    A = lambda t: pre.append(V(t))
    A(f"v_lshlrev_b32 v{VL16}, 4, v2")
    A(f"s_mul_i32 s{S_M0}, s{S_W}, {WSZ}")
    if main:
        A(f"s_mul_i32 s6, s4, {NRB*8192}")
        A(f"s_mul_i32 s7, s{S_W}, {RPW*512}")
        A(f"s_add_u32 s{S_XO}, s6, s7")
        A(f"s_add_u32 s{S_XO+1}, s{S_XO}, 4096")
    else:
        A("s_and_b32 s6, s4, 3")
        A(f"s_lshl_b32 s6, s6, 6")
        A(f"s_mul_i32 s7, s{S_W}, {RPW}")
        A("s_add_u32 s6, s6, s7")
        A("v_lshrrev_b32 v5, 5, v2")
        A("v_and_b32 v6, 31, v2")
        A("v_lshlrev_b32 v6, 4, v6")
        if F0: A(f"v_mov_b32 v{W0}, v6")
        A("s_cmp_ge_u32 s4, 4")
        A("s_cselect_b64 vcc, -1, 0")
        for j in range(NL):
            A(f"v_add3_u32 v7, v5, s6, {2*j}")
            A("v_and_b32 v8, 0x80, v7")
            A("v_bfe_u32 v9, v7, 2, 1"); A("v_lshl_or_b32 v8, v9, 6, v8")
            A("v_bfe_u32 v9, v7, 4, 1"); A("v_lshl_or_b32 v8, v9, 5, v8")
            A("v_and_b32 v9, 3, v7"); A("v_lshl_or_b32 v8, v9, 3, v8")
            A("v_bfe_u32 v9, v7, 5, 2"); A("v_lshl_or_b32 v8, v9, 1, v8")
            A("v_bfe_u32 v9, v7, 3, 1"); A("v_or_b32 v8, v9, v8")
            A("v_cndmask_b32 v8, v8, v7, vcc")
            A(f"v_lshl_add_u32 v{HP+4*j}, v8, 9, v6")
    def w1_setup():
        A(f"s_lshl_b32 s7, s{S_W}, {(CW*2).bit_length()-1}")
        if NW == 4:
            A("v_lshrrev_b32 v5, 3, v2")
            A("v_and_b32 v6, 7, v2")
            A("v_and_b32 v7, 2, v5")
            A("v_xor_b32 v6, v6, v7")
            A("v_lshl_add_u32 v5, v5, 9, s7")
            A(f"v_lshl_add_u32 v{VWQ}, v6, 4, v5")
            A("v_xor_b32 v6, 4, v6")
            A(f"v_lshl_add_u32 v{VWQ+1}, v6, 4, v5")
            A(f"v_add_u32 v{VWQ+1}, 0xc00, v{VWQ+1}")
            A(f"v_add_u32 v{VWQ+2}, 0x1800, v{VWQ}")
            A(f"v_add_u32 v{VWQ+3}, 0x1800, v{VWQ+1}")
        else:
            A("v_lshrrev_b32 v5, 2, v2")
            A("v_and_b32 v6, 3, v2")
            A("v_lshrrev_b32 v7, 5, v2")
            A("v_lshlrev_b32 v7, 1, v7")
            A("v_xor_b32 v6, v6, v7")
            A("v_lshl_add_u32 v5, v5, 9, s7")
            A(f"v_lshl_add_u32 v{VWQ}, v6, 4, v5")
            A(f"v_add_u32 v{VWQ+1}, 0x1c00, v{VWQ}")
        for t in range(8):
            A(f"s_xor_b32 s6, s{S_ROT}, {t}")
            A(f"s_lshl_b32 s{SK1+t}, s6, 14")
    XF = opt.get('xfirst', 0) and main
    if not XF: w1_setup()
    A("s_waitcnt lgkmcnt(0)")
    o = []
    if main:
        srd_from(o, SRD_X, 16, 0, N * 512); srd_from(o, SRD_W1, 26, 0, 131072)
    else:
        o += ["s_cmp_ge_u32 s4, 4", "s_cselect_b32 s6, s30, s24", "s_cselect_b32 s7, s31, s25"]
        srd_from(o, SRD_X, 6, 0, 131072); srd_from(o, SRD_W1, 32, 0, 131072)
    for t in o: A(t)
    xso = lambda j: f"s{S_XO + j // 4} offen offset:{(j % 4) * 1024}"
    for j in range(NL):
        if main: pre.append(VM(f"buffer_load_dwordx4 {vr(HP+4*j)}, v{VL16}, {sr(SRD_X)}, {xso(j)}", tag=('x', j)))
        else: pre.append(VM(f"buffer_load_dwordx4 {vr(HP+4*j)}, v{HP+4*j}, {sr(SRD_X)}, 0 offen", tag=('x', j)))
    if opt.get('xbar') and main: A("s_barrier")
    if XF:
        if not opt.get('skipst'): pre += stamp()
        if opt.get('cpf_fn'): opt['cpf_fn'](lambda t: pre.append(VM(t) if t.startswith('buffer') else V(t)))
        w1_setup()
    if F0 and not main: pre.append(VM(f"buffer_load_dwordx4 {vr(W0)}, v{W0}, {sr(SRD_X)}, 0 offen", tag='w0'))
    NCH = 16 if main else 8
    def dma(c, needs=()):
        srd, vw, so = (SRD_W1, VWQ, SK1 + c) if c < 8 else (SRD_W2, VWK, SK2 + c - 8)
        q = [V(f"s_add_u32 m0, s{S_M0}, 0x{(c % RC) * CH:x}", needs=needs), V("s_nop 0", cost=0)]
        for k in range(NPC):
            q.append(VM(f"buffer_load_dwordx4 v{vw+k}, {sr(srd)}, s{so} offen offset:{k*1024} lds", tag=('c', c) if k == NPC - 1 else None))
        return q
    NPRE = min(opt.get('npre', RC), RC)
    TCH = opt.get('touch', 0)
    if TCH and main:
        o = []; srd_from(o, SRD_W2, 28, 0, 131072)
        for t in o: A(t)
        A(f"s_sub_u32 s6, s5, {(opt.get('new', 32) + 8) // 8 * NW + 16}")
        A("s_lshl_b32 s7, s6, 13")
        A("s_cmp_lt_u32 s6, 16")
        A("s_cselect_b32 s7, s7, 0x7fff0000")
        pre.append(VM(f"buffer_load_dword v255, v10, {sr(SRD_W2)}, s7 offen"))
        if TCH > 1:
            A(f"s_sub_u32 s6, s6, 16")
            A("s_lshl_b32 s7, s6, 13")
            A("s_cmp_lt_u32 s6, 16")
            A("s_cselect_b32 s7, s7, 0x7fff0000")
            pre.append(VM(f"buffer_load_dword v255, v10, {sr(SRD_W1)}, s7 offen"))
    for c in range(NPRE): pre += dma(c)
    A("v_bfe_u32 v5, v2, 2, 3")
    A(f"v_xor_b32 v5, s{S_ROT}, v5")
    A("v_and_b32 v6, 3, v2")
    A("v_lshlrev_b32 v7, 10, v5")
    A("v_lshl_add_u32 v7, v6, 8, v7")
    A(f"v_add_u32 v7, 0x{HIMG:x}, v7")
    A("v_and_b32 v5, 1, v5")
    A("v_lshl_or_b32 v6, v5, 2, v6")
    A("v_lshrrev_b32 v5, 5, v2")
    A(f"s_mul_i32 s6, s{S_W}, {RPW}")
    for j in range(NL):
        A(f"v_add3_u32 v8, v5, s6, {2*j}")
        A("v_lshrrev_b32 v9, 4, v8")
        A("v_lshl_add_u32 v9, v9, 13, v7")
        A("v_and_b32 v8, 15, v8")
        A("v_xor_b32 v8, v8, v6")
        A(f"v_lshl_add_u32 v{VHW+j}, v8, 4, v9")
    A("v_xor_b32 v5, v3, v4")
    A("v_lshlrev_b32 v5, 4, v5")
    A("v_lshl_add_u32 v5, v4, 8, v5")
    A(f"v_add_u32 v{VH}, 0x{HIMG:x}, v5")
    A(f"v_xor_b32 v{VH+1}, 64, v{VH}")
    A("v_lshrrev_b32 v5, 2, v3")
    A("v_and_b32 v6, 3, v3")
    A("v_and_b32 v7, 1, v4")
    if NW == 4:
        A("v_lshlrev_b32 v7, 2, v7"); A("v_and_b32 v8, 2, v5"); A("v_or_b32 v7, v7, v8")
    else:
        A("v_lshlrev_b32 v7, 1, v7")
    A("v_lshl_add_u32 v8, v4, 3, v5")
    A(f"v_lshlrev_b32 v8, {RS.bit_length()-1}, v8")
    A(f"v_add_u32 v8, s{S_M0}, v8")
    if main:
        A("v_and_b32 v9, 1, v6"); A("v_lshl_add_u32 v8, v9, 3, v8")
        A("v_lshrrev_b32 v6, 1, v6")
    A("v_xor_b32 v6, v6, v7")
    for f in range(NF):
        if main:
            A(f"v_xor_b32 v9, {2*f}, v6"); A(f"v_lshl_add_u32 v{VTR+f}, v9, 4, v8")
        elif f % 2 == 0:
            A(f"v_xor_b32 v9, {2*f}, v6"); A(f"v_lshl_add_u32 v{VTR+f}, v9, 4, v8")
        else:
            A(f"v_add_u32 v{VTR+f}, 8, v{VTR+f-1}")
    o = []
    if main:
        A("v_lshrrev_b32 v5, 3, v2")
        A("v_and_b32 v6, 7, v2")
        A("v_lshrrev_b32 v7, 1, v5")
        A("v_xor_b32 v6, v6, v7")
        A("v_and_b32 v7, 4, v5")
        A("v_add_u32 v5, v5, v7")
        A(f"s_mul_i32 s6, s{S_W}, {CW*512}")
        A("v_lshl_add_u32 v5, v5, 9, s6")
        A(f"v_lshl_add_u32 v{VWK}, v6, 4, v5")
        A("v_xor_b32 v6, 4, v6")
        A(f"v_lshl_add_u32 v{VWK+1}, v6, 4, v5")
        A(f"v_add_u32 v{VWK+1}, 0x{16*512-1024:x}, v{VWK+1}")
        if NW == 4:
            A(f"v_mov_b32 v{VWK+2}, v{VWK}")
            A(f"v_mov_b32 v{VWK+3}, v{VWK+1}")
        A(f"s_lshr_b32 s7, s{S_ROT}, 1")
        for tp in range(4):
            A(f"s_xor_b32 s6, s7, {tp}")
            A(f"s_lshl_b32 s{SK2+2*tp}, s6, 7")
            A(f"s_add_u32 s{SK2+2*tp+1}, s{SK2+2*tp}, {(4 if NW == 8 else 32)*512}")
        A(f"s_and_b32 s6, s{S_ROT}, 1"); A("s_lshl_b32 s6, s6, 2")
        A("v_lshrrev_b32 v5, 1, v3")
        A("v_xor_b32 v5, v5, v4")
        A("v_xor_b32 v5, s6, v5")
        A(f"v_lshl_add_u32 v6, v3, 7, s{S_M0}")
        A(f"v_lshl_add_u32 v{VK}, v5, 4, v6")
        A(f"v_xor_b32 v{VK+1}, 64, v{VK}")
        A(f"s_mul_i32 s6, s{S_W}, {NF//2}")
        A(f"s_xor_b32 s6, s6, s{S_ROT}")
        A("s_lshl_b32 s6, s6, 10")
        A(f"s_add_u32 s6, s6, 0x{QIMG:x}")
        A("v_lshrrev_b32 v5, 1, v4"); A("v_and_b32 v6, 1, v4")
        A("v_lshl_add_u32 v5, v5, 8, s6")
        A("v_lshl_add_u32 v5, v6, 3, v5")
        A(f"v_lshl_add_u32 v{VQW}, v3, 4, v5")
        A(f"v_xor_b32 v{VQW+1}, 0x400, v{VQW}")
        A(f"v_add_u32 v{VQ}, 0x{QIMG:x}, v{VL16}")
        srd_from(o, SRD_W2, 26 if opt.get('w2same') else 28, 0, 131072)
        srd_from(o, SRD_O, 38, QF_OFF, QF_BYTES)
        srd_from(o, SRD_H, 38, H_OFF, NB16 * 8192)
        A(f"s_mul_i32 s6, s4, {NRB*8192}")
        A(f"s_mul_i32 s7, s{S_W}, {NF//2*1024}")
        A(f"s_add_u32 s{SO}, s6, s7")
        for b in range(1, NRB): A(f"s_add_u32 s{SO+b}, s{SO}, {b*8192}")
        qs = struct.unpack('<I', struct.pack('<f', math.log2(math.e) / 16))[0]
        A(f"s_mov_b32 s{S_SC}, 0x{qs:x}"); A(f"s_mov_b32 s{S_SC+1}, 0x{qs:x}")
        A(f"s_mov_b32 s{S_EPS}, 0x3727c5ac"); A(f"s_mov_b32 s{S_R256}, 0x3b800000"); A(f"s_mov_b32 s{S_MASK}, 0xffff0000")
    else:
        srd_from(o, SRD_O, 38, WF_OFF, 262144)
        A("s_lshr_b32 s6, s4, 2"); A("s_lshl_b32 s6, s6, 17")
        A("s_and_b32 s7, s4, 3"); A("s_lshl_b32 s7, s7, 12")
        A("s_add_u32 s6, s6, s7")
        A(f"s_mul_i32 s7, s{S_W}, {NF//2*16384}")
        A(f"s_add_u32 s{SO}, s6, s7")
        A(f"s_add_u32 s{SO+1}, s{SO}, 16384")
    for t in o: A(t)
    w0q = []
    if F0 and main:
        A("v_lshlrev_b32 v11, 4, v4")
        for t in range(8):
            w0q += [V(f"s_lshr_b32 s8, s{SK1+t}, 8"), VM(f"buffer_load_dwordx4 {w0r(t)}, v11, {sr(SRD_W2)}, s8 offen", tag=('w0', t))]
        if not opt.get('w0late'): pre += w0q; w0q = []
    pre += stamp()
    rest = [x for c in range(NPRE, min(RC, NCH)) for x in [dma(c)]]
    def more(force=False):
        if rest and (force or not opt.get('late')): pre.extend(rest.pop(0))
    if main:
        ln_block(pre, opt, NL, HP, LN0, more, stamp)
    else:
        if F0:
            A(f"s_mov_b32 s{S_MASK}, 0xffff0000")
            for k in range(4):
                pre.append(V(f"v_lshlrev_b32 v{W0+4+2*k}, 16, v{W0+k}", needs=['w0']))
                A(f"v_and_b32 v{W0+5+2*k}, s{S_MASK}, v{W0+k}")
            for j in range(NL):
                for k in range(4):
                    x = HP + 4 * j + k
                    pre.append(V(f"v_lshlrev_b32 v{W0}, 16, v{x}", needs=[('x', j)]))
                    A(f"v_and_b32 v{W0+1}, s{S_MASK}, v{x}")
                    A(f"v_sub_f32 v{W0}, v{W0}, v{W0+4+2*k}")
                    A(f"v_sub_f32 v{W0+1}, v{W0+1}, v{W0+5+2*k}")
                    A(f"v_cvt_pk_bf16_f32 v{x}, v{W0}, v{W0+1}")
        for j in range(NL):
            pre.append(LD(f"ds_write_b128 v{VHW+j}, {vr(HP+4*j)}", tag='hw', needs=[('x', j)]))
    pre += stamp()
    while rest and opt.get('late', 0) < 2: more(True)
    st = Stream(); st.pre = pre
    wf, bf = [], []
    wreg = lambda k: WR + (k % RW) * 4
    breg = lambda k: BR + (k % RB) * 4
    def use(lst, k, n):
        lst[k].setdefault('first', n); lst[k]['last'] = n
    def mf(acc, wk, bk, first):
        a, b = (wreg(wk), breg(bk)) if main else (breg(bk), wreg(wk))
        n = st.mfma(f"{MF32} {vr(acc)}, {vr(a)}, {vr(b)}, {0 if first else vr(acc)}", needs=[('w', wk), ('b', bk)])
        use(wf, wk, n); use(bf, bk, n); return n
    acc1 = lambda f, rb: ACC1 + (f * NRB + rb) * 4
    acc2 = lambda f, rb: ACC2 + (rb * NF + f) * 4
    done1, done2, done0 = {}, {}, {}
    for t in range(8):
        sl = (t % RC) * CH
        b0 = len(bf)
        for rb in range(NRB):
            bf.append(dict(reads=[f"ds_read_b128 {vr(breg(b0+rb))}, v{VH + (t & 1)} offset:{rb*8192 + t*1024}"], ph=0))
        for f in range(NF):
            k = len(wf); r = wreg(k)
            wf.append(dict(reads=[f"ds_read_b64_tr_b16 v[{r+2*hh}:{r+2*hh+1}], v{VTR+f} offset:{sl + hh*4*RS}" for hh in range(2)], chunk=t))
            for rb in range(NRB): done1[(f, rb)] = mf(acc1(f, rb), k, b0 + rb, t == 0)
    n1 = st.n()
    if main:
        for tp in range(4):
            b0 = len(bf)
            for e in range(2):
                for rb in range(NRB):
                    bf.append(dict(reads=[f"ds_read_b128 {vr(breg(b0+e*NRB+rb))}, v{VQ} offset:{rb*8192 + (2*tp+e)*1024}"], ph=1))
            for bh in range(2):
                c = 8 + 2 * tp + bh; sl = (c % RC) * CH
                for bl in range(NF // 2):
                    b = bh * (NF // 2) + bl
                    for e in range(2):
                        k = len(wf)
                        wf.append(dict(reads=[f"ds_read_b128 {vr(wreg(k))}, v{VK+e} offset:{sl + bl*2048}"], chunk=c))
                        for rb in range(NRB): done2[(b, rb)] = mf(acc2(b, rb), k, b0 + e * NRB + rb, tp == 0 and e == 0)
                        if F0 and b == 0:
                            for rb in range(NRB):
                                bk = b0 + e * NRB + rb
                                n = st.mfma(f"{MF32} {vr(AC0+4*rb)}, {w0r(2*tp+e)}, {vr(breg(bk))}, {0 if tp == 0 and e == 0 else vr(AC0+4*rb)}", needs=[('b', bk), ('w0', 2*tp+e)])
                                use(bf, bk, n); done0[rb] = n
    nm = st.n()
    LAG = opt.get('lag', 3); LA = opt.get('la', 2 * NRB)
    def place_w(lo, hi, g):
        for k in range(lo, hi):
            d = wf[k]
            g = max(g, d['first'] - LA - 1, wf[k - RW]['last'] if k >= RW else -1)
            for i, r in enumerate(d['reads']):
                st.put(g, LD(r, tag=('w', k) if i == len(d['reads']) - 1 else None, needs=[('c', d['chunk'])]))
            d['g'] = g
            if k % (2 * NF) == 0:
                for s in stamp(1): st.put(g, s)
        return g
    def place_b(lo, hi, g):
        for k in range(lo, hi):
            d = bf[k]
            g = max(g, d['first'] - LA - 1, bf[k - RB]['last'] if k >= RB else -1)
            st.put(g, LD(d['reads'][0], tag=('b', k)))
        return g
    nw1, nb1 = 8 * NF, 8 * NRB
    npw = min(opt.get('npw', NF), RW)
    place_w(0, npw, -1)
    if opt.get('st2'):
        for s in stamp(): st.put(-1, s)
    st.put(-1, W('hw')); st.put(-1, V("s_barrier"))
    for s in stamp(): st.put(-1, s)
    place_b(0, nb1, -1)
    gg = -1
    while rest:
        for x in rest.pop(0): st.put(gg, x)
        gg += opt.get('lpace', 2)
    g = place_w(npw, nw1, -1)
    if main:
        items = sorted(done1.items(), key=lambda kv: kv[1])
        for (f, rb), n in items:
            a = acc1(f, rb)
            q = [V(f"v_cvt_pk_bf16_f32 v{a}, v{a}, v{a+1}"), V(f"v_cvt_pk_bf16_f32 v{a+1}, v{a+2}, v{a+3}"),
                 LD(f"ds_write_b64 v{VQW + (f >> 1)}, v[{a}:{a+1}] offset:{rb*8192 + (f & 1)*512}", tag='qw')]
            for x in q: st.put(min(n + LAG, n1 - 1), x)
        k = nw1
        while k < len(wf) and k < nw1 + opt.get('npw2', NF) and wf[k - RW]['last'] <= n1 - 1: k += 1
        place_w(nw1, k, max(g, n1 - 1))
        for s in stamp(): st.put(n1 - 1, s)
        st.put(n1 - 1, W('qw')); st.put(n1 - 1, V("s_barrier"))
        for s in stamp(): st.put(n1 - 1, s)
        place_b(nb1, len(bf), n1 - 1)
        place_w(k, len(wf), n1 - 1)
    lastw = {}
    for k, d in enumerate(wf): lastw[d['chunk']] = k
    gl = 0
    for c in range(RC, NCH):
        k = lastw[c - RC]
        gl = wf[k]['first']
        firstk = min(kk for kk, d in enumerate(wf) if d['chunk'] == c)
        assert gl < wf[firstk]['g'], (c, gl, wf[firstk]['g'])
        for x in dma(c, [('w', k)]): st.put(gl, x)
    if w0q: st.fill(w0q, opt['w0late'])
    if main:
        hs = [VM(f"buffer_store_dwordx4 {vr(HP+4*j)}, v{VL16}, {sr(SRD_H)}, {xso(j)}{stx}") for j in range(NL)]
        if F0:
            hp = [V("v_and_b32 v5, 31, v2"), V("v_lshrrev_b32 v6, 5, v2"), V(f"s_lshr_b32 s6, s{S_XO}, 9"), V("v_cmp_eq_u32 vcc, 0, v5"),
                  V(f"s_sub_u32 s6, {N}, s6"), V("v_mov_b32 v7, 0x7fffffff"), V("v_cndmask_b32 v6, v7, v6, vcc")]
            for j in range(NL):
                x = HP + 4 * j
                hp += [V(f"v_cmp_gt_i32 vcc, s6, v6"), V(f"v_and_b32 v5, s{S_MASK}, v{x}"), V("v_or_b32 v5, 0x3f80, v5"), V(f"s_sub_u32 s6, s6, 2"),
                       V(f"v_cndmask_b32 v{x}, v{x}, v5, vcc")]
            st.fill(hp, 2)
        st.fill(hs, gl + 1)
        if F0:
            for rb in range(NRB): st.put(min(done0[rb] + LAG, nm - 1), V(f"v_mul_f32 v{AC0+4*rb}, -v{AC0+4*rb}, s{S_SC}"))
        items = sorted(((max(done2[(2 * u, rb)], done2[(2 * u + 1, rb)]), u, rb) for u in range(NF // 2) for rb in range(NRB)))
        for n, u, rb in items:
            a = acc2(2 * u, rb)
            if F0:
                q = [V(f"v_fma_f32 v{a+r}, v{a+r}, s{S_SC}, v{AC0+4*rb}") for r in range(8)]
            elif n + LAG < nm - 1 or opt.get('nopk', 0) >= 2:
                q = [V(f"v_mul_f32 v{a+r}, s{S_SC}, v{a+r}") for r in range(8)]
            else:
                q = [V(f"v_pk_mul_f32 {vr(a+2*r,2)}, {vr(a+2*r,2)}, {sr(S_SC,2)}") for r in range(4)]
            q += [V(f"v_cvt_pk_bf16_f32 v{a+r}, v{a+2*r}, v{a+2*r+1}") for r in range(4)]
            q.append(VM(f"buffer_store_dwordx4 {vr(a)}, v{VL16}, {sr(SRD_O)}, s{SO+rb} offen offset:{u*1024}{opt.get('stq', stx)}"))
            for x in q: st.put(min(n + LAG, nm - 1), x)
    else:
        items = sorted((max(done1[(f, 2 * tl)], done1[(f, 2 * tl + 1)]), f, tl) for f in range(NF) for tl in range(2))
        for n, f, tl in items:
            a = acc1(f, 2 * tl)
            q = [V(f"v_cvt_pk_bf16_f32 v{a+r}, v{a+2*r}, v{a+2*r+1}") for r in range(4)]
            q.append(VM(f"buffer_store_dwordx4 {vr(a)}, v{VL16}, {sr(SRD_O)}, s{SO + (f >> 1)} offen offset:{tl*2048 + (f & 1)*1024}{opt.get('stw', stx)}"))
            for x in q: st.put(min(n + LAG, nm - 1), x)
    for s in stamp(): st.put(nm - 1, s)
    em = Emitter()
    o = hazard.fix(em.emit(st.seq()))
    if opt.get('verbose'): print(role, st.stats(), "regs", p, "RC", RC, "lines", len(o))
    return o


def main_a(opt):
    NW, NRB = 8, 3
    RPW = 16 * NRB // NW; NL = RPW // 2
    stx = opt.get('st', '')
    HP = 40; ACC = HP + NL * 4; LN0 = ACC; WR = 100; BR = WR + 64; RB = 12; VN = BR + RB * 4; VP = VN + 2
    SRD_D, SRD_A = 44, 48
    nst = [0]
    def stamp(kind=0):
        if not opt.get('timing'): return []
        nst[0] += 1
        return [V(f"s_memtime s[{14+2*nst[0]}:{15+2*nst[0]}]", cost=0)]
    pre = []
    A = lambda t, **k: pre.append(V(t, **k))
    A(f"v_lshlrev_b32 v{VL16}, 4, v2")
    A(f"s_mul_i32 s6, s4, {NRB*8192}")
    A(f"s_mul_i32 s7, s{S_W}, {RPW*512}")
    A(f"s_add_u32 s{S_XO}, s6, s7")
    A(f"s_cmp_eq_u32 s{S_W}, 0")
    A("s_cselect_b32 s8, 0, 0x7fff0000")
    A("s_waitcnt lgkmcnt(0)")
    o = []; srd_from(o, SRD_X, 16, 0, N * 512); srd_from(o, SRD_D, 36, 0, 256)
    for t in o: A(t)
    xso = lambda j: f"s{S_XO} offen offset:{j * 1024}"
    for j in range(NL): pre.append(VM(f"buffer_load_dwordx4 {vr(HP+4*j)}, v{VL16}, {sr(SRD_X)}, {xso(j)}", tag=('x', j)))
    pre.append(VM(f"buffer_load_dword v{VN}, off, {sr(SRD_D)}, s8 sc1", tag='n'))
    A(f"s_lshl_b32 s7, s{S_W}, 14")
    for t in range(8):
        A(f"s_xor_b32 s9, s{S_ROT}, {t}")
        A("s_lshl_b32 s9, s9, 11")
        A(f"s_add_u32 s{SK1+t}, s9, s7")
    A("v_bfe_u32 v5, v2, 2, 3")
    A(f"v_xor_b32 v5, s{S_ROT}, v5")
    A("v_and_b32 v6, 3, v2")
    A("v_lshlrev_b32 v7, 10, v5")
    A("v_lshl_add_u32 v7, v6, 8, v7")
    A("v_and_b32 v5, 1, v5")
    A("v_lshl_or_b32 v6, v5, 2, v6")
    A("v_lshrrev_b32 v5, 5, v2")
    A(f"s_mul_i32 s9, s{S_W}, {RPW}")
    for j in range(NL):
        A(f"v_add3_u32 v8, v5, s9, {2*j}")
        A("v_lshrrev_b32 v9, 4, v8")
        A("v_lshl_add_u32 v9, v9, 13, v7")
        A("v_and_b32 v8, 15, v8")
        A("v_xor_b32 v8, v8, v6")
        A(f"v_lshl_add_u32 v{VHW+j}, v8, 4, v9")
    A("v_xor_b32 v5, v3, v4")
    A("v_lshlrev_b32 v5, 4, v5")
    A(f"v_lshl_add_u32 v{VH}, v4, 8, v5")
    A(f"v_xor_b32 v{VH+1}, 64, v{VH}")
    o = []
    srd_from(o, SRD_A, 38, AF_OFF, AF_BYTES); srd_from(o, SRD_O, 38, QF_OFF, QF_BYTES); srd_from(o, SRD_H, 38, H_OFF, NB16 * 8192)
    for t in o: A(t)
    A(f"s_lshl_b32 s7, s{S_W}, 10")
    A(f"s_add_u32 s{SO}, s6, s7")
    for b in range(1, NRB): A(f"s_add_u32 s{SO+b}, s{SO}, {b*8192}")
    A(f"s_mov_b32 s{S_EPS}, 0x3727c5ac"); A(f"s_mov_b32 s{S_R256}, 0x3b800000"); A(f"s_mov_b32 s{S_MASK}, 0xffff0000")
    A("s_and_b32 s10, s2, 31")
    A("s_lshl_b32 s10, s10, 9")
    A(f"s_add_u32 s10, s10, 0x{AFL:x}")
    A("v_lshlrev_b32 v11, 3, v2")
    A("v_and_b32 v12, 31, v2"); A("v_lshrrev_b32 v13, 5, v2"); A(f"s_lshr_b32 s11, s{S_XO}, 9"); A("v_cmp_eq_u32 vcc, 0, v12")
    A(f"s_sub_u32 s11, {N}, s11"); A("v_mov_b32 v12, 0x7fffffff"); A("v_cndmask_b32 v13, v12, v13, vcc")
    pre += stamp()
    ln_block(pre, opt, NL, HP, LN0, lambda: None, stamp)
    pre += stamp()
    A(f"s_cmp_lg_u32 s{S_W}, 0")
    A("s_cbranch_scc1 L1_go")
    A("s_mov_b32 s9, 0", needs=['n'])
    if opt.get('afirst'): A(f"s_sleep {opt['afirst']}")
    A("L1_poll:")
    A(f"buffer_load_dwordx2 v[{VP}:{VP+1}], v11, {sr(SRD_A)}, s10 offen sc1")
    A(f"v_cmp_eq_u32 vcc, 0, v{VN}")
    A("s_cbranch_vccz L1_poll2")
    A(f"buffer_load_dword v{VN}, off, {sr(SRD_D)}, 0 sc1")
    A("L1_poll2:")
    A("s_waitcnt vmcnt(0)")
    A(f"v_cmp_ne_u32 vcc, v{VP}, v{VN}")
    A(f"v_cmp_ne_u32 s[12:13], v{VP+1}, v{VN}")
    A(f"v_cmp_eq_u32 s[92:93], 0, v{VN}")
    A("s_or_b64 vcc, vcc, s[12:13]")
    A("s_or_b64 vcc, vcc, s[92:93]")
    A("s_cbranch_vccz L1_go")
    A("s_add_u32 s9, s9, 1")
    A(f"s_sleep {opt.get('asleep', 1)}")
    A("s_cmp_lt_u32 s9, 0x40000")
    A("s_cbranch_scc1 L1_poll")
    A("L1_go:")
    pre.append(W('hw')); A("s_barrier")
    pre += stamp()
    for k in range(16):
        pre.append(VM(f"buffer_load_dwordx4 {vr(WR+4*k)}, v{VL16}, {sr(SRD_A)}, s{SK1 + k // 2} offen offset:{(k & 1)*1024}{opt.get('ald', ' sc1')}", tag=('w', k)))
        if k == opt.get('bpos', 3):
            for n in range(RB): pre.append(('B', n))
    for j in range(NL):
        x = HP + 4 * j
        A("v_cmp_gt_i32 vcc, s11, v13"); A(f"v_and_b32 v5, s{S_MASK}, v{x}"); A("v_or_b32 v5, 0x3f80, v5"); A("s_sub_u32 s11, s11, 2")
        A(f"v_cndmask_b32 v{x}, v{x}, v5, vcc")
        pre.append(VM(f"buffer_store_dwordx4 {vr(x)}, v{VL16}, {sr(SRD_H)}, {xso(j)}{stx}"))
    breg = lambda n: BR + (n % RB) * 4
    rd = lambda n: LD(f"ds_read_b128 {vr(breg(n))}, v{VH + ((n // NRB) & 1)} offset:{(n % NRB)*8192 + (n // NRB)*1024}", tag=('b', n))
    pre = [rd(x[1]) if isinstance(x, tuple) else x for x in pre]
    acc = lambda f, rb: ACC + (rb * 2 + f) * 4
    for t in range(8):
        for f in range(2):
            for rb in range(NRB):
                n = t * NRB + rb
                pre.append(Ins(f"{MF32} {vr(acc(f, rb))}, {vr(WR + 4*(2*t+f))}, {vr(breg(n))}, {vr(acc(f, rb)) if t else 0}", 0, needs=[('w', 2*t+f), ('b', n)]))
                if f == 1 and n + RB < 8 * NRB: pre.append(rd(n + RB))
    pre += stamp()
    for rb in range(NRB):
        a = acc(0, rb)
        for r in range(4): pre.append(V(f"v_cvt_pk_bf16_f32 v{a+r}, v{a+2*r}, v{a+2*r+1}"))
        pre.append(VM(f"buffer_store_dwordx4 {vr(a)}, v{VL16}, {sr(SRD_O)}, s{SO+rb} offen{opt.get('stq', stx)}"))
    return hazard.fix(Emitter().emit(pre))


AK, AQ, A0 = 0x11000, 0x15000, 0x1d000
SA_K, SA_Q, SA_A, SA_D = 72, 76, 80, 84

def a_loads(o):
    A = o.append
    srd_from(o, SA_K, 28, 0, 131072); srd_from(o, SA_Q, 26, 0, 131072); srd_from(o, SA_D, 36, 0, 256)
    A(f"s_or_b32 s9, s4, s{S_W}")
    A("s_cmp_lg_u32 s9, 0")
    A("s_cbranch_scc1 L1_non")
    A("s_memrealtime s[88:89]")
    A("s_waitcnt lgkmcnt(0)")
    A("s_or_b32 s88, s88, 1")
    A("v_mov_b32 v105, s88")
    A("s_mov_b64 exec, 1")
    A(f"buffer_store_dword v105, off, {sr(SA_D)}, 0 sc1")
    A("s_mov_b64 exec, -1")
    A("L1_non:")
    A("v_lshrrev_b32 v12, 5, v2")
    A("v_and_b32 v13, 31, v2")
    A(f"s_lshr_b32 s9, s{S_W}, 1"); A("s_lshl_b32 s9, s9, 2")
    A("v_xor_b32 v14, v13, v12")
    A("v_xor_b32 v100, s9, v14")
    A("s_lshr_b32 s10, s4, 2"); A("s_lshl_b32 s10, s10, 3"); A(f"s_add_u32 s10, s10, s{S_W}"); A("s_lshl_b32 s10, s10, 11")
    A("v_lshl_add_u32 v15, v12, 9, s10")
    A("v_lshl_add_u32 v100, v100, 4, v15")
    A("v_xor_b32 v101, 32, v100")
    A(f"s_lshl_b32 s9, s{S_W}, 11"); A(f"s_add_u32 m0, s9, 0x{AK:x}")
    A(f"s_and_b32 s9, s{S_W}, 3"); A("s_lshl_b32 s9, s9, 2")
    for k in range(2): A(f"buffer_load_dwordx4 v{100+k}, {sr(SA_K)}, 0 offen offset:{k*1024} lds")
    A("v_xor_b32 v102, s9, v14")
    A("s_and_b32 s10, s4, 3"); A("s_lshl_b32 s10, s10, 3"); A(f"s_add_u32 s10, s10, s{S_W}"); A("s_lshl_b32 s10, s10, 12")
    A("v_lshl_add_u32 v15, v12, 9, s10")
    A("v_lshl_add_u32 v102, v102, 4, v15")
    A("v_xor_b32 v103, 32, v102")
    A(f"s_lshl_b32 s9, s{S_W}, 12"); A(f"s_add_u32 m0, s9, 0x{AQ:x}")
    A("v_lshlrev_b32 v104, 4, v13")
    for k in range(4): A(f"buffer_load_dwordx4 v{102 + (k & 1)}, {sr(SA_Q)}, 0 offen offset:{k*1024} lds")
    A(f"s_mov_b32 m0, 0x{A0:x}")
    A("s_mov_b32 exec_hi, 0")
    A(f"buffer_load_dwordx4 v104, {sr(SA_K)}, 0 offen lds")
    A("s_mov_b32 exec_hi, -1")
    srd_from(o, SA_A, 38, AF_OFF, AF_BYTES)


def a_compute(opt):
    q = []; A = lambda t, **k: q.append(V(t, **k))
    LK, LQ, L0, FR, AC = 106, 110, 114, 116, 180
    A(f"s_cmp_ge_u32 s{S_W}, 4")
    A("s_cbranch_scc1 L1_adone")
    A(f"buffer_load_dword v105, off, {sr(SA_D)}, 0 sc1")
    A("v_lshrrev_b32 v12, 2, v3")
    A("v_and_b32 v13, 3, v3")
    A("v_lshlrev_b32 v14, 12, v12")
    A("v_lshl_add_u32 v14, v13, 9, v14")
    A("v_lshl_add_u32 v14, v12, 6, v14")
    A("v_xor_b32 v13, v13, v4")
    A("v_lshl_add_u32 v14, v13, 4, v14")
    A(f"s_and_b32 s90, s{S_W}, 1"); A("s_lshl_b32 s91, s90, 11"); A(f"s_add_u32 s91, s91, 0x{AK:x}")
    A(f"s_lshr_b32 s92, s{S_W}, 1"); A("s_lshl_b32 s93, s92, 14"); A(f"s_add_u32 s93, s93, 0x{AQ:x}")
    A(f"v_lshlrev_b32 v{L0}, 4, v4")
    A(f"v_add_u32 v{L0}, 0x{A0:x}, v{L0}")
    for c in range(4):
        A(f"v_xor_b32 v15, 0x{c << 6:x}, v14")
        A(f"v_add_u32 v{LK+c}, s91, v15")
        A(f"v_add_u32 v{LQ+c}, s93, v15")
    fr = lambda c, k: FR + ((c % 4) * 4 + k) * 4
    def reads(c):
        q.append(LD(f"ds_read_b128 {vr(fr(c, 0))}, v{LK + (c & 3)} offset:{(c >> 2)*256}"))
        q.append(LD(f"ds_read_b128 {vr(fr(c, 1))}, v{L0} offset:{c*64}"))
        q.append(LD(f"ds_read_b128 {vr(fr(c, 2))}, v{LQ + (c & 3)} offset:{(c >> 2)*256}"))
        q.append(LD(f"ds_read_b128 {vr(fr(c, 3))}, v{LQ + (c & 3)} offset:{(c >> 2)*256 + 2048}", tag=c))
    for c in range(3): reads(c)
    A("s_lshr_b32 s91, s4, 2"); A("s_lshl_b32 s91, s91, 14"); A("s_and_b32 s93, s4, 3"); A("s_lshl_b32 s93, s93, 1"); A("s_add_u32 s93, s93, s92")
    A("s_lshl_b32 s93, s93, 11"); A("s_add_u32 s91, s91, s93"); A("s_lshl_b32 s90, s90, 10"); A("s_add_u32 s91, s91, s90")
    qs = struct.unpack('<I', struct.pack('<f', math.log2(math.e) / 16))[0]
    A(f"s_mov_b32 s90, 0x{qs:x}")
    A("v_lshlrev_b32 v15, 4, v2")
    for c in range(8):
        for u in range(2):
            for z in range(2):
                a = AC + z * 8 + u * 4
                q.append(Ins(f"{MF32} {vr(a)}, {vr(fr(c, 2 + u))}, {vr(fr(c, z))}, {vr(a) if c else 0}", 0, needs=[c]))
            if u == 0 and c + 3 < 8: reads(c + 3)
    for r in range(8): A(f"v_sub_f32 v{AC+r}, v{AC+r}, v{AC+8+r}")
    for r in range(8): A(f"v_mul_f32 v{AC+r}, s90, v{AC+r}")
    for r in range(4): A(f"v_cvt_pk_bf16_f32 v{AC+r}, v{AC+2*r}, v{AC+2*r+1}")
    A(f"buffer_store_dwordx4 {vr(AC)}, v15, {sr(SA_A)}, s91 offen sc1")
    A("L1_adone:")
    return Emitter().emit(q)


def a_flag(o):
    A = o.append
    A(f"s_cmp_ge_u32 s{S_W}, 4")
    A("s_cbranch_scc1 L1_fdone")
    A("s_lshl_b32 s90, s4, 2"); A(f"s_add_u32 s90, s90, s{S_W}"); A("s_lshl_b32 s90, s90, 2"); A(f"s_add_u32 s90, s90, 0x{AFL:x}")
    A("v_lshlrev_b32 v15, 9, v2")
    A("s_mov_b32 s91, 0")
    A("L1_fw:")
    A("s_waitcnt vmcnt(0)")
    A("v_cmp_ne_u32 vcc, 0, v105")
    A("s_cbranch_vccnz L1_fs")
    A(f"buffer_load_dword v105, off, {sr(SA_D)}, 0 sc1")
    A("s_add_u32 s91, s91, 1")
    A("s_cmp_lt_u32 s91, 0x40000")
    A("s_cbranch_scc1 L1_fw")
    A("L1_fs:")
    A("s_mov_b32 exec_hi, 0")
    A(f"buffer_store_dword v105, v15, {sr(SA_A)}, s90 offen sc1")
    A("s_mov_b32 exec_hi, -1")
    A("L1_fdone:")


def edge_prog(opt):
    NW = opt.get('nw', 8); NEW = opt.get('new', 32); ECAP = 163840 // NEW; CAPB = 4096 // NEW
    NTH = 64 * NW
    NQ = E // NEW // 4
    NR = (NQ + NTH - 1) // NTH; LASTN = NQ - (NR - 1) * NTH
    o = []; A = o.append
    L_CNT = 65536
    D0, S0, B0, C0 = 16, 16 + 4 * NR, 16 + 8 * NR, 16 + 12 * NR
    SRD_D, SRD_S, SRD_E, SRD_C = 40, 44, 48, 52
    A(f"s_mul_i32 s6, s4, {NQ * 16}")
    A("v_lshlrev_b32 v5, 4, v0")
    A("v_lshlrev_b32 v6, 2, v2")
    A(f"v_add_u32 v6, 0x{L_CNT:x}, v6")
    A("v_mov_b32 v7, 0")
    A("ds_write_b32 v6, v7")
    for i in range(NR): A(f"s_mov_b32 s{66+i}, {i * NTH * 16}")
    A("s_waitcnt lgkmcnt(0)")
    AM = opt.get('am', 0)
    if AM: a_loads(o)
    if opt.get('etouch'):
        A("s_lshr_b32 s9, s4, 3"); A("s_lshl_b32 s9, s9, 3"); A(f"s_add_u32 s9, s9, s{S_W}")
        A("s_cmp_lt_u32 s9, 16"); A("s_cselect_b32 s72, s28, s26"); A("s_cselect_b32 s73, s29, s27")
        A(f"s_cselect_b32 s74, 0x20000, {0x20000 if opt['etouch'] > 1 else 0}") if opt['etouch'] == 1 else A("s_mov_b32 s74, 0x20000")
        A("s_mov_b32 s75, 0x00020000"); A("s_and_b32 s9, s9, 15"); A("s_lshl_b32 s9, s9, 13")
        A("v_lshlrev_b32 v12, 7, v2")
        A("buffer_load_dword v13, v12, s[72:75], s9 offen")
    if opt.get('zfl', 1):
        srd_from(o, 56, 38, FL_OFF, FL_BYTES)
        A("s_cmp_eq_u32 s4, 0")
        A("s_cselect_b32 s9, 0, 0x7fff0000")
        for k in range(4): A(f"v_mov_b32 v{8+k}, 0")
        A(f"buffer_store_dwordx4 v[8:11], v5, {sr(56)}, s9 offen")
        if NW == 4: A("s_add_u32 s9, s9, 4096"); A(f"buffer_store_dwordx4 v[8:11], v5, {sr(56)}, s9 offen")
    srd_from(o, SRD_D, 20, 0, NQ * 16, 6)
    srd_from(o, SRD_S, 18, 0, NQ * 16, 6)
    for i in range(NR): A(f"buffer_load_dwordx4 {vr(D0+4*i)}, v5, {sr(SRD_D)}, s{66+i} offen")
    for i in range(NR): A(f"buffer_load_dwordx4 {vr(S0+4*i)}, v5, {sr(SRD_S)}, s{66+i} offen")
    srd_from(o, SRD_E, 38, EDGE_OFF, EDGE_BYTES)
    srd_from(o, SRD_C, 38, ECNT_OFF, NBK * NEW * 4)
    A(f"s_mov_b32 s9, {BMAGIC}")
    A(f"s_mov_b32 s10, {-BN & 0xffffffff}")
    if BN2: A(f"s_mov_b32 s14, {BMAGIC2}"); A(f"s_mov_b32 s15, {-BN2 & 0xffffffff}")
    A(f"s_mov_b32 s11, 0x{L_CNT:x}")
    A("v_mov_b32 v7, 1")
    A(f"v_cmp_gt_u32 vcc, 0x{LASTN:x}, v0")
    A("s_mov_b64 s[12:13], vcc")
    if AM: A(f"s_waitcnt vmcnt({2*NR})")
    A("s_barrier")
    est = lambda k: A(f"s_memtime s[{16+2*k}:{17+2*k}]") if opt.get('timing') else None
    est(0)
    if AM:
        o += a_compute(opt)
        est(1)
        if AM == 2: a_flag(o)
        est(2)
    for i in range(NR):
        A(f"s_waitcnt vmcnt({2*NR-1-i})")
        if i == NR - 1: A("s_mov_b64 exec, s[12:13]")
        for k in range(4):
            d, b, c = D0 + 4 * i + k, B0 + 4 * i + k, C0 + 4 * i + k
            A(f"v_mul_u32_u24 v{b}, s9, v{d}")
            A(f"v_lshrrev_b32 v{b}, {BSHIFT}, v{b}")
            if BN2:
                A(f"v_subrev_u32 v8, {BOFF}, v{d}")
                A(f"v_mul_i32_i24 v9, s14, v8")
                A(f"v_ashrrev_i32 v9, {BSHIFT}, v9")
                A(f"v_max_i32 v{b}, v{b}, v9")
            A(f"v_lshl_add_u32 v{c}, v{b}, 2, s11")
            A(f"ds_add_rtn_u32 v{c}, v{c}, v7")
            A(f"v_mad_i32_i24 v{d}, v{b}, s10, v{d}")
            if BN2:
                A(f"v_mad_i32_i24 v8, v{b}, s15, v8")
                A(f"v_max_i32 v{d}, v{d}, v8")
    A("s_mov_b64 exec, -1")
    for i in range(NR):
        A(f"s_waitcnt vmcnt({NR-1-i}) lgkmcnt({min(15, 4*(NR-1 if i == NR-1 else NR-2))})")
        if i == NR - 1: A("s_mov_b64 exec, s[12:13]")
        for k in range(4):
            d, s, b, c = D0 + 4 * i + k, S0 + 4 * i + k, B0 + 4 * i + k, C0 + 4 * i + k
            A(f"v_and_b32 v8, 0x{CAPB-1:x}, v{c}")
            A(f"v_lshl_or_b32 v{s}, v{d}, 18, v{s}")
            A(f"v_lshlrev_b32 v8, 2, v8")
            A(f"v_lshl_add_u32 v8, v{b}, {(CAPB*4).bit_length()-1}, v8")
            A(f"ds_write_b32 v8, v{s}")
    A("s_mov_b64 exec, -1")
    est(3)
    if AM == 1: a_flag(o)
    est(4)
    A("s_waitcnt lgkmcnt(0)")
    A("s_barrier")
    NC = 64 * CAPB * 4 // (NTH * 16)
    BPI = 1024 // (CAPB * 4)
    R0 = C0 + 4 * NR
    A("ds_read_b32 v8, v6")
    A(f"s_mul_i32 s6, s{S_W}, {NC*1024}")
    A("v_lshlrev_b32 v10, 4, v2")
    A("v_add_u32 v9, s6, v10")
    for k in range(NC): A(f"ds_read_b128 {vr(R0+4*k)}, v9 offset:{k*1024}")
    if BPI > 1:
        assert BPI == 2
        A("v_lshrrev_b32 v11, 5, v2")
        A(f"v_mul_u32_u24 v11, 0x{NEW*ECAP*4 - 512:x}, v11")
        A("v_add_u32 v10, v10, v11")
    A(f"s_mul_i32 s6, s{S_W}, {NC*BPI*NEW*ECAP*4}")
    A(f"s_mul_i32 s7, s4, {ECAP*4}")
    A("s_add_u32 s6, s6, s7")
    A(f"v_lshlrev_b32 v9, {(NEW*4).bit_length()-1}, v2")
    A("s_lshl_b32 s8, s4, 2")
    A(f"s_cmp_eq_u32 s{S_W}, 0")
    A("s_cselect_b32 s8, s8, 0x7fff0000")
    A(f"s_waitcnt lgkmcnt({NC})")
    A(f"buffer_store_dword v8, v9, {sr(SRD_C)}, s8 offen{opt.get('ste', '')}")
    A(f"v_cmp_lt_u32 vcc, 0x{CAPB:x}, v8")
    A("s_cbranch_vccnz L1_eslow")
    for k in range(NC):
        A(f"s_waitcnt lgkmcnt({NC-1-k})")
        A(f"buffer_store_dwordx4 {vr(R0+4*k)}, v10, {sr(SRD_E)}, s6 offen{opt.get('ste', '')}")
        A(f"s_add_u32 s6, s6, {BPI*NEW*ECAP*4}")
    if opt.get('tlbw'):
        srd_from(o, 72, 38, 0, 128 << 20); srd_from(o, 76, 34, 0, N * 512)
        A(f"v_lshlrev_b32 v12, 21, v2")
        A(f"s_lshl_b32 s9, s{S_W}, 18")
        A(f"buffer_load_dword v13, v12, {sr(72)}, s9 offen")
        A(f"v_lshlrev_b32 v12, 17, v2")
        A(f"buffer_load_dword v14, v12, {sr(76)}, 0 offen")
    A("s_branch L1_fin")
    A("L1_eslow:")
    A(f"s_mov_b32 s9, {NEW*ECAP*4}")
    for i in range(NR):
        for k in range(4):
            b, c = B0 + 4 * i + k, C0 + 4 * i + k
            A(f"v_mul_u32_u24 v{b}, s9, v{b}")
            A(f"v_lshl_add_u32 v{b}, v{c}, 2, v{b}")
    for i in range(NR):
        if i == NR - 1: A("s_mov_b64 exec, s[12:13]")
        for k in range(4):
            A(f"buffer_store_dword v{S0 + 4 * i + k}, v{B0 + 4 * i + k}, {sr(SRD_E)}, s7 offen")
    A("s_mov_b64 exec, -1")
    return hazard.fix(o)


def gen_k1(opt=None):
    opt = opt or {}
    NW = opt.get('nw', 8); NRB = opt.get('nrb', 3); NEW = opt.get('new', 32)
    NMAIN = (NB16 + NRB - 1) // NRB
    o = []
    A = o.append
    A("s_getpc_b64 s[56:57]")
    A("s_load_dwordx16 s[16:31], s[0:1], 0")
    A("s_load_dwordx8 s[32:39], s[0:1], 64")
    if opt.get('timing'):
        A("s_memtime s[100:101]")
    A(f"s_cmp_ge_u32 s2, {opt.get('nact', NMAIN) + NEW + 8}")
    A("s_cbranch_scc1 L1_end")
    A("v_lshrrev_b32 v1, 6, v0")
    A("v_and_b32 v2, 63, v0")
    A("s_lshr_b32 s3, s2, 3")
    A(f"v_readfirstlane_b32 s{S_W}, v1")
    def cpf(A):
        A(f"s_mul_i32 s5, s3, {NW}")
        A(f"s_add_u32 s5, s5, s{S_W}")
        if opt.get('cpf', 1):
            A("s_and_b32 s56, s56, 0xffffff00")
            A(f"s_mov_b32 s58, {opt.get('code_end', 'L1_end')}-k1_kernel")
            A("s_mov_b32 s59, 0x00020000")
            A("s_and_b32 s6, s5, 15")
            A("s_lshl_b32 s6, s6, 13")
            A("v_lshlrev_b32 v10, 7, v2")
            A("buffer_load_dword v255, v10, s[56:59], s6 offen")
        A("v_and_b32 v3, 15, v2")
        A("v_lshrrev_b32 v4, 4, v2")
        A(f"s_and_b32 s{S_ROT}, s3, {opt.get('rotm', 7)}")
    X2 = opt.get('xfirst', 0) == 2
    if X2: opt = dict(opt, cpf_fn=cpf)
    else: cpf(A)
    MF_ = opt.get('mainfirst', 0)
    if MF_:
        A("s_mov_b32 s4, s2")
        A(f"s_cmp_ge_u32 s2, {NMAIN}")
    else:
        A(f"s_sub_u32 s4, s2, {NEW + 8}")
        A(f"s_cmp_lt_u32 s2, {NEW + 8}")
    A("s_cbranch_scc1 L1_notq")
    A(f"s_mov_b32 s{S_ROLE}, 0")
    o += main_a(opt) if opt.get('am') else gemm_prog('q', opt)
    A("s_branch L1_fin")
    A("L1_notq:")
    if X2: cpf(A)
    if MF_:
        A(f"s_sub_u32 s4, s2, {NMAIN}")
        A(f"s_cmp_ge_u32 s2, {NMAIN + 8}")
    else:
        A(f"s_sub_u32 s4, s2, {NEW}")
        A(f"s_cmp_lt_u32 s2, {NEW}")
    A("s_cbranch_scc1 L1_edge")
    A(f"s_mov_b32 s{S_ROLE}, 1")
    o += gemm_prog('w', opt)
    A("s_branch L1_fin")
    A("L1_edge:")
    A(f"s_mov_b32 s{S_ROLE}, 4")
    A(f"s_sub_u32 s4, s2, {NMAIN + 8 if MF_ else 0}")
    o += edge_prog(opt)
    A("L1_fin:")
    if opt.get('diag_sleep'):
        for k in range(opt['diag_sleep']): A("s_sleep 36")
    if opt.get('timing'):
        A("s_memtime s[4:5]")
        A("s_waitcnt vmcnt(0)")
        A("s_memtime s[6:7]")
        A("s_waitcnt lgkmcnt(0)")
        for k in range(8):
            A(f"v_writelane_b32 v0, s{16+2*k}, {k}")
        A("v_writelane_b32 v0, s4, 8")
        A("v_writelane_b32 v0, s6, 9")
        A(f"v_subrev_u32 v0, s100, v0")
        A(f"v_writelane_b32 v0, s{S_ROLE}, 63")
        srd_from(o, 4, 34, 0, 1 << 20)
        A(f"s_mul_i32 s8, s2, {NW}")
        A(f"s_add_u32 s8, s8, s{S_W}")
        A(f"s_lshl_b32 s8, s8, 8")
        A(f"v_mbcnt_lo_u32_b32 v1, -1, 0")
        A(f"v_mbcnt_hi_u32_b32 v1, -1, v1")
        A(f"v_lshlrev_b32 v1, 2, v1")
        A(f"buffer_store_dword v0, v1, s[4:7], s8 offen")
    A("L1_end:")
    return "\n".join(o)


def kernel_desc(opt=None):
    opt = opt or {}
    NW = opt.get('nw', 8); NRB = opt.get('nrb', 3); NEW = opt.get('new', 32)
    return dict(name="k1_kernel", body=gen_k1(opt), vgpr=256 if NW == 8 else 512, accum=256, grid=(NB16 + NRB - 1) // NRB + NEW + 8, block=64 * NW, lds=K1_LDS)

if __name__ == "__main__":
    import sys, json
    t = gen_k1(dict(json.loads(sys.argv[1]) if len(sys.argv) > 1 else {}, verbose=1))
    e = hazard.check(t, "k1")
    print("\n".join(e[:30])); print(len(e), "hazards;", len(t.split("\n")), "lines")
    open('k1n.s', 'w').write(t)
```

```python
from layout import *
from sched import *
import gen_eg, hazard
import gen_fin as gen_fin1, gen_fin2, gen_fin3
gen_fin = gen_fin2

MF = "v_mfma_f32_16x16x32_bf16"
def Q(qb, ds): return (qb * 8 + ds) * 4
def PS(sl, qb): return 128 + sl * 16 + qb * 4
def S(h, qb): return 192 + h * 16 + qb * 4
RA, RB, RC = 224, 232, 240
VK, VTR, VDMA, VL16, VT0, VT1, VT2 = 248, [249, 250], 251, 252, 253, 254, 255
def O(fb, qb): return (fb * 4 + qb) * 4
SRD_Q, SRD_K, SRD_OP, SRD_ML = 8, 12, 20, 24
S_OFF, S_H, S_CNT, S_T, S_MASK, S_WAVE, S_SPL, S_QT, S_FIRST, S_NT = 28, 30, 31, 32, 33, 34, 37, 38, 39, 29
S_QO, S_ML, S_END, S_OWN = 40, 48, 49, 50


def foff(kb, c): return (c >> 1) * 4096 + kb * 2048 + (c & 1) * 512


def kgroup(h, d0, off, dst, vk=VK, chain=1):
    rd = [lambda r, u=u: f"ds_read_b128 {vr(r + 4 * u)}, v{vk} offset:{off + foff(h, d0 + u)}" for u in range(2)]
    od = [(qb, u) for qb in range(4) for u in range(2)] if chain else [(qb, u) for u in range(2) for qb in range(4)]
    mf = [lambda r, qb=qb, u=u: f"{MF} {vr(dst(qb))}, {vr(r + 4 * u)}, {vr(Q(qb, d0 + u))}, {vr(dst(qb)) if d0 + u else 0}" for qb, u in od]
    return dict(rd=rd, mf=mf)


def vgroup(frs, chain=1):
    rd = []
    for u, (fb, off, vt, _) in enumerate(frs):
        rd += [lambda r, u=u, kb=kb, fb=fb, off=off, vt=vt: f"ds_read_b64_tr_b16 v[{r+4*u+2*kb}:{r+4*u+2*kb+1}], v{vt[fb & 1]} offset:{off + foff(kb, fb >> 1)}" for kb in range(2)]
    same = frs[0][0] == frs[1][0] and chain
    od = [(qb, u) for qb in range(4) for u in range(2)] if same else [(qb, u) for u in range(2) for qb in range(4)]
    mf = [lambda r, qb=qb, u=u: f"{MF} {ar(O(frs[u][0], qb))}, {vr(r + 4 * u)}, {vr(frs[u][3](qb))}, {ar(O(frs[u][0], qb))}" for qb, u in od]
    return dict(rd=rd, mf=mf)


def kblock(h, off, dst, vk=VK, chain=1): return [kgroup(h, d, off, dst, vk, chain) for d in range(0, 8, 2)]


def build(groups, ring, nxt, opt, inflight=2):
    st = Stream()
    allg = list(groups) + list(nxt)
    for i, g in enumerate(groups):
        for m in g['mf']: st.mfma(m(ring[i]))
    em = Emitter()
    for i in range(min(inflight, len(allg))):
        em.cnt['lgkm'] += len(allg[i]['rd'])
        em.pos[('g', i)] = ('lgkm', em.cnt['lgkm'] - 1)
    for i in range(inflight, 2):
        for k, r in enumerate(allg[i]['rd']): st.put(-1, LD(r(ring[i]), tag=('g', i) if k == len(allg[i]['rd']) - 1 else None))
    st.put(-1, W(('g', 0)))
    rp = {2: opt.get('rpk', [0, 4]), 4: opt.get('rpv', [0, 2, 4, 6])}
    wp = opt.get('wp', 7)
    for i in range(len(groups)):
        j = i + 2
        if j < len(allg):
            rd = allg[j]['rd']
            late = groups[i].get('rlate', 0)
            for k, r in enumerate(rd):
                st.put(8 * i + max(rp[len(rd)][k], late), LD(r(ring[j]), tag=('g', j) if k == len(rd) - 1 else None))
        if i + 1 < len(groups): st.put(8 * i + wp, W(('g', i + 1)))
    return st, em


def place_sm(st, src, dst, h, g, ready=None, dead=None, cap=2, add=None, name=""):
    last = st.n() - 1
    def room(g, c):
        while g < last and st.used(g) + c > cap: g += 1
        return g
    def half(a, b):
        for x in range(a, min(b, last) + 1):
            if st.used(x) == cap - 1: return x
    end = g
    for qb in range(4):
        s = src(qb)
        if ready: g = max(g, ready(qb))
        if add:
            for r in range(4):
                g = room(g, 1); st.put(g, V(f"v_add_f32 v{s+r}, v{s+r}, v{add(qb)}"))
        ge = []
        for r in range(4):
            g = room(g, 2); st.put(g, V(f"v_exp_f32 v{s+r}, v{s+r}", cost=2)); ge.append(g)
        c = lambda u: V(f"v_cvt_pk_bf16_f32 v{dst(qb)+2*h+u}, v{s+2*u}, v{s+2*u+1}")
        g0 = half(ge[1] + 1, ge[3] + 2)
        if g0 is not None: st.put(g0, c(0))
        g1 = half(ge[3] + 1, ge[3] + 3)
        if g0 is None or g1 is None: g1 = room(min(ge[3] + 1, last), 2 if g0 is None else 1)
        if g1 == ge[3]: st.put(g1, V("s_nop 0"))
        if g0 is None: st.put(g1, c(0))
        st.put(g1, c(1))
        end = max(g1, g0 or 0)
        if dead: assert end <= dead(qb), (name, qb, end, dead(qb))
    return g, end


def dma(k, opt): return VM(f"buffer_load_dwordx4 v{VDMA}, s[{SRD_K}:{SRD_K+3}], s{S_OFF} offen offset:{k*1024}{opt.get('dl','')} lds")


def vfirst(p, n=2):
    return [vgroup([(fb, (2 * p + u) * 16384, VTR, lambda qb, u=u: PS(2 * p + u, qb)) for u in range(2)]) for fb in range(n)]


def body(p, opt):
    qc, pc = opt.get('qc', 1), opt.get('pc', 1)
    pv = lambda f0: [vgroup([(fb, (2 * p + u) * 16384, VTR, lambda qb, u=u: PS(2 * p + u, qb)) for u in range(2)], pc) for fb in range(f0, f0 + 4)]
    ko = [2, 3, 3, 0] if p == 0 else [0, 1, 1, 2]
    Sf = lambda h: (lambda qb: S(h, qb))
    gr = []
    for b in range(4):
        gr += pv(4 * b) + kblock(1 - b % 2, ko[b] * 16384, Sf(1 - b % 2), chain=qc)
    RD = PS(3 - 2 * p, 0)
    ring = [RA, RB, RC, RD] * 2 + [RA, RB, RC] * 8 + [RA, RB]
    st, em = build(gr, ring, vfirst(1 - p), opt)
    if p == 0: st.put(opt.get('gvk', 190), V(f"v_xor_b32 v{VK}, 0x10000, v{VK}"))
    else:
        for k in range(2): st.put(opt.get('gvt', 225) + 2 * k, V(f"v_xor_b32 v{VTR[k]}, 0x10000, v{VTR[k]}"))
    gb = opt.get('gbar', 71)
    gd = opt.get('gdma', [73, 81, 89, 97, 105, 113, 121, 129])
    assert gb < 80
    nb = sum(1 for x in gd if x < gb)
    assert nb <= 4 and gd[4] - gd[3] >= 3 and gd[0] >= 2 and gd[7] + 2 < 253 and gb not in gd
    if not opt.get('nobar'):
        st.put(gb, V(f"s_waitcnt vmcnt({nb})")); st.put(gb, V("s_barrier"))
    if not opt.get('nodma'):
        for t in range(2):
            mo = (1 + 2 * p + t) % 4
            if mo == 0: st.put(gd[3] + 1, V(f"s_xor_b32 s{S_H}, s{S_H}, 0x10000"))
            st.put(gd[4 * t] - 2, V(f"s_add_u32 m0, s{S_H}, 0x{mo * 0x4000:x}"))
            for k in range(4): st.put(gd[4 * t + k], dma(k, opt))
            st.put(gd[4 * t + 3] + 2, V(f"s_add_u32 s{S_OFF}, s{S_OFF}, 0x4000"))
    st.put(opt.get('gcnt', 253), V(f"s_sub_u32 s{S_CNT}, s{S_CNT}, 1"))
    if opt.get('valu', 1):
        nP = 2 - 2 * p
        g0 = opt.get('g0', [3, 67, 131, 195])
        for b, (h, sl) in enumerate([(0, nP), (1, nP), (0, nP + 1), (1, nP + 1)]):
            _, e = place_sm(st, lambda qb: S(h, qb), lambda qb: PS(sl, qb), h, g0[b], ready=lambda qb: 64 * b - 1 + 2 * qb,
                            dead=lambda qb: min(64 * b + 95 + 2 * qb, 254), name="body")
            if opt.get('verbose'): print("body", p, "sm", b, "end", e)
    if opt.get('verbose'): print(st.stats(), [(g, st.used(g)) for g in range(st.n()) if st.used(g) > 2])
    return em.emit(st.seq())


def ml_st(reg, qb, off, opt):
    return [f"s_xor_b32 s35, s{S_ML}, {qb*1024}", f"buffer_store_dword v{reg}, v{VT0}, s[{SRD_ML}:{SRD_ML+3}], s35 offen offset:{off}{opt.get('st','')}"]


def ml_l(opt):
    o = []
    l = S(0, 0)
    for qb in range(4): o.append(f"v_accvgpr_read_b32 v{l+qb}, a{O(0,qb)}")
    o.append(f"v_lshlrev_b32 v{VT0}, 2, v{VL16}")
    for qb in range(4): o.append(f"v_subrev_u32 v{l+4+qb}, 0x0d800000, v{l+qb}")
    o.append(f"v_max3_u32 v{VT1}, v{l+4}, v{l+5}, v{l+6}")
    o.append(f"v_max_u32 v{VT1}, v{VT1}, v{l+7}")
    x = ["s_mov_b64 exec, 0xffff"]
    for qb in range(4): x += ml_st(l + qb, qb, 4, opt)
    x.append(f"v_cmp_le_u32 vcc, 0x64000000, v{VT1}")
    x.append("s_mov_b64 exec, -1")
    return o, x


def tail(p, T, opt):
    qc, pc = opt.get('qc', 1), opt.get('pc', 1)
    VO = [Q(0, 3), Q(0, 3) + 1]
    VSP = VT2
    assert 4 <= T <= 7
    nsp = max(0, T - 5)
    def ploc(k, final=True):
        if k == T - 1 and T >= 5: return lambda qb: Q(qb, 0)
        if k < nsp and final: return lambda qb: Q(qb, 1 + k)
        return lambda qb: PS((2 * p + k) % 4, qb)
    def vf(k, fb):
        i = 2 * p + k
        return (fb, (i % 4) * 16384, VO if i // 4 % 2 else VTR, ploc(k))
    gr = vfirst(p)
    blocks = [(2, 1)] + [(k, h) for k in range(3, T) for h in range(2)]
    HALF = opt.get('half') and T == 7
    if HALF: blocks.pop()
    tog = None
    for k, h in blocks:
        i = 2 * p + k
        if i == 4 + 4 * p and h == 0: tog = len(gr)
        gr += kblock(h, (i % 4) * 16384, lambda qb, h=h: S(h, qb), chain=qc)
    G = 8 * len(gr)
    early, late = [], []
    for t in range(8):
        e, l = [], []
        for fb in (2 * t, 2 * t + 1):
            for k in range(0, T - 1, 2):
                if k == 0 and fb < 2: continue
                (l if k + 1 == T - 1 else e).append([(k, fb), (k + 1, fb)])
        if T % 2: l.append([(T - 1, 2 * t), (T - 1, 2 * t + 1)])
        early.append(e); late.append(l)
    order = []; lead = opt.get("lead", 52) + 8 * bool(HALF); t = 0
    while 8 * len(order) < lead:
        while not early[t]: t += 1
        order.append(early[t].pop(0))
    glast = G + 8 * len(order)
    for t in range(8):
        r = early[t] + late[t]
        if opt.get('fo', 1): r.sort(key=lambda g: g[0][1] + g[1][1])
        order += r
    done = {}; doneq = {}
    for i, g in enumerate(order):
        for u, (k, fb) in enumerate(g):
            done[fb] = G + 8 * i + 7
            for qb in range(4): doneq[(fb, qb)] = G + 8 * i + (2 * qb + 1 if g[0][1] == g[1][1] and pc else 4 * u + qb)
    gr += [vgroup([vf(k, fb) for k, fb in g], pc) for g in order]
    ring = ([RA, RB, RC] * 40)[:len(gr)]
    st, em = build(gr, ring, [], dict(opt, rpv=opt.get('trpv', [0, 0, 4, 4]), rpk=opt.get('trpk', [0, 4])))
    nm = st.n()
    if opt.get('timing') == 1:
        for i, gg in enumerate([30, 47, 111, G - 1, glast, (glast + nm) // 2, nm - 20]):
            st.put(gg, V(f"s_memtime s[{74+2*i}:{75+2*i}]", cost=0))
    gb = 8 * 4 - 1
    FUSE = opt.get('fuse', 0)
    st.put(gb, V(f"s_waitcnt vmcnt({[0, 2, 1, 1][FUSE]})")); st.put(gb, V("s_barrier"))
    HP = FUSE >= 2 and opt.get('hp', 2)
    PC = (T == 6 and p == 1) or (FUSE == 3 and T in (5, 6))
    if HP:
        i0 = (2 * p + 6) % 8
        st.put(gb + 2, V(f"s_and_b32 s{gen_fin.S_HB}, s{S_H}, 0x10000"))
        st.put(gb + 3, V(f"s_xor_b32 s{gen_fin.S_HB}, s{gen_fin.S_HB}, 0x{0x10000 if p else 0x8000:x}"))
        if not PC: st.put(gb + 4, V(f"s_mov_b32 s{gen_fin.S_SIDE}, 0"))
    elif FUSE == 2: st.put(gb + 4, V(f"s_mov_b32 s{gen_fin.S_SIDE}, 0")); st.put(gb + 2, V(f"s_mov_b32 s{gen_fin.S_HB}, 0"))
    elif FUSE:
        st.put(glast - 1, V("s_waitcnt vmcnt(0)")); st.put(glast - 1, V(f"v_readfirstlane_b32 s{gen_fin.S_SIDE}, v{VT1}")); st.put(glast, V(f"s_lshl_b32 s{gen_fin.S_WB}, s{S_WAVE}, 15"))
    lateq = []
    for t in range(T - 5):
        mo = (1 + 2 * p + t) % 4
        if mo == 0: lateq.append(V(f"s_xor_b32 s{S_H}, s{S_H}, 0x10000"))
        lateq += [V(f"s_add_u32 m0, s{S_H}, 0x{mo * 0x4000:x}"), 1]
        if HALF and t == T - 6:
            lateq += [V(f"v_lshrrev_b32 v{VT1}, 1, v{VDMA}"), V(f"v_and_b32 v{VT1}, 0x1800, v{VT1}"), V(f"s_movk_i32 s35, 0x3ff"), V(f"v_and_or_b32 v{VT1}, v{VDMA}, s35, v{VT1}"),
                      V(f"s_add_u32 s35, s{S_OFF}, 6144")]
            for k in range(4): lateq += [V(dma(k, opt).t.replace(f"v{VDMA},", f"v{VT1},").replace(f"s{S_OFF} ", "s35 " if k >= 2 else f"s{S_OFF} ")), 2]
            continue
        for k in range(4): lateq += [V(dma(k, opt).t), 2]
        lateq.append(V(f"s_add_u32 s{S_OFF}, s{S_OFF}, 0x4000"))
    spq = []
    if T > 5:
        st.put(159, V("s_waitcnt vmcnt(0)")); st.put(159, V("s_barrier"))
    if tog is not None: st.put(8 * (tog - 2) - 1, V(f"v_xor_b32 v{VK}, 0x10000, v{VK}"))
    GL = G - 32
    if 2 * p + T - 1 >= 4:
        for k in range(2): st.put(GL + 12 + k, V(f"v_xor_b32 v{VO[k]}, 0x10000, v{VTR[k]}"))
    if nsp or PC:
        st.put(1, V(f"s_lshl_b32 s36, s{S_WAVE}, 13")); st.put(3, V(f"s_add_u32 s36, s36, 0x20000")); st.put(5, V(f"v_add_u32 v{VSP}, s36, v{VL16}"))
        for k in range(nsp):
            for qb in range(4):
                spq += [LD(f"ds_write_b128 v{VSP}, {vr(ploc(k, False)(qb))} offset:{k*4096 + qb*1024}"), 1]
                st.put(GL + 10 + 8 * k + 4 * (qb >> 1), LD(f"ds_read_b128 {vr(ploc(k)(qb))}, v{VSP} offset:{k*4096 + qb*1024}", tag='rl'))
        if nsp: st.put(G - 1, W('rl'))
    if FUSE:
        e0 = st.fill([V(x, cost=1 + x.count('\n')) for x in gen_fin.tail_entry(S_WAVE, VL16, VT0, VT1)], 0, 24)
        assert e0 < 24
    sms = [(k, h) for k in range(2, T) for h in range(2)]
    if HALF:
        sms.pop()
    g = 3
    for i, (k, h) in enumerate(sms):
        rdy = lambda qb: 16 + 32 * i - 1 + 2 * qb if not (T >= 5 and i == len(sms) - 2 and not HALF) else 16 + 32 * i + 1 + 2 * qb
        dd = lambda qb: 16 + 32 * (i + 1) - 1 + 2 * qb if i < len(sms) - 2 else glast - 2
        g, e = place_sm(st, lambda qb: S(h, qb), ploc(k, False), h, g, ready=rdy if i else None, dead=dd, cap=opt.get('tcap', 2), name="tail")
        if opt.get('verbose'): print("tail", p, T, "sm", k, h, "end", e, "of", dd(3))
    if HALF: assert st.fill([V(f"v_mov_b32 v{Q(qb,0)+2+u}, 0") for qb in range(4) for u in range(2)], GL + 9, glast - 2) < glast - 2
    e1 = st.fill(lateq, 32, 100) if lateq else 0
    e2 = st.fill(spq, 8, 140) if spq else 0
    mk = lambda l: [x if isinstance(x, int) else V(x, cost=1 + x.count('\n')) for x in l]
    if HP and PC:
        gx = 160 if T > 5 else 112
        if T == 5: st.put(gx - 1, V("s_waitcnt vmcnt(0)"))
        e3 = st.fill(mk(gen_fin.x_tail(S_WAVE, S_SPL, S_QT, VL16, VT0, VT1) if FUSE == 2 else gen_fin.x_tail(S_WAVE, VL16, VT0, VT1)), gx, glast - 2, cap=opt.get('hcap', 3))
        assert e3 < glast - 2
        if opt.get('verbose'): print("  x prefetch end", e3)
    assert e1 < 100 and e2 < 140
    if opt.get('verbose'): print("  late dma end", e1, "spill end", e2)
    g = glast
    ccap = opt.get('ccap', 3) if T > 5 else opt.get('ccap5', 3)
    a, x = ml_l(opt)
    g = st.fill([V(y) for y in a] + [V("\n".join(x), cost=3)], max(g, done[0] + 5), nm - 1, cap=opt.get('mle', 3))
    lat = opt.get('clat', 5); cend = {}; gml = g
    for t in range(8):
        cc = ccap[t] if isinstance(ccap, list) else ccap
        for u in range(2):
            for qb in range(4):
                stg = Q(qb, 4 + t % 4)
                tmp = [S(0, 0) + qb * 8 + r for r in range(8)]
                q = [V(f"v_accvgpr_read_b32 v{tmp[4*u+k]}, a{O(2*t+u,qb)+k}") for k in range(4)]
                q += [V(f"v_cvt_pk_bf16_f32 v{stg+2*u+r}, v{tmp[4*u+2*r]}, v{tmp[4*u+2*r+1]}") for r in range(2)]
                so = S_QO + qb if t < 4 else S_QO + 4 + qb
                stx = opt.get('st', '') if 4 * t + qb < opt.get('plainx', 32) else ''
                if u: q.append(V(f"buffer_store_dwordx4 {vr(stg)}, v{VL16}, s[{SRD_OP}:{SRD_OP+3}], s{so} offen offset:{(t%4)*1024}{stx}"))
                if u and FUSE == 3 and PC and qb == 0 and t < 4: q.append(LD(f"ds_write_b128 v{VSP}, {vr(stg)} offset:{t*1024}"))
                g = st.fill(q, min(max(g, doneq[(2*t+u, qb)] + lat), nm - 1), nm - 1, cap=cc if doneq[(2*t+u, qb)] < nm - 24 else opt.get('lcap', 4))
        cend[t] = g
        if opt.get('verbose'): print("  conv", t, g, "of", nm)
    gw = 0
    for t in range(1, 2 * opt.get('tw', 3) if FUSE else 0, 2):
        wq = []
        for k in range(16):
            x, y = gen_fin.wload(t // 4, (t // 2) & 1, k >> 1, k & 1, 35, VL16)
            wq += ([V(x)] if k % 4 == 0 else []) + [V(y), opt.get('wsp', 2)]
        gw = st.fill(wq, min(max(gw, cend[t] + 1), nm - 1), nm - 1, cap=opt.get('wcap', 3))
        if opt.get('verbose'): print("  W loads end", gw)
    if HP == 2 and T == 6 and p == 1 and FUSE == 3 and opt.get('ht'):
        gp = opt['ht']; gc = gp + opt.get('htl', 100)
        assert gp > gml or gc + 40 < glast
        ha, hb = gen_fin.hl_tail(S_WAVE, VL16, VT0, VT1)
        assert st.fill(mk(ha), e3 + 1, gp, cap=3) < gp
        st.fill(mk(gen_fin.side_poll(VT1)), gp, nm - 1, cap=3)
        st.put(gc, V("WAIT_SIDE"))
        e4 = st.fill([V(f"v_readfirstlane_b32 s{gen_fin.S_SIDE}, v{VT1}"), 1] + mk(hb), gc, nm - 1, cap=3)
        assert e4 < nm - 1 and (gp > gml or e4 < glast)
        if opt.get('verbose'): print("  HL prefetch", gp, gc, e4)
        seq = st.seq()
        k = max(i for i, x in enumerate(seq) if x.t and x.t.endswith("s33 sc1"))
        k2 = [i for i, x in enumerate(seq) if x.t == "WAIT_SIDE"][0]
        seq[k2].t = "s_waitcnt vmcnt(%d)" % sum(x.t.count("buffer_") for x in seq[k + 1:k2] if x.t)
    elif HP == 2 and PC:
        gp = nm - opt.get('gpoll', 130)
        gp = st.fill(mk((gen_fin.d_tail(S_SPL, S_QT, VL16, VT0) if FUSE == 2 else []) + gen_fin.side_poll(VT1)), gp, nm - 1, cap=3)
        seq = st.seq()
        k = max(i for i, x in enumerate(seq) if x.t and x.t.endswith("s33 sc1"))
        n = sum(1 for x in seq[k + 1:] if x.t and x.t.startswith("buffer_"))
        st.put(nm - 1, V(f"s_waitcnt vmcnt({n})")); st.put(nm - 1, V(f"v_readfirstlane_b32 s{gen_fin.S_SIDE}, v{VT1}"))
    return hazard.fix(em.emit(st.seq()))


def lds_addrs(A):
    L = VL16
    A(f"v_bfe_u32 v{VK}, v{L}, 4, 3")
    A(f"v_lshlrev_b32 v{VK}, 6, v{VK}")
    A(f"v_bfe_u32 v{VT0}, v{L}, 7, 1")
    A(f"v_lshl_or_b32 v{VK}, v{VT0}, 10, v{VK}")
    A(f"v_bfe_u32 v{VT0}, v{L}, 8, 2")
    A(f"v_lshl_or_b32 v{VK}, v{VT0}, 4, v{VK}")
    A(f"v_bfe_u32 v{VT0}, v{L}, 6, 1")
    A(f"v_lshlrev_b32 v{VT0}, 5, v{VT0}")
    A(f"v_xor_b32 v{VK}, v{VK}, v{VT0}")
    A(f"v_and_b32 v{VTR[0]}, 0x1c0, v{L}")
    A(f"v_bfe_u32 v{VT0}, v{L}, 9, 1")
    A(f"v_lshl_or_b32 v{VTR[0]}, v{VT0}, 10, v{VTR[0]}")
    A(f"v_bfe_u32 v{VT0}, v{L}, 8, 1")
    A(f"v_lshl_or_b32 v{VTR[0]}, v{VT0}, 5, v{VTR[0]}")
    A(f"v_bfe_u32 v{VT0}, v{L}, 4, 2")
    A(f"v_lshl_or_b32 v{VTR[0]}, v{VT0}, 3, v{VTR[0]}")
    A(f"v_xor_b32 v{VTR[1]}, 32, v{VTR[0]}")


def light(o, opt, nm, LB0, NS, nq, end=lambda o: o.append('s_branch L2_fin')):
    A = o.append
    QL = lambda ds: ds * 4
    KFr = lambda h, ds: 32 + (h * 8 + ds) * 4
    VFr = lambda fb: 96 + fb * 4
    SL = [160, 164]; PL = 168; MM, LL, FF, T0, T1 = 172, 173, 174, 175, 176
    AK, AV0, AV1, ODD = 177, 178, 179, 188
    TM = 180; MK = 192
    S_N, S_SL, S_DS, S_X, S_NQ, S_B, S_E, S_O = 51, 52, 53, 54, 55, 56, 57, 58
    A(f"s_mov_b32 s{S_B}, {LB0}")
    A(f"s_add_u32 s{S_E}, s{S_B}, {NS * 0x4000}")
    A(f"s_mov_b32 s{S_NQ}, {nq}")
    A(f"v_bfe_i32 v{ODD}, v{VL16}, 8, 1")
    A(f"{nm}_q:")
    A(f"s_add_u32 s44, s{S_QO}, 4096")
    for ds in range(8):
        A(f"buffer_load_dwordx4 {vr(QL(ds))}, v{VL16}, s[{SRD_Q}:{SRD_Q+3}], s{S_QO if ds < 4 else 44} offen offset:{(ds%4)*1024}")
    def dm():
        for w in range(4):
            A(f"s_add_u32 m0, s{S_DS}, {w*4096}")
            A(f"s_add_u32 s{S_X}, s{S_O}, {w*128}")
            for k in range(4):
                A(f"buffer_load_dwordx4 v{VDMA}, s[{SRD_K}:{SRD_K+3}], s{S_X} offen offset:{k*1024} lds")
        A(f"s_add_u32 s{S_DS}, s{S_DS}, 0x4000")
        A(f"s_cmp_eq_u32 s{S_DS}, s{S_E}")
        A(f"s_cselect_b32 s{S_DS}, s{S_B}, s{S_DS}")
        A(f"s_add_u32 s{S_O}, s{S_O}, 0x4000")
    A(f"s_mov_b32 s{S_DS}, s{S_B}")
    A(f"s_mov_b32 s{S_O}, s{S_FIRST}")
    for i in range(NS - 1): dm()
    A(f"s_mov_b32 s{S_N}, s{S_NT}")
    A(f"s_mov_b32 s{S_SL}, s{S_B}")
    A(f"v_mov_b32 v{MM}, 0xff800000")
    for r in range(64): A(f"v_accvgpr_write_b32 a{r}, 0")
    if opt.get('eal') is not None: A(".p2align 6")
    A(f"{nm}_loop:")
    dm()
    A(f"v_add_u32 v{AK}, s{S_SL}, v{VK}")
    A(f"v_add_u32 v{AV0}, s{S_SL}, v{VTR[0]}")
    A(f"v_add_u32 v{AV1}, s{S_SL}, v{VTR[1]}")
    A(f"s_add_u32 s{S_SL}, s{S_SL}, 0x4000")
    A(f"s_cmp_eq_u32 s{S_SL}, s{S_E}")
    A(f"s_cselect_b32 s{S_SL}, s{S_B}, s{S_SL}")
    A(f"s_cmp_eq_u32 s{S_N}, 1")
    A(f"s_cselect_b32 s{S_X}, s{S_MASK}, 0")
    for r in range(4): A(f"v_and_b32 v{MK+r}, s{S_X}, v{ODD}")
    A(f"s_waitcnt vmcnt({16 * (NS - 1)})")
    for ds in range(8):
        for h in range(2):
            A(f"ds_read_b128 {vr(KFr(h, ds))}, v{AK} offset:{foff(h, ds)}")
    for ds in range(8):
        A(f"s_waitcnt lgkmcnt({14 - 2*ds})")
        for h in range(2):
            A(f"{MF} {vr(SL[h])}, {vr(KFr(h, ds))}, {vr(QL(ds))}, {vr(SL[h]) if ds else vr(MK)}")
    for fb in range(16):
        for kb in range(2):
            A(f"ds_read_b64_tr_b16 v[{VFr(fb)+2*kb}:{VFr(fb)+2*kb+1}], v{AV1 if fb & 1 else AV0} offset:{foff(kb, fb >> 1)}")
    A("s_nop 7")
    A(f"v_max3_f32 v{T0}, v{SL[0]}, v{SL[0]+1}, v{SL[0]+2}")
    A(f"v_max3_f32 v{T0}, v{T0}, v{SL[0]+3}, v{SL[1]}")
    A(f"v_max3_f32 v{T0}, v{T0}, v{SL[1]+1}, v{SL[1]+2}")
    A(f"v_max3_f32 v{T0}, v{T0}, v{SL[1]+3}, v{MM}")
    for sw in ("v_permlane32_swap_b32", "v_permlane16_swap_b32"):
        A(f"v_mov_b32 v{T1}, v{T0}")
        A("s_nop 1")
        A(f"{sw} v{T0}, v{T1}")
        A("s_nop 1")
        A(f"v_max_f32 v{T0}, v{T0}, v{T1}")
    A(f"v_sub_f32 v{FF}, v{MM}, v{T0}")
    A(f"v_exp_f32 v{FF}, v{FF}")
    A(f"v_mov_b32 v{MM}, v{T0}")
    for r in range(8): A(f"v_sub_f32 v{SL[0]+r}, v{SL[0]+r}, v{MM}")
    for r in range(8): A(f"v_exp_f32 v{SL[0]+r}, v{SL[0]+r}")
    A(f"v_cmp_neq_f32 vcc, 1.0, v{FF}")
    for r in range(4): A(f"v_cvt_pk_bf16_f32 v{PL+r}, v{SL[0]+2*r}, v{SL[0]+2*r+1}")
    A(f"s_cbranch_vccz {nm}_nors")
    for c in range(8):
        for r in range(8): A(f"v_accvgpr_read_b32 v{TM+r}, a{8*c+r}")
        for r in range(8): A(f"v_mul_f32 v{TM+r}, v{TM+r}, v{FF}")
        for r in range(8): A(f"v_accvgpr_write_b32 a{8*c+r}, v{TM+r}")
    A(f"{nm}_nors:")
    A("s_waitcnt lgkmcnt(0)")
    A("s_nop 1")
    for fb in range(16):
        A(f"{MF} {ar(fb*4)}, {vr(VFr(fb))}, {vr(PL)}, {ar(fb*4)}")
    A(f"s_sub_u32 s{S_N}, s{S_N}, 1")
    A(f"s_cmp_lg_u32 s{S_N}, 0")
    A(f"s_cbranch_scc1 {nm}_loop")
    A("s_nop 15")
    A(f"v_accvgpr_read_b32 v{LL}, a0")
    for t in range(8):
        for r in range(8): A(f"v_accvgpr_read_b32 v{TM+r}, a{8*t+r}")
        for r in range(4): A(f"v_cvt_pk_bf16_f32 v{32+4*t+r}, v{TM+2*r}, v{TM+2*r+1}")
        A(f"buffer_store_dwordx4 {vr(32+4*t)}, v{VL16}, s[{SRD_OP}:{SRD_OP+3}], s{S_QO if t < 4 else 44} offen offset:{(t%4)*1024}{opt.get('st','')}")
    A(f"v_lshlrev_b32 v{T0}, 2, v{VL16}")
    A("s_mov_b64 exec, 0xffff")
    A(f"buffer_store_dwordx2 v[{MM}:{LL}], v{T0}, s[{SRD_ML}:{SRD_ML+3}], s{S_ML} offen{opt.get('st','')}")
    A("s_mov_b64 exec, -1")
    A("s_waitcnt vmcnt(0)")
    A(f"s_add_u32 s{S_QO}, s{S_QO}, 8192")
    A(f"s_add_u32 s{S_ML}, s{S_ML}, 1024")
    A(f"s_sub_u32 s{S_NQ}, s{S_NQ}, 1")
    A(f"s_cmp_lg_u32 s{S_NQ}, 0")
    A(f"s_cbranch_scc1 {nm}_q")
    end(o)


def prologue(o, opt, T):
    A = o.append
    Z = S(1, 0)
    for r in range(4): A(f"v_mov_b32 v{Z+r}, 0")
    nvm = [6]
    qidx = {}
    zi = 0
    npq = opt.get('npq', 8)
    qld = lambda ds, qb: f"buffer_load_dwordx4 {vr(Q(qb,ds))}, v{VL16}, s[{SRD_Q}:{SRD_Q+3}], s{S_QO + qb if ds < 4 else S_QO + 4 + qb} offen offset:{(ds%4)*1024}"
    zm = lambda z: f"v_mfma_f32_32x32x16_bf16 a[{16*z}:{16*z+15}], {vr(Z)}, {vr(Z)}, 0"
    for ds in range(npq):
        for qb in range(4):
            A(qld(ds, qb))
            nvm[0] += 1
            qidx[(ds, qb)] = nvm[0]
            while zi < 16 * (4 * ds + qb + 1) // (4 * npq) and ds + qb > 0:
                A(zm(zi)); zi += 1
    T(1)
    lds_addrs(A)
    items = []
    dm = lambda k: (1, dma(k, {}).t)
    kit = [dm(2), dm(3)]
    for t in range(2, 5):
        kit.append((0, f"s_add_u32 s{S_OFF}, s{S_OFF}, 0x4000\ns_add_u32 m0, s{S_H}, 0x{t*0x4000:x}\ns_nop 0"))
        kit += [dm(k) for k in range(4)]
        kit[-1] = (1, kit[-1][1], t)
    kit.append((0, f"s_add_u32 s{S_OFF}, s{S_OFF}, 0x4000\ns_xor_b32 s{S_H}, s{S_H}, 0x10000"))
    qit = [(1, qld(ds, qb), ('q', ds, qb)) for ds in range(npq, 8) for qb in range(4)]
    kq = opt.get('kq', len(qit))
    items = qit[:kq] + kit[:7] + qit[kq:] + kit[7:]
    T(2)
    A(f"s_waitcnt vmcnt({nvm[0]-6})")
    A("s_barrier")
    T(3)
    dst = [lambda qb: PS(2, qb), lambda qb: PS(3, qb), lambda qb: S(0, qb)]
    gr = []
    for d in range(0, 8, 2):
        for b in range(3): gr.append(kgroup(b & 1, d, (b >> 1) * 16384, dst[b]))
    ring = [RA, RB, RC] * 4
    st, em = build(gr, ring, [], opt, inflight=0)
    per = opt.get('sper', 4)
    pos = {}
    for d in range(4):
        g = 24 * d - 1
        st.put(g, V(f"s_waitcnt vmcnt({nvm[0]-qidx[(2*d+1,3)]})"))
        k = 0; gg = g + 2
        while items and k < (per[d] if isinstance(per, list) else per):
            it = items.pop(0)
            assert gg < g + 24
            st.put(min(gg, 95), V(it[1])); nvm[0] += it[0]; k += it[0]; gg += 2
            if len(it) > 2:
                if isinstance(it[2], tuple): qidx[it[2][1:]] = nvm[0]
                else: pos[it[2]] = nvm[0]
    o += em.emit(st.seq())
    T(6)
    R4 = range(4)
    M = [RA + i for i in R4]; ET = [RA + 4 + i for i in R4]
    s0, s1 = dst[0], dst[1]
    A("s_nop 3")
    for qb in R4: A(f"v_max3_f32 v{M[qb]}, v{s0(qb)}, v{s0(qb)+1}, v{s0(qb)+2}")
    for qb in R4: A(f"v_max3_f32 v{M[qb]}, v{M[qb]}, v{s0(qb)+3}, v{s1(qb)}")
    for qb in R4: A(f"v_max3_f32 v{M[qb]}, v{M[qb]}, v{s1(qb)+1}, v{s1(qb)+2}")
    for qb in R4: A(f"v_max_f32 v{M[qb]}, v{M[qb]}, v{s1(qb)+3}")
    rest = [it for it in items]
    for it in rest:
        A(it[1]); nvm[0] += it[0]
        if len(it) > 2: pos[it[2]] = nvm[0]
    for sw in ("v_permlane32_swap_b32", "v_permlane16_swap_b32"):
        for qb in R4: A(f"v_mov_b32 v{ET[qb]}, v{M[qb]}")
        for qb in R4: A(f"{sw} v{M[qb]}, v{ET[qb]}")
        for qb in R4: A(f"v_max_f32 v{M[qb]}, v{M[qb]}, v{ET[qb]}")
    A(f"s_waitcnt vmcnt({nvm[0]-pos[2]})")
    A("s_barrier")
    MM = [PS(1, qb) + 3 for qb in R4]
    gr = kblock(1, 16384, lambda qb: S(1, qb)) + kblock(0, 32768, lambda qb: S(0, qb))
    ring = [RB, RC] + [RA, RB, RC] * 2 + [RA, RB]
    st, em = build(gr, ring, vfirst(0), opt, inflight=0)
    pre = []
    for qb in R4: pre.append(f"v_cvt_pk_bf16_f32 v{ET[qb]}, -v{M[qb]}, -v{M[qb]}")
    pre.append(f"v_lshlrev_b32 v{VT0}, 2, v{VL16}")
    for qb in R4: pre.append(f"v_lshlrev_b32 v{MM[qb]}, 16, v{ET[qb]}")
    pre.append("s_mov_b64 exec, 0xffff")
    for qb in R4: pre.append(f"v_bfi_b32 v{Q(qb,0)}, s{S_T}, v{ET[qb]}, v{Q(qb,0)}")
    for qb in R4: pre.append(f"v_xor_b32 v{M[qb]}, 0x80000000, v{MM[qb]}")
    for qb in R4: pre += ml_st(M[qb], qb, 0, opt)
    pre.append("s_mov_b64 exec, -1")
    st.pre = st.pre[:-1] + [V(x) for x in pre] + st.pre[-1:]
    pc = opt.get('pcap', 4)
    mm = lambda qb: MM[qb]
    g, e0 = place_sm(st, dst[2], lambda qb: PS(1, qb), 0, 0, dead=lambda qb: 31 + 2 * qb, cap=pc, add=mm)
    g, _ = place_sm(st, dst[0], lambda qb: PS(0, qb), 0, g, cap=pc, add=mm)
    g, _ = place_sm(st, dst[1], lambda qb: PS(0, qb), 1, g, cap=pc, add=mm)
    g, _ = place_sm(st, lambda qb: S(1, qb), lambda qb: PS(1, qb), 1, g, ready=lambda qb: 28 + 2 * qb, cap=pc)
    if opt.get('verbose'): print("prologue sm ends", e0, g, st.stats(pc))
    o += em.emit(st.seq())
    T(7)


def gen_k2(opt=None):
    opt = opt or {}
    o = []
    A = o.append
    def T(i):
        if opt.get('timing') in (1, 3) or (opt.get('timing') and i == 9): A(f"s_memtime s[{74+2*i}:{75+2*i}]")
    A("s_load_dwordx2 s[4:5], s[0:1], %d" % KA_WS)
    FUSE = opt.get('fuse', 0)
    global gen_fin
    gen_fin = [None, gen_fin1, gen_fin2, gen_fin3][FUSE]
    if FUSE >= 2: opt = dict(opt, tw=0)
    OWN = FUSE == 3
    if FUSE:
        for p_, ka in ((gen_fin2.P_X, KA_X), (gen_fin2.P_DEG, KA_DEG), (gen_fin2.P_OUT, KA_OUT)): A(f"s_load_dwordx2 s[{p_}:{p_+1}], s[0:1], {ka}")
    if opt.get('timing'):
        A("s_memtime s[62:63]")
        A("s_memrealtime s[64:65]")
    A("s_and_b32 s35, s2, 7")
    A("s_lshr_b32 s37, s2, 3")
    A("s_cmp_ge_u32 s37, 30")
    A("s_cbranch_scc1 LE_start")
    mp = opt.get('map', 1)
    if mp == 3:
        A("s_mul_i32 s38, s2, 171")
        A("s_lshr_b32 s38, s38, 10")
        A("s_mul_i32 s39, s38, 6")
        A("s_sub_u32 s37, s2, s39")
    elif mp in (4, 5):
        A("s_mul_i32 s38, s37, 26")
        A("s_lshr_b32 s38, s38, 8")
        A("s_mul_i32 s39, s38, 10")
        A("s_sub_u32 s39, s37, s39")
        A("s_and_b32 s37, s35, 1")
        if mp == 5: A("s_xor_b32 s37, s37, 1")
        A("s_lshl_b32 s38, s38, 1")
        A("s_add_u32 s37, s37, s38")
        A("s_lshr_b32 s38, s35, 1")
        A("s_mul_i32 s38, s38, 10")
        A("s_add_u32 s38, s38, s39")
    else:
        A("s_mul_i32 s38, s37, 52")
        A("s_lshr_b32 s38, s38, 8")
        A("s_mul_i32 s39, s38, 5")
        A("s_sub_u32 s39, s37, s39")
        A("s_mov_b32 s37, s38")
        A("s_mul_i32 s38, s35, 5")
        A("s_add_u32 s38, s38, s39")
    A("v_lshrrev_b32 v1, 6, v0")
    A(f"v_and_b32 v{VL16}, 63, v0")
    A(f"v_lshlrev_b32 v{VL16}, 4, v{VL16}")
    A(f"v_readfirstlane_b32 s{S_WAVE}, v1")
    cnts = opt.get('cnts', [52, 52, 52, 52, 52, 53])
    Ts = opt.get('Ts', [4 + (c & 1) for c in cnts])
    assert sum(cnts) == NT and len(cnts) == NSPLIT and all((c - t) % 2 == 0 for c, t in zip(cnts, Ts))
    stt = [sum(cnts[:i]) for i in range(NSPLIT + 1)]
    pk = sum(x << (9 * i) for i, x in enumerate(stt))
    def ranges():
        A(f"s_mov_b32 s50, 0x{pk & 0xffffffff:x}")
        A(f"s_mov_b32 s51, 0x{pk >> 32:x}")
        A(f"s_mul_i32 s39, s{S_SPL}, 9")
        A(f"s_lshr_b64 s[50:51], s[50:51], s39")
        A(f"s_and_b32 s{S_FIRST}, s50, 0x1ff")
        A(f"s_bfe_u32 s{S_END}, s50, 0x90009")
        A(f"s_sub_u32 s{S_NT}, s{S_END}, s{S_FIRST}")
        A(f"s_lshl_b32 s50, s{S_SPL}, 2")
        A(f"s_lshr_b32 s59, 0x{sum(t << (4 * i) for i, t in enumerate(Ts)):x}, s50")
        A(f"s_and_b32 s59, s59, 15")
        A(f"s_sub_u32 s{S_CNT}, s{S_NT}, s59")
        A(f"s_lshr_b32 s{S_CNT}, s{S_CNT}, 1")
        A(f"s_sub_u32 s{S_CNT}, s{S_CNT}, 1")
        A(f"s_lshl_b32 s{S_FIRST}, s{S_FIRST}, 14")
        A(f"s_lshl_b32 s{S_END}, s{S_END}, 14")
        A(f"s_add_u32 s{S_OFF}, s{S_FIRST}, 0x4000")
        A(f"s_cmp_eq_u32 s{S_SPL}, {NSPLIT-1}")
        A(f"s_cselect_b32 s{S_MASK}, 0xff800000, 0")
        A(f"s_mov_b32 s{S_T}, 0xffff")
    ranges()
    A("v_and_b32 v2, 63, v0")
    A("v_bfe_u32 v3, v2, 3, 2")
    A("v_bfe_u32 v4, v2, 2, 1")
    A(f"v_lshlrev_b32 v{VDMA}, 12, v3")
    A(f"v_lshl_or_b32 v{VDMA}, v4, 9, v{VDMA}")
    A(f"v_lshl_or_b32 v{VDMA}, v1, 7, v{VDMA}")
    A("v_lshrrev_b32 v4, 5, v2")
    A(f"v_lshl_or_b32 v{VDMA}, v4, 6, v{VDMA}")
    A("v_and_b32 v3, 2, v3")
    A("v_and_b32 v4, 3, v2")
    A("v_xor_b32 v3, v3, v4")
    A(f"v_lshl_or_b32 v{VDMA}, v3, 4, v{VDMA}")
    A(f"s_cmp_eq_u32 s{S_QT}, 39")
    A("s_cbranch_scc1 LT_disp")
    A(f"s_lshl_b32 s{S_H}, s{S_WAVE}, 12")
    A(f"s_mov_b32 m0, s{S_H}")
    def srds(perm=False):
        srd_from(o, SRD_Q, 4, QF_OFF, QF_BYTES)
        A(f"s_mul_i32 s35, s{S_SPL}, 0x{OP_STRIDE:x}")
        srd_from(o, SRD_OP, 4, OP_OFF, QF_BYTES, 35)
        srd_from(o, SRD_ML, 4, ML_OFF, NB16 * 1024)
        A(f"s_lshl_b32 s35, s{S_QT}, 4")
        A(f"s_lshl_b32 s41, s{S_WAVE}, 2")
        A(f"s_add_u32 s35, s35, s41")
        if perm:
            A(f"s_mul_i32 s41, s{S_SPL}, 3")
            A(f"s_sub_u32 s42, s{S_WAVE}, s41")
            A("s_and_b32 s42, s42, 3")
            A("s_add_u32 s41, s41, s42")
            A("s_lshr_b32 s41, s41, 2")
            A(f"s_cmp_eq_u32 s{S_SPL}, {NSPLIT-1}")
            A("s_cselect_b32 s42, 3, s42")
            A("s_cmp_lt_u32 s42, 3")
            A("s_cselect_b32 s41, s41, 0")
            A(f"s_cselect_b32 s{S_OWN}, 1, 0")
            A("s_add_u32 s35, s35, s41")
        A(f"s_lshl_b32 s{S_QO}, s35, 13")
        A(f"s_lshl_b32 s{S_ML}, s35, 10")
        A(f"s_lshl_b32 s35, s{S_SPL}, 3")
        A(f"s_add_u32 s{S_ML}, s{S_ML}, s35")
    A("s_waitcnt lgkmcnt(0)")
    T(0)
    srd_from(o, SRD_K, 4, H_OFF, f"s{S_END}")
    def qtouch():
        srd_from(o, SRD_Q, 4, QF_OFF, QF_BYTES)
        A(f"s_lshl_b32 s35, s{S_SPL}, 2"); A(f"s_add_u32 s35, s35, s{S_WAVE}"); A(f"s_lshl_b32 s36, s{S_QT}, 4"); A("s_add_u32 s36, s36, s35"); A("s_lshl_b32 s36, s36, 13")
        A("s_cmp_lt_u32 s35, 16"); A("s_cselect_b32 s36, s36, 0x7fff0000")
        A(f"v_lshlrev_b32 v{VT1}, 3, v{VL16}")
        A(f"buffer_load_dword v{VT1}, v{VT1}, s[{SRD_Q}:{SRD_Q+3}], s36 offen")
    if opt.get('qt') == 1: qtouch()
    for k in range(4):
        A(f"buffer_load_dwordx4 v{VDMA}, s[{SRD_K}:{SRD_K+3}], s{S_FIRST} offen offset:{k*1024} lds")
    A(f"s_add_u32 m0, s{S_H}, 0x4000")
    A("s_nop 0")
    if opt.get('qt') == 2: qtouch()
    for k in range(2): A(dma(k, {}).t)
    srds(OWN)
    for qb in range(1, 4): A(f"s_xor_b32 s{S_QO+qb}, s{S_QO}, {qb*8192}")
    for qb in range(4): A(f"s_add_u32 s{S_QO+4+qb}, s{S_QO+qb}, 4096")
    if OWN: o += gen_fin3.rows(S_SPL, S_QT)
    prologue(o, opt, T)
    if OWN:
        A(f"s_cmp_eq_u32 s{S_OWN}, 1")
        A(f"s_cselect_b32 s{S_QO}, 0x7fff0000, s{S_QO}")
        A(f"s_cselect_b32 s{S_QO+4}, 0x7fff0000, s{S_QO+4}")
    if opt.get('timing'):
        A("s_memtime s[66:67]")
    if FUSE >= 2 and opt.get('hp', 2): assert all((t == 6 and (c - t) // 2 % 2 == 1) or (FUSE == 3 and t in (5, 6)) for c, t in zip(cnts[:5], Ts)) and (Ts[5] < 7 or (cnts[5] - 7) // 2 % 2 == 1)
    if opt.get('half'): assert Ts[5] == 7 and 7 not in Ts[:5]
    need = sorted({((c - t) // 2 % 2, t) for c, t in zip(cnts, Ts)})
    A(".p2align 6")
    A("L2_loop:")
    o += body(0, opt)
    if any(p == 1 for p, _ in need): A("s_cbranch_scc1 L2_tail_1")
    o += body(1, opt)
    A("s_cbranch_scc0 L2_loop")
    A("L2_tails:")
    for p in (0, 1):
        ts = [t for pp, t in need if pp == p]
        if not ts: continue
        A(f"L2_tail_{p}:")
        if opt.get('timing'): A("s_memtime s[68:69]")
        for t in ts[1:]:
            A(f"s_cmp_eq_u32 s59, {t}")
            A(f"s_cbranch_scc1 L2_tail_{p}_{t}")
        for t in ts:
            A(f"L2_tail_{p}_{t}:")
            o += tail(p, t, opt)
            T(9)
            A("s_branch L2_chk")
    A("L2_chk:")
    if opt.get('fslow'): A("s_mov_b64 vcc, -1")
    def slow(o_, end):
        lds_addrs(A)
        A(f"v_and_b32 v{VDMA}, 0xfffffe7f, v{VDMA}")
        A(f"s_mul_i32 s36, s{S_WAVE}, 0xa000")
        light(o, opt, "LS", "s36", 2, 4, end)
    if FUSE:
        def slow2(o_):
            ranges(); srd_from(o, SRD_K, 4, H_OFF, f"s{S_END}"); srds()
            slow(o, lambda o_: None)
        gen_fin.phase_c(o, opt, S_WAVE, S_SPL, S_QT, VL16, slow2)
    else:
        A("s_barrier")
        A("s_cbranch_vccz L2_fin")
        A("s_waitcnt vmcnt(0)")
        slow(o, lambda o_: o_.append('s_branch L2_fin'))
    A("LT_disp:")
    A(f"s_cmp_eq_u32 s{S_WAVE}, 0")
    A("s_cbranch_scc1 LT_start")
    A(f"s_mov_b32 s{gen_eg.S_W}, s{S_WAVE}")
    A(f"s_mul_i32 s{gen_eg.S_B}, s{S_WAVE}, 6")
    A(f"s_add_u32 s{gen_eg.S_B}, s{gen_eg.S_B}, s{S_SPL}")
    A(f"s_add_u32 s{gen_eg.S_B}, s{gen_eg.S_B}, 42")
    A(f"s_cmp_lt_u32 s{gen_eg.S_B}, {NBU}")
    A("s_cbranch_scc1 LE_common")
    A("s_branch L2_end")
    A("LT_start:")
    if opt.get('lprio'): A(f"s_setprio {opt['lprio']}")
    A("s_waitcnt lgkmcnt(0)")
    srd_from(o, SRD_K, 4, H_OFF, f"s{S_END}")
    srds()
    lds_addrs(A)
    def lend(o_):
        if FUSE == 3 and opt.get('e2'): gen_fin.flag_add(o, 39, srd=52, pre=[f"s_cmp_eq_u32 s{S_SPL}, {NSPLIT-1}", "s_cselect_b32 s36, 0x100, 1", "v_mov_b32 v2, s36"])
        elif FUSE: gen_fin.flag_add(o, 40 if FUSE == 1 else 39, srd=52)
        A("s_branch L2_fin")
    light(o, opt, "LT", 0x16000, 4, 1, lend)
    gen_eg.gen_edge(o, dict(opt, light=1, tpl=('L2_tails', 'LT_disp'), ste=opt.get('ste', ' sc1' if FUSE else ''), eend=(lambda o_: gen_fin.flag_add(o_, 40, v=(20, 21), srd=52)) if FUSE else None, help=FUSE >= 2, deg=OWN))
    if FUSE >= 2: gen_fin.helper_entry(o, S_WAVE, VL16, gen_eg.S_W)
    A("L2_fin:")
    if opt.get('timing'):
        A("s_mov_b64 exec, -1")
        A("s_waitcnt vmcnt(0)")
        A("s_memtime s[70:71]")
        A("s_memrealtime s[72:73]")
        A("s_waitcnt lgkmcnt(0)")
        A("s_sub_u32 s66, s66, s62")
        A("s_sub_u32 s68, s68, s62")
        A("s_sub_u32 s70, s70, s62")
        for i in range(10):
            A(f"s_sub_u32 s{74+2*i}, s{74+2*i}, s62\nv_mov_b32 v{4+i}, s{74+2*i}")
        A("v_mov_b32 v14, s64\nv_mov_b32 v15, s72")
        A("s_sub_u32 s72, s72, s64")
        A("v_mov_b32 v0, s66\nv_mov_b32 v1, s68\nv_mov_b32 v2, s70\nv_mov_b32 v3, s72")
        srd_from(o, 60, 4, 224 << 20, 0x100000)
        A(f"s_lshl_b32 s35, s2, 2")
        A(f"s_add_u32 s35, s35, s{S_WAVE}")
        A(f"s_lshl_b32 s35, s35, 10")
        A(f"buffer_store_dwordx4 v[0:3], v{VL16}, s[60:63], s35 offen")
        A("s_add_u32 s35, s35, 0x200000\ns_mov_b32 s62, 0x800000")
        for k in range(3):
            A(f"buffer_store_dwordx4 v[{4+4*k}:{7+4*k}], v{VL16}, s[60:63], s35 offen")
            A("s_add_u32 s35, s35, 0x100000")
    A("L2_end:")
    return "\n".join(o)


def kernel_desc(opt=None):
    return dict(name="k2_kernel", body=gen_k2(opt), vgpr=512, accum=256, grid=256, block=256, lds=163840)

if __name__ == "__main__":
    import sys, json, hazard
    t = gen_k2(dict(json.loads(sys.argv[1]) if len(sys.argv) > 1 else {}, verbose=1, new=32, st=" sc1"))
    e = hazard.check(t, "k2")
    print("\n".join(e[:30])); print(len(e), "hazards;", len(t.split("\n")), "lines")
    open('k2f.s', 'w').write(t)
```

```python
import re
REG = re.compile(r'\b([vas])(\d+)\b|\b([vas])\[(\d+):(\d+)\]|\b(vcc|exec|m0|scc)\b')
TRANS = ('v_exp_f32', 'v_log_f32', 'v_rcp_f32', 'v_rsq_f32', 'v_sqrt_f32', 'v_sin_f32', 'v_cos_f32')

def regs(op):
    out = set()
    for m in REG.finditer(op):
        if m.group(1):
            out.add((m.group(1), int(m.group(2))))
        elif m.group(3):
            for i in range(int(m.group(4)), int(m.group(5)) + 1):
                out.add((m.group(3), i))
        else:
            n = m.group(6)
            if n == 'vcc':
                out.add(('s', 106)); out.add(('s', 107))
            elif n == 'exec':
                out.add(('s', 126)); out.add(('s', 127))
            elif n == 'm0':
                out.add(('s', 124))
    return out

def split_ops(s):
    ops, d, cur = [], 0, ''
    for ch in s:
        if ch == '[': d += 1
        if ch == ']': d -= 1
        if ch == ',' and d == 0:
            ops.append(cur.strip()); cur = ''
        else:
            cur += ch
    if cur.strip(): ops.append(cur.strip())
    return ops

class I:
    pass

def parse(line):
    line = line.split(';')[0].split('//')[0].strip()
    if not line or line.endswith(':') or line.startswith('.'):
        return None
    p = line.split(None, 1)
    i = I(); i.text = line; i.op = p[0]
    ops = split_ops(p[1]) if len(p) > 1 else []
    i.ops = ops
    op = i.op
    i.mfma = op.startswith('v_mfma')
    i.valu = op.startswith('v_') and not i.mfma
    i.vmem = op.startswith('buffer_') or op.startswith('global_')
    i.ds = op.startswith('ds_')
    i.salu = op.startswith('s_')
    i.lds_dma = i.vmem and re.search(r'\blds\b', line) is not None
    i.dpp = 'dpp' in line or 'row_' in line or 'quad_perm' in line
    i.ws = 1
    if op == 's_nop':
        i.ws = int(ops[0], 0) + 1
    nd = 1
    if op.startswith(('buffer_store', 'global_store', 's_cmp', 's_bitcmp', 's_cbranch', 's_branch', 's_waitcnt', 's_barrier', 's_nop', 's_endpgm', 's_setprio', 's_sleep', 's_setpc')) or i.lds_dma:
        nd = 0
    if i.ds and not (op.startswith('ds_read') or 'rtn' in op or 'permute' in op or 'swizzle' in op):
        nd = 0
    if op.startswith(('buffer_atomic', 'global_atomic')):
        nd = 0
    i.dst = set(); i.src = set()
    for k, o in enumerate(ops):
        r = regs(o)
        if k < nd: i.dst |= r
        else: i.src |= r
    if 'swap' in op and i.valu:
        i.dst |= regs(ops[1]); i.src |= regs(ops[0])
    if op.startswith(('v_cndmask_b32', 'v_addc', 'v_subb')) and len(ops) == 3:
        i.src |= regs('vcc')
    if op.startswith('v_fmac') or op.startswith('v_dot2c') or op.startswith('v_writelane'):
        i.src |= i.dst
    if op.startswith(('v_add_co', 'v_sub_co')):
        i.dst |= regs(ops[1]); i.src -= regs(ops[1])
    if op.startswith('s_and_saveexec') or op.startswith('s_or_saveexec'):
        i.dst |= regs('exec')
    if i.mfma:
        i.A = regs(ops[1]); i.B = regs(ops[2]); i.C = regs(ops[3]); i.Dtxt = ops[0]; i.Ctxt = ops[3]
        i.passes = 8 if '32x32' in op else 4
    if op.startswith(('buffer_store_dwordx4', 'buffer_store_dwordx3', 'global_store_dwordx4')):
        i.wide = regs(ops[0]) if op.startswith('buffer') else regs(ops[1])
    else:
        i.wide = set()
    return i

def check(text, name=''):
    ins = [x for x in (parse(l) for l in text.split('\n')) if x]
    errs = []
    for n, c in enumerate(ins):
        dist = 0
        for k in range(n - 1, max(-1, n - 24), -1):
            p = ins[k]
            need = 0; why = ''
            def req(v, w):
                nonlocal need, why
                if v > need: need, why = v, w
            if p.valu:
                vd = {r for r in p.dst if r[0] in 'va'}
                sd = {r for r in p.dst if r[0] == 's'}
                if c.mfma and vd & (c.A | c.B | c.C): req(2, 'valu->mfma')
                if p.op.startswith(TRANS) and c.valu and not c.op.startswith(TRANS) and vd & c.src: req(1, 'trans->valu')
                if p.op.startswith(TRANS) and (c.vmem or c.ds) and vd & c.src: req(1, 'trans->mem')
                if c.op.startswith(('v_readlane', 'v_readfirstlane')) and vd & c.src: req(1, 'valu->readlane')
                if c.op.startswith('v_permlane') and vd & (c.src | c.dst): req(2, 'valu->permlane')
                if c.dpp and vd & c.src: req(2, 'valu->dpp')
                if sd:
                    if c.vmem and sd & c.src: req(5, 'valu sgpr->vmem')
                    if c.valu and sd & c.src: req(2, 'valu sgpr->valu')
                    if c.op.startswith(('v_readlane', 'v_writelane')) and len(c.ops) > 2 and sd & regs(c.ops[2]): req(4, 'valu sgpr->lanesel')
            if p.mfma:
                D = p.dst
                big = 8 if p.passes == 4 else 12
                if c.mfma:
                    if D & (c.A | c.B): req(big, 'mfma D->A/B')
                    if D & c.C and not (p.Dtxt == c.Ctxt and p.passes == c.passes): req(big - 2, 'mfma D->C overlap')
                    if D & c.dst and not (p.Dtxt == c.Ctxt): req(big, 'mfma WAW mfma')
                elif (c.valu or c.vmem or c.ds) and D & (c.src | c.dst): req(big, 'mfma D->use')
                if c.valu and p.C & c.dst: req(3 if p.passes == 4 else 7, 'mfma C WAR')
            if p.wide and (c.valu or c.mfma) and p.wide & c.dst: req(2, 'store data WAR')
            if p.salu and ('s', 124) in p.dst and c.lds_dma: req(1, 'm0->lds dma')
            if need > dist:
                errs.append(f"{name}: {why}: need {need} have {dist}\n    {p.text}\n    {c.text}")
            dist += p.ws
            if dist >= 20: break
    return errs

def check_scc(text, name=''):
    ins = [x for x in (parse(l) for l in text.split('\n')) if x]
    errs = []
    for n, c in enumerate(ins):
        if c.op in ('s_addc_u32', 's_subb_u32', 's_cselect_b32', 's_cselect_b64', 's_cbranch_scc0', 's_cbranch_scc1'):
            k = n - 1
            while k >= 0 and (not ins[k].salu or ins[k].op.startswith(('s_mov', 's_nop', 's_waitcnt', 's_cselect', 's_barrier', 's_mul_i32', 's_memtime', 's_sleep', 's_cbranch', 's_load', 's_movk'))): k -= 1
            p = ins[k].op
            ok = {'s_addc_u32': ('s_add_u32', 's_cmp'), 's_subb_u32': ('s_sub_u32',)}.get(c.op, ('s_cmp', 's_bitcmp', 's_sub_u32', 's_and_b32'))
            if not p.startswith(ok) or (c.op == 's_addc_u32' and p == 's_add_u32' and int(ins[k].ops[0][1:]) + 1 != int(c.ops[0][1:])):
                errs.append(f"{name}: SCC producer of '{c.text}' is '{ins[k].text}'")
    return errs

def fix(lines):
    out = []
    for l in lines:
        for t in l.split('\n'):
            c = parse(t)
            if c is not None:
                while True:
                    win = [x for x, p in out[-24:] if p is not None] + [t]
                    e = [m for m in check_last(win)]
                    if not e: break
                    need = max(e)
                    out.append((f"s_nop {need-1}", parse(f"s_nop {need-1}")))
            out.append((t, c))
    return [t for t, _ in out]

def check_last(win):
    errs = check("\n".join(win[:-1]))
    errs2 = check("\n".join(win))
    new = errs2[len(errs):]
    return [int(re.search(r'need (\d+) have (\d+)', m).group(1)) - int(re.search(r'need (\d+) have (\d+)', m).group(2)) for m in new]
```

```python
N = 10000
D = 256
E = 160000
NB16 = 626
NT = 313
FRAGBLK = 8192
QF_OFF = 0
KF_OFF = 8 << 20
VF_OFF = 16 << 20
ME_OFF = 104 << 20
H_OFF = ME_OFF
WF_OFF = 16 << 20
OP_OFF = 32 << 20
OP_STRIDE = 6 << 20
ML_OFF = 96 << 20
ML_STRIDE = 1 << 20
HL_OFF = 112 << 20
AF_OFF = 20 << 20
AFL = 131072
AF_BYTES = AFL + 32 * 512
FL_OFF = 124 << 20
FL_BYTES = 8192
ECNT_OFF = 120 << 20
EDGE_OFF = 128 << 20
QF_BYTES = NB16 * FRAGBLK
KF_BYTES = NB16 * FRAGBLK
VF_BYTES = NT * 16384
ME_BYTES = N * 512
HL_BYTES = N * 512
NSPLIT = 6
NQT = 40
K1_WGS = 256
EPW = E // K1_WGS
NBK = 64
import os
NBU = int(os.environ.get('NBU', 60))
BN, BMAGIC, BSHIFT = (157, 6679, 20) if NBU == 64 else (167, 6279, 20)
BN2 = int(os.environ.get('BN2', 0))
if BN2:
    NBU = 64; BN = (N - 16 * BN2 + 47) // 48; BMAGIC = (1 << 20) // BN + 1; BMAGIC2 = (1 << 20) // BN2 + 1; BOFF = 48 * (BN - BN2)
    for d in range(N):
        b = max(d * BMAGIC >> 20, (d - BOFF) * BMAGIC2 >> 20); l = max(d - BN * b, d - BOFF - BN2 * b)
        assert b < 64 and 0 <= l < (BN if b < 48 else BN2) and d == min(BN * b, BOFF + BN2 * b) + l
NEW = 16
ECAP = 10240
ECNT_BYTES = NBK * NEW * 4
EDGE_BYTES = NBK * NEW * ECAP * 4
assert all((d * BMAGIC) >> BSHIFT == d // BN for d in range(N)) and NBU * BN >= N
KA_X, KA_SRC, KA_DST, KA_DEG, KA_WMSG, KA_WQ, KA_WK, KA_WV, KA_WOUT, KA_OUT, KA_DBG, KA_WS = [8 * i for i in range(12)]


def vr(b, n=4): return f"v[{b}:{b+n-1}]"
def ar(b, n=4): return f"a[{b}:{b+n-1}]"
def sr(b, n=4): return f"s[{b}:{b+n-1}]"


class Seg:
    def __init__(self):
        self.mf = []
        self.gap = []
        self.pre = []

    def add_mfma(self, t):
        self.mf.append(t)
        self.gap.append([])

    def used(self, g):
        return sum(c for c, _ in self.gap[g])

    def put(self, g, text, cost=1):
        if g < 0:
            self.pre.append((cost, text))
        else:
            self.gap[g].append((cost, text))

    def fill(self, queue, g0, g1, cap=2):
        g = g0
        for cost, text in queue:
            while g < g1 and self.used(g) + cost > cap:
                g += 1
            self.gap[g].append((cost, text))
        return g

    def text(self):
        o = [t for _, t in self.pre]
        for m, gp in zip(self.mf, self.gap):
            o.append(m)
            o += [t for _, t in gp]
        return o


def srd_from(o, d, plo, off, nbytes, extra_sgpr=None):
    o.append(f"s_add_u32 s{d}, s{plo}, 0x{off & 0xffffffff:x}")
    o.append(f"s_addc_u32 s{d+1}, s{plo+1}, 0")
    if extra_sgpr is not None:
        o.append(f"s_add_u32 s{d}, s{d}, s{extra_sgpr}")
        o.append(f"s_addc_u32 s{d+1}, s{d+1}, 0")
    if isinstance(nbytes, str):
        o.append(f"s_mov_b32 s{d+2}, {nbytes}")
    else:
        o.append(f"s_mov_b32 s{d+2}, 0x{nbytes:x}")
    o.append(f"s_mov_b32 s{d+3}, 0x00020000")
```

```python
import sys, os
here = os.path.dirname(os.path.abspath(__file__))
sys.path.insert(0, here)
import gen, hazard
DEFAULTS = {"k1": {"st": " sc1", "code_end": "L3_end", "late": 1, "npre": 2, "rc": 3, "nopk": 2, "ste": " sc1", "mainfirst": 1}, "k2": {"map": 1, "sper": 2, "st": " sc1", "gdma": [52, 53, 57, 61, 65], "new": 32, "light": 1, "trun": 5, "half": 1, "mle": 3, "ccap": [3, 3, 3, 2, 2, 2, 2, 2], "cnts": [51, 51, 52, 53, 53, 53]}, "k3": {"map": 1, "d": 6, "order": "m3", "nopk": 1}}
DEFAULTS_F = {"st": " sc1", "new": 32, "mle": 3, "ccap": 2, "lead": 40, "cnts": [52, 52, 52, 52, 52, 53], "Ts": [6, 6, 6, 6, 6, 7], "fuse": 3, "half": 1, "rs": 80, "pk": 1, "oi": 3, "cil": 0, "tpf": 7, "npq": 6, "sper": [8, 6, 4, 4], "cst": " sc1",
              "x2e": 1, "hsplit": 4, "mix": 2, "cpre": "xx" + "a" * 24 + "b" * 16 + "q" + "b" * 8, "cord": "mmm" + "0" * 10 + "|" + "1b" * 8 + "11|" + "2" * 10 + "|", "cd": 14}
def kernels(opt=None):
    opt0 = opt or {}
    opt = {k: dict(v, **(opt0.get(k) or {})) for k, v in DEFAULTS.items()}
    if opt0.get('old') or opt0.get('emu1'): opt['k2']['new'] = 16
    if opt0.get('old'):
        del opt['k2']['gdma']
        import gen_k1, gen_k2, gen_k3
        return [gen_k1.kernel_desc(opt['k1']), gen_k2.kernel_desc(opt['k2']), gen_k3.kernel_desc(opt['k3'])]
    import gen_k2n
    if opt0.get('f0', 1):
        import gen_k2f as gen_k2n
        opt['k1']['f0'] = 1
        opt['k2'] = dict(DEFAULTS_F, **(opt0.get('k2') or {}))
    ks = []
    if opt['k2'].get('fuse'): opt0 = dict(opt0, nok3=1)
    if opt0.get('nok3'): opt['k1']['code_end'] = 'L2_end'
    if opt0.get('emu1'):
        import gen_k1; ks.append(gen_k1.kernel_desc(opt['k1']))
    else:
        import gen_k1n; ks.append(gen_k1n.kernel_desc(opt['k1']))
    ks.append(gen_k2n.kernel_desc(opt['k2']))
    if not opt0.get('nok3'):
        import importlib; ks.append(importlib.import_module(opt0.get('k3mod', 'gen_k3n')).kernel_desc(opt['k3']))
    if opt0.get('rt'):
        for i, k in enumerate(ks): k['body'] = rt_wrap(k['body'], i)
    return ks
def rt_wrap(body, i):
    pre = "s_memrealtime s[96:97]\n"
    post = f"""
s_mov_b64 exec, 1
s_load_dwordx2 s[84:85], s[0:1], 88
s_waitcnt vmcnt(0)
s_memrealtime s[94:95]
s_getreg_b32 s88, hwreg(HW_REG_HW_ID)
s_waitcnt lgkmcnt(0)
s_add_u32 s84, s84, 0x{(220 + i) << 20:x}
s_addc_u32 s85, s85, 0
s_mov_b32 s86, 0x100000
s_mov_b32 s87, 0x00020000
s_and_b32 s88, s88, 0x3f
s_lshl_b32 s89, s2, 6
s_or_b32 s88, s88, s89
s_lshl_b32 s88, s88, 3
v_mov_b32 v0, s96
v_mov_b32 v1, s94
v_mov_b32 v2, 0
buffer_store_dwordx2 v[0:1], v2, s[84:87], s88 offen"""
    lines = body.split("\n")
    if lines[0].startswith("s_getpc"): return lines[0] + "\n" + pre + "\n".join(lines[1:]) + post
    return pre + body + post
if __name__ == "__main__":
    import json
    opt = json.loads(sys.argv[2]) if len(sys.argv) > 2 else {}
    ks = kernels(opt)
    for k in ks:
        e = hazard.check(k['body'], k['name']) + hazard.check_scc(k['body'], k['name'])
        assert not e, "\n".join(e)
    out = sys.argv[1] if len(sys.argv) > 1 else os.path.join(here, "..", "standalone__hybrid_graph_tf_graphgps__graph.s")
    open(out, "w").write(gen.build_file(ks))
    print("wrote", out, os.path.getsize(out))
```
